```python
import torch

def _softmax(x, axis=-1):
    return torch.softmax(x, dim=axis)
def _gelu(x):
    return torch.nn.functional.gelu(x, approximate="tanh")
def _silu(x):
    return torch.nn.functional.silu(x)
def _sigmoid(x):
    return torch.sigmoid(x)
def _layernorm(x, axis=-1, eps=1e-5):
    m = x.mean(dim=axis, keepdim=True)
    v = x.var(dim=axis, keepdim=True, unbiased=False)
    return (x - m) / torch.sqrt(v + eps)
def _scatter_add(tgt, idx, src, axis=0):
    return tgt.clone().index_add_(axis, idx, src)
def _segment_sum(src, seg, n):
    out = torch.zeros((n,) + src.shape[1:], dtype=src.dtype)
    return out.index_add_(0, seg, src)
def _pad(x, pw):
    flat = tuple(v for pair in reversed(pw) for v in pair)
    return torch.nn.functional.pad(x, flat)

kernel_name = 'gated_mix__sliding_block_cached__swiglu_ffn__decode'

def setup_inputs():

    _w = (lambda a: (lambda t: t.to(torch.bfloat16) if t.is_floating_point() else t)(torch.as_tensor(a)))
    def _A_setup():
        B, Sq, D = 8, 1, 576
        Hq, Hkv, Sk, Dh = 32, 16, 4096, 128
        assert Hq % Hkv == 0, (Hq, Hkv)
        return {
            "x": _w((lambda *s: torch.randn(*s, dtype=torch.bfloat16) * 0.05)(B, Sq, D)),
            "k_cache": _w((lambda *s: torch.randn(*s, dtype=torch.bfloat16) * 3.2)(B, Hkv, Sk, Dh)),
            "v_cache": _w((lambda *s: torch.randn(*s, dtype=torch.bfloat16) * 0.4)(B, Hkv, Sk, Dh)),
            "wq": _w((lambda *s: torch.randn(*s, dtype=torch.bfloat16) * 3.2)(D, Hq * Dh) * (D ** -0.5)),
            "wo": _w((lambda *s: torch.randn(*s, dtype=torch.bfloat16) * 0.4)(Hq * Dh, D) * ((Hq * Dh) ** -0.5)),
        }
    _A_in = _A_setup()

    def _B_setup():
        B, S, D, F = 8, 1, 576, 4608
        return {
            "x": _w((lambda *s: torch.randn(*s, dtype=torch.bfloat16) * 0.05)(B, S, D)),
            "w_gate": _w((lambda *s: torch.randn(*s, dtype=torch.bfloat16) * 0.05)(D, F)),
            "w_up": _w((lambda *s: torch.randn(*s, dtype=torch.bfloat16) * 0.05)(D, F)),
            "w_down": _w((lambda *s: torch.randn(*s, dtype=torch.bfloat16) * 0.05)(F, D)),
        }
    _B_in = _B_setup()

    return {
        "A_x": _A_in["x"],
        "A_k_cache": _A_in["k_cache"],
        "A_v_cache": _A_in["v_cache"],
        "A_wq": _A_in["wq"],
        "A_wo": _A_in["wo"],
        "B_x": _B_in["x"],
        "B_w_gate": _B_in["w_gate"],
        "B_w_up": _B_in["w_up"],
        "B_w_down": _B_in["w_down"],
        "gate_w": _w((lambda *s: torch.randn(*s, dtype=torch.bfloat16) * 0.05)(576) * 16.0),
    }

def reference(A_x, A_k_cache, A_v_cache, A_wq, A_wo, B_x, B_w_gate, B_w_up, B_w_down, gate_w):
    def _A_ref(x, k_cache, v_cache, wq, wo):
        B, Sq, D = x.shape
        Hq, Dh = 32, 128
        Hkv, Sk = k_cache.shape[1], k_cache.shape[2]
        W = min(4096, max(256, Sk // 4))
        rep = Hq // Hkv
        q = (lambda x, *d: x.permute(*d))((x @ wq).reshape(B, Sq, Hq, Dh), 0, 2, 1, 3)
        k = (lambda x, n, axis: torch.repeat_interleave(x, n, dim=axis))(k_cache[:, :, Sk - W:, :], rep, axis=1)
        v = (lambda x, n, axis: torch.repeat_interleave(x, n, dim=axis))(v_cache[:, :, Sk - W:, :], rep, axis=1)
        scores = torch.einsum("bhqd,bhkd->bhqk", q, k) * (Dh ** -0.5)
        p = _softmax(scores, axis=-1)
        o = torch.einsum("bhqk,bhkd->bhqd", p, v)
        return (lambda x, *d: x.permute(*d))(o, 0, 2, 1, 3).reshape(B, Sq, Hq * Dh) @ wo

    def _B_ref(x, w_gate, w_up, w_down):
        g = _silu(x @ w_gate)
        u = x @ w_up
        return (g * u) @ w_down

    x = A_x
    g = _sigmoid((x * gate_w).sum(-1, keepdims=True))
    a = _A_ref(x, A_k_cache, A_v_cache, A_wq, A_wo)
    b = _B_ref(x, B_w_gate, B_w_up, B_w_down)
    return g * a + (1 - g) * b
```

```python
NAME = "gated_mix__sliding_block_cached__swiglu_ffn__decode"
HEADER_COMMENTS = """; Kernarg layout for this problem (104 bytes, ptrs only, base s[0:1]):
"""

class Asm:
    def __init__(self):
        self.lines = []
        self.nlabel = 0
    def __call__(self, s=""):
        for l in s.split("\n"):
            l = l.strip()
            if l:
                self.lines.append("    " + l if not l.endswith(":") else l)
    def label(self, base="L"):
        self.nlabel += 1
        return f"{base}_{self.nlabel}"
    def text(self):
        return "\n".join(self.lines) + "\n"

def wrap(body, grid, block, lds, vgpr, sgpr=102, accum=None, name=NAME + "_kernel"):
    if accum is None:
        accum = (vgpr + 3) // 4 * 4
    return (HEADER_COMMENTS +
      f"; @launch grid=({grid},1,1) block=({block},1,1) lds={lds}\n"
      '.amdgcn_target "amdgcn-amd-amdhsa--gfx950"\n.text\n'
      f".globl {name}\n.p2align 8\n.type {name},@function\n{name}:\n"
      + body +
      '.section .rodata,"a"\n.p2align 6\n'
      f".amdhsa_kernel {name}\n"
      f"  .amdhsa_next_free_vgpr {vgpr}\n"
      f"  .amdhsa_next_free_sgpr {sgpr}\n"
      f"  .amdhsa_accum_offset {accum}\n"
      "  .amdhsa_group_segment_fixed_size 0\n"
      "  .amdhsa_kernarg_size 104\n"
      "  .amdhsa_user_sgpr_count 2\n"
      "  .amdhsa_user_sgpr_kernarg_segment_ptr 1\n"
      "  .amdhsa_system_sgpr_workgroup_id_x 1\n"
      ".end_amdhsa_kernel\n")
```

```python
import sys
from asmlib import *

NWG = 256
NLIGHT = 48
L_W = 0
L_KSCR = 98304
L_SMALL = 131072
L_Q = L_SMALL + 4096
L_P = L_Q + 512
L_BM = L_P + 2048
BM_PITCH = 528
LDS_BYTES = L_BM + 8 * BM_PITCH
LDS_ALLOC = 143360
D_S1ACC = 0
D_OACC = 512
D_L = 768
D_CNT_S1 = 776
D_FLAG_Q = 777
D_CNT_M = 778
D_CNT_O = 779
D_CNT_W = 780
D_CNT_HA = 781
D_FLAG_P = 784
D_ZERO = 800
D_M = 1022
def sm(d): return L_SMALL + 4 * d
WS_EPOCH = 0
WS_S1 = 0x10000
S1_PITCH = 3328 * 16
WS_O = 0x100000
WS_PART = 0x200000
PART_PITCH = 576 * 8
WS_BYTES = 0x400000
STAMP_OFF = 0x10000000
SCALE_LOG2E = 0.08838834764831845 * 1.4426950408889634

import struct
def f32bits(x): return struct.unpack("<I", struct.pack("<f", x))[0]

class Gen:
    def __init__(self, stamps=False, stage=99):
        self.a = Asm()
        self.stamps = stamps
        self.stage = stage
        self.nstamp = 0

    def stamp(self, idx):
        if self.stamps:
            self.a(f"s_memrealtime s[{80+2*idx}:{81+2*idx}]")

    def lds_wait_ge(self, dword, value, vt, va=None):
        a = self.a
        lab = a.label("L_lw"); done = a.label("L_lwd")
        a(f"v_mov_b32 v{vt+1}, {sm(dword)}")
        a("s_mov_b32 s57, 0")
        a(f"{lab}:")
        a(f"ds_read_b32 v{vt}, v{vt+1}")
        a("s_waitcnt lgkmcnt(0)")
        a(f"v_readfirstlane_b32 s56, v{vt}")
        a("s_add_u32 s57, s57, 1")
        a(f"s_cmp_ge_u32 s56, {value}")
        a(f"s_cbranch_scc1 {done}")
        a("s_sleep 1")
        a("s_cmp_lt_u32 s57, 0x40000")
        a(f"s_cbranch_scc1 {lab}")
        a(f"{done}:")

    def lds_inc(self, dword, vt, rtn=False):
        a = self.a
        a("s_mov_b64 s[58:59], exec")
        a("s_mov_b64 exec, 1")
        a(f"v_mov_b32 v{vt}, {sm(dword)}")
        a(f"v_mov_b32 v{vt+1}, 1")
        if rtn:
            a(f"ds_add_rtn_u32 v{vt+2}, v{vt}, v{vt+1}")
            a("s_waitcnt lgkmcnt(0)")
            a(f"v_readfirstlane_b32 s56, v{vt+2}")
        else:
            a(f"ds_add_u32 v{vt}, v{vt+1}")
        a("s_mov_b64 exec, s[58:59]")

    def row_reduce(self, op, v, t):
        a = self.a
        for ctl in ("quad_perm:[1,0,3,2]", "quad_perm:[2,3,0,1]", "row_half_mirror", "row_mirror"):
            a("s_nop 1")
            a(f"{op}_dpp v{v}, v{v}, v{v} {ctl} row_mask:0xf bank_mask:0xf")

    def prologue(self):
        a = self.a
        self.stamp(0)
        if self.stamps:
            for i in range(1, 8):
                a(f"s_mov_b64 s[{80+2*i}:{81+2*i}], 0")
        a(f"s_cmp_ge_u32 s2, {NWG}")
        a("s_cbranch_scc1 L_END")
        a("s_load_dwordx16 s[16:31], s[0:1], 0")
        a("s_load_dwordx8 s[32:39], s[0:1], 64")
        a("s_load_dwordx2 s[40:41], s[0:1], 96")
        a("v_and_b32 v1, 63, v0")
        a("v_lshrrev_b32 v2, 6, v0")
        a("v_lshlrev_b32 v3, 2, v0")
        a(f"v_add_u32 v3, {L_SMALL}, v3")
        a("v_mov_b32 v4, 0")
        a("v_mov_b32 v5, 0xff800000")
        a(f"v_cmp_le_u32 vcc, {D_M}, v0")
        a("v_readfirstlane_b32 s3, v2")
        a("s_nop 0")
        a("v_cndmask_b32 v4, v4, v5, vcc")
        a("ds_write_b32 v3, v4")
        a("v_and_b32 v6, 15, v1")
        a("v_lshrrev_b32 v7, 4, v1")
        a("v_lshlrev_b32 v8, 4, v1")
        a("s_lshr_b32 s4, s2, 5")
        a("s_and_b32 s5, s2, 15")
        a("s_lshl_b32 s6, s4, 4")
        a("s_add_u32 s6, s6, s5")
        a("s_lshl_b32 s6, s6, 20")
        a("s_lshr_b32 s7, s2, 4")
        a("s_and_b32 s7, s7, 1")
        a("s_lshl_b32 s7, s7, 17")
        a("s_add_u32 s6, s6, s7")
        a("s_add_u32 s6, s6, 0xC0000")
        a("s_add_u32 s7, s3, s2")
        a("s_and_b32 s7, s7, 7")
        a("s_lshl_b32 s7, s7, 14")
        a("s_add_u32 s6, s6, s7")
        a("s_add_u32 s7, s6, 4096")
        a("s_add_u32 s8, s6, 8192")
        a("s_add_u32 s9, s6, 12288")
        a("s_and_b32 s10, s3, 7")
        a("s_waitcnt lgkmcnt(0)")
        a("s_barrier")
        a("s_load_dword s42, s[40:41], 0")
        a("s_mov_b32 s44, s40\ns_mov_b32 s45, s41")
        a(f"s_mov_b32 s46, {WS_BYTES}\ns_mov_b32 s47, 0x00020000")
        self.stamp(1)
        a("s_cmp_ge_u32 s3, 8")
        a("s_cbranch_scc1 L_VWAVE")

    def tag_ready(self):
        a = self.a
        a("s_waitcnt lgkmcnt(0)")
        a("s_mul_i32 s43, s42, 0x9E3779B1")
        a("s_add_u32 s43, s43, 0x7F4A7C15")

    def wtile_lane_offsets(self, pitch_sgpr, ve, vo, vt):
        a = self.a
        a(f"v_lshrrev_b32 v{vt}, 3, v1")
        a(f"v_mul_lo_u32 v{ve}, v{vt}, s{pitch_sgpr}")
        a(f"v_and_b32 v{vt}, 1, v7")
        a(f"v_lshlrev_b32 v{vt}, 1, v{vt}")
        a(f"v_and_b32 v{vo}, 7, v1")
        a(f"v_xor_b32 v{vt}, v{vt}, v{vo}")
        a(f"v_lshlrev_b32 v{vo}, 4, v{vt}")
        a(f"v_add_u32 v{ve}, v{ve}, v{vo}")
        a(f"v_xor_b32 v{vo}, 64, v{ve}")

    def tr_addr(self, v0, base_const=None, base_sgpr=None):
        a = self.a
        t = v0 + 3
        a(f"v_lshrrev_b32 v{v0}, 2, v6")
        a(f"v_lshlrev_b32 v{t}, 3, v7")
        a(f"v_add_u32 v{t}, v{t}, v{v0}")
        a(f"v_lshlrev_b32 v{t}, 7, v{t}")
        a(f"v_lshrrev_b32 v{v0}, 1, v{v0}")
        a(f"v_and_b32 v{v0+1}, 1, v7")
        a(f"v_lshlrev_b32 v{v0+1}, 1, v{v0+1}")
        a(f"v_or_b32 v{v0}, v{v0}, v{v0+1}")
        a(f"v_lshlrev_b32 v{v0}, 5, v{v0}")
        a(f"v_add_u32 v{t}, v{t}, v{v0}")
        a(f"v_and_b32 v{v0}, 3, v6")
        a(f"v_lshlrev_b32 v{v0}, 3, v{v0}")
        a(f"v_add_u32 v{v0}, v{t}, v{v0}")
        if base_sgpr is not None:
            a(f"v_add_u32 v{v0}, s{base_sgpr}, v{v0}")
        elif base_const:
            a(f"v_add_u32 v{v0}, {base_const}, v{v0}")
        a(f"v_xor_b32 v{v0+1}, 32, v{v0}")
        a(f"v_xor_b32 v{v0+2}, 64, v{v0}")
        a(f"v_xor_b32 v{v0+3}, 0x60, v{v0}")

    def kwave(self):
        a = self.a
        a("L_KWAVE:")
        a("s_mov_b32 s48, s18\ns_mov_b32 s49, s19\ns_mov_b32 s50, 0x8000000\ns_mov_b32 s51, 0x00020000")
        a(f"s_cmp_lt_u32 s2, {NLIGHT}")
        a("s_cbranch_scc1 L_KLOAD")
        a("s_cmp_ge_u32 s10, 6")
        a("s_cbranch_scc1 L_KLOAD")
        a("s_setprio 3")
        a(f"s_sub_u32 s11, s2, {NLIGHT}")
        a("s_mov_b32 s52, s22\ns_mov_b32 s53, s23\ns_mov_b32 s54, 4718592\ns_mov_b32 s12, 8192\ns_mov_b32 s13, s11")
        a("s_cmp_lt_u32 s11, 64\ns_cbranch_scc1 L_S1SEL")
        a("s_mov_b32 s52, s28\ns_mov_b32 s53, s29\ns_mov_b32 s54, 5308416\ns_mov_b32 s12, 9216\ns_sub_u32 s13, s11, 64")
        a("s_cmp_lt_u32 s11, 136\ns_cbranch_scc1 L_S1SEL")
        a("s_mov_b32 s52, s30\ns_mov_b32 s53, s31\ns_sub_u32 s13, s11, 136")
        a("L_S1SEL:")
        a("s_mov_b32 s55, 0x00020000")
        a("s_lshl_b32 s13, s13, 7")
        a("v_and_b32 v10, 7, v6")
        a("v_mul_u32_u24 v10, 1152, v10")
        a("v_lshlrev_b32 v11, 4, v7")
        a("v_add_u32 v10, v10, v11")
        a("s_mul_i32 s14, s10, 192")
        a("v_add_u32 v10, s14, v10")
        for ks in range(3):
            a(f"global_load_dwordx4 v[{16+4*ks}:{19+4*ks}], v10, s[16:17] offset:{64*ks}")
        self.wtile_lane_offsets(12, 12, 13, 14)
        a("s_mul_i32 s14, s10, 96")
        a("s_mul_i32 s14, s14, s12")
        a("s_add_u32 s14, s14, s13")
        a("s_lshl_b32 s15, s12, 3")
        a("s_mul_i32 s56, s10, 12288")
        for u in range(12):
            a(f"s_add_u32 m0, s56, {L_W + u*1024}")
            a("s_add_u32 s14, s14, s15" if u > 0 else "s_nop 0")
            a(f"buffer_load_dwordx4 v{12 + (u & 1)}, s[52:55], s14 offen nt lds")
        self.tr_addr(28, base_sgpr=56)
        for r in range(16):
            a(f"v_mov_b32 v{32+r}, 0")
        a("s_waitcnt vmcnt(0)")
        self.stamp(2)
        def rd(ks):
            for t in range(4):
                for hf in range(2):
                    r = 48 + (ks*4+t)*4 + hf*2
                    a(f"ds_read_b64_tr_b16 v[{r}:{r+1}], v{28+t} offset:{ks*4096 + hf*512}")
        def mm(ks):
            for t in range(4):
                r = 48 + (ks*4+t)*4
                a(f"v_mfma_f32_16x16x32_bf16 v[{32+4*t}:{35+4*t}], v[{r}:{r+3}], v[{16+4*ks}:{19+4*ks}], v[{32+4*t}:{35+4*t}]")
        rd(0);
        a("s_waitcnt lgkmcnt(7)")
        rd(1)
        a("s_waitcnt lgkmcnt(8)")
        mm(0)
        rd(2)
        a("s_waitcnt lgkmcnt(8)")
        mm(1)
        a("s_waitcnt lgkmcnt(0)")
        mm(2)
        a("v_lshlrev_b32 v10, 3, v7")
        a("v_add_u32 v10, v10, v6")
        a("v_lshlrev_b32 v10, 2, v10")
        a(f"v_add_u32 v10, {sm(D_S1ACC)}, v10")
        a("s_mov_b32 s58, 0x00ff00ff\ns_mov_b32 s59, 0x00ff00ff")
        a("s_nop 3")
        a("s_mov_b64 exec, s[58:59]")
        for t in range(4):
            for r in range(4):
                a(f"ds_add_f32 v10, v{32+4*t+r} offset:{(t*4+r)*128}")
        a("s_mov_b64 exec, -1")
        a("s_waitcnt lgkmcnt(0)")
        self.lds_inc(D_CNT_S1, 10, rtn=True)
        a("s_cmp_eq_u32 s56, 5")
        a("s_cbranch_scc0 L_S1DONE")
        a("v_and_b32 v10, 31, v1")
        a("v_lshrrev_b32 v11, 5, v1")
        a("v_lshlrev_b32 v12, 7, v11")
        a("v_add_u32 v10, v10, v12")
        a("v_lshlrev_b32 v10, 2, v10")
        a(f"v_add_u32 v10, {sm(D_S1ACC)}, v10")
        for i in range(2):
            for r in range(4):
                a(f"ds_read_b32 v{16+4*i+r}, v10 offset:{(r*32 + i*256)*4}")
        a("v_and_b32 v12, 7, v1")
        a(f"s_mov_b32 s14, {S1_PITCH}")
        a("v_mul_lo_u32 v12, v12, s14")
        a("v_bfe_u32 v13, v1, 3, 2")
        a("v_lshlrev_b32 v14, 2, v11")
        a("v_add_u32 v13, v13, v14")
        a("v_lshlrev_b32 v13, 4, v13")
        a("v_add_u32 v12, v12, v13")
        a("s_lshl_b32 s14, s11, 8")
        a(f"s_add_u32 s14, s14, {WS_S1}")
        self.tag_ready()
        a("v_mov_b32 v25, s43\nv_mov_b32 v27, s43\nv_mov_b32 v29, s43\nv_mov_b32 v31, s43")
        a("v_cvt_pk_bf16_f32 v24, v16, v17")
        a("v_cvt_pk_bf16_f32 v26, v18, v19")
        a("v_cvt_pk_bf16_f32 v28, v20, v21")
        a("v_cvt_pk_bf16_f32 v30, v22, v23")
        a("buffer_store_dwordx4 v[24:27], v12, s[44:47], s14 offen sc1")
        a("buffer_store_dwordx4 v[28:31], v12, s[44:47], s14 offen offset:128 sc1")
        a("s_nop 1")
        a("L_S1DONE:")
        self.stamp(3)
        a("L_KLOAD:")
        a("s_setprio 2")
        KB = 48
        for u in range(16):
            a(f"buffer_load_dwordx4 v[{KB+4*u}:{KB+4*u+3}], v8, s[48:51], s{6 + u//4} offen offset:{(u%4)*1024} nt")
        a(f"s_lshl_b32 s56, s10, 12")
        a(f"s_add_u32 s56, s56, {L_KSCR}")
        a("v_xor_b32 v10, v6, v7")
        a("v_lshlrev_b32 v10, 4, v10")
        a("v_lshlrev_b32 v11, 8, v7")
        a("v_add_u32 v12, v10, v11")
        a("v_add_u32 v12, s56, v12")
        a("v_xor_b32 v13, 64, v12\nv_xor_b32 v14, 0x80, v12\nv_xor_b32 v15, 0xc0, v12")
        a("v_lshlrev_b32 v11, 8, v6")
        a("v_add_u32 v16, v10, v11")
        a("v_add_u32 v16, s56, v16")
        a("v_xor_b32 v17, 64, v16\nv_xor_b32 v18, 0x80, v16\nv_xor_b32 v19, 0xc0, v16")
        a("v_bfe_u32 v20, v6, 2, 1")
        a("v_lshlrev_b32 v20, 8, v20")
        a("v_lshlrev_b32 v21, 4, v7")
        a("v_add_u32 v20, v20, v21")
        a(f"v_add_u32 v20, {L_Q}, v20")
        self.tag_ready()
        a("s_cmp_eq_u32 s10, 7")
        a("s_cbranch_scc0 L_QWAIT")
        a(f"s_mul_i32 s14, s4, {S1_PITCH}")
        a("s_lshl_b32 s15, s5, 10")
        a("s_add_u32 s14, s14, s15")
        a(f"s_add_u32 s14, s14, {WS_S1}")
        a("s_mov_b32 s57, 0")
        a("L_QPOLL:")
        a("buffer_load_dwordx4 v[24:27], v8, s[44:47], s14 offen sc1")
        a("s_add_u32 s57, s57, 1")
        a("s_waitcnt vmcnt(0)")
        a("v_cmp_ne_u32 vcc, s43, v25")
        a("v_cmp_ne_u32 s[58:59], s43, v27")
        a("s_or_b64 vcc, vcc, s[58:59]")
        a("s_cbranch_vccz L_QGOT")
        a("s_cmp_lt_u32 s57, 0x10000")
        a("s_cbranch_scc1 L_QPOLL")
        a("L_QGOT:")
        a("v_lshlrev_b32 v22, 3, v1")
        a(f"v_add_u32 v22, {L_Q}, v22")
        a("ds_write2_b32 v22, v24, v26 offset0:0 offset1:1")
        a("s_waitcnt lgkmcnt(0)")
        self.lds_inc(D_FLAG_Q, 22)
        a("L_QWAIT:")
        self.lds_wait_ge(D_FLAG_Q, 1, 22)
        self.stamp(4)
        for j in range(4):
            a(f"ds_read_b128 v[{32+4*j}:{35+4*j}], v20 offset:{64*j}")
        for r in range(16):
            a(f"v_mov_b32 v{112+r}, 0")
        a("s_waitcnt vmcnt(0)")
        self.stamp(5)
        def tile_ops(t):
            Gk, tp = t >> 1, t & 1
            for aa in range(4):
                u = 8*Gk + 2*aa + tp
                a(f"ds_write_b128 v{12+aa}, v[{KB+4*u}:{KB+4*u+3}] offset:{aa*1024}")
            for j in range(4):
                u = 8*Gk + 2*j + tp
                a(f"ds_read_b128 v[{KB+4*u}:{KB+4*u+3}], v{16+j}")
        def tile_mm(t):
            Gk, tp = t >> 1, t & 1
            for j in range(4):
                u = 8*Gk + 2*j + tp
                a(f"v_mfma_f32_16x16x32_bf16 v[{112+4*t}:{115+4*t}], v[{32+4*j}:{35+4*j}], v[{KB+4*u}:{KB+4*u+3}], v[{112+4*t}:{115+4*t}]")
        tile_ops(0)
        a("s_waitcnt lgkmcnt(6)")
        tile_ops(1)
        a("s_waitcnt lgkmcnt(8)")
        tile_mm(0)
        tile_ops(2)
        a("s_waitcnt lgkmcnt(8)")
        tile_mm(1)
        tile_ops(3)
        a("s_waitcnt lgkmcnt(8)")
        tile_mm(2)
        a("s_waitcnt lgkmcnt(0)")
        tile_mm(3)
        a("s_nop 7")
        a("v_max_f32 v24, v112, v116")
        a("s_nop 3")
        a("v_max3_f32 v24, v24, v120, v124")
        self.row_reduce("v_max_f32", 24, 25)
        a("v_and_b32 v25, 1, v7")
        a("v_lshlrev_b32 v25, 2, v25")
        a(f"v_add_u32 v25, {sm(D_M)}, v25")
        a("s_mov_b32 s58, 0x00010001\ns_mov_b32 s59, 0")
        a("s_mov_b64 exec, s[58:59]")
        a("ds_max_f32 v25, v24")
        a("s_mov_b64 exec, -1")
        a("s_waitcnt lgkmcnt(0)")
        self.lds_inc(D_CNT_M, 26)
        self.lds_wait_ge(D_CNT_M, 8, 26)
        a("ds_read_b32 v24, v25")
        a(f"s_mov_b32 s14, 0x{f32bits(SCALE_LOG2E):08x}")
        a("s_waitcnt lgkmcnt(0)")
        a("v_mul_f32 v24, s14, v24")
        for t in range(4):
            a(f"v_fma_f32 v{28+t}, v{112+4*t}, s14, -v24")
        for t in range(4):
            a(f"v_exp_f32 v{28+t}, v{28+t}")
        a("s_nop 0")
        a("v_add_f32 v26, v28, v29")
        a("v_add_f32 v27, v30, v31")
        a("v_add_f32 v26, v26, v27")
        self.row_reduce("v_add_f32", 26, 27)
        a("v_cvt_pk_bf16_f32 v28, v28, v29")
        a("v_cvt_pk_bf16_f32 v29, v30, v31")
        a("v_and_b32 v27, 1, v7")
        a("v_lshlrev_b32 v27, 2, v27")
        a(f"v_add_u32 v27, {sm(D_L)}, v27")
        a("s_mov_b32 s58, 0x00010001\ns_mov_b32 s59, 0")
        a("s_mov_b64 exec, s[58:59]")
        a("ds_add_f32 v27, v26")
        a("s_mov_b64 exec, -1")
        a("v_and_b32 v30, 3, v6")
        a("v_lshlrev_b32 v30, 2, v30")
        a("v_lshrrev_b32 v31, 2, v6")
        a("v_add_u32 v30, v30, v31")
        a("v_lshlrev_b32 v30, 2, v30")
        a("v_lshlrev_b32 v31, 7, v7")
        a("v_add_u32 v30, v30, v31")
        a("s_lshl_b32 s14, s10, 8")
        a(f"s_add_u32 s14, s14, {L_P}")
        a("v_add_u32 v30, s14, v30")
        a("s_mov_b32 s58, -1\ns_mov_b32 s59, 0")
        a("s_mov_b64 exec, s[58:59]")
        a("ds_write_b32 v30, v28")
        a("ds_write_b32 v30, v29 offset:64")
        a("s_mov_b64 exec, -1")
        a("s_waitcnt lgkmcnt(0)")
        a("s_lshl_b32 s14, s10, 2")
        a(f"s_add_u32 s14, s14, {sm(D_FLAG_P)}")
        a("v_mov_b32 v30, s14\nv_mov_b32 v31, 1")
        a("s_mov_b64 exec, 1")
        a("ds_write_b32 v30, v31")
        a("s_mov_b64 exec, -1")
        self.stamp(6)
        a("s_branch L_KPOST")

    def vwave(self):
        a = self.a
        a("L_VWAVE:")
        a("s_setprio 1")
        a("s_mov_b32 s48, s20\ns_mov_b32 s49, s21\ns_mov_b32 s50, 0x8000000\ns_mov_b32 s51, 0x00020000")
        VB = 48
        for u in range(16):
            a(f"buffer_load_dwordx4 v[{VB+4*u}:{VB+4*u+3}], v8, s[48:51], s{6 + u//4} offen offset:{(u%4)*1024} nt")
        self.stamp(2)
        a("s_lshl_b32 s14, s10, 8")
        a(f"s_add_u32 s14, s14, {L_P}")
        a("v_and_b32 v10, 1, v6")
        a("v_lshlrev_b32 v10, 7, v10")
        a("v_lshlrev_b32 v11, 4, v7")
        a("v_add_u32 v10, v10, v11")
        a("v_add_u32 v10, s14, v10")
        a(f"v_mov_b32 v11, {sm(D_ZERO)}")
        for gp in range(4):
            a("v_and_b32 v16, 14, v6")
            a(f"v_cmp_eq_u32 vcc, {4*gp}, v16")
            a("s_nop 1")
            a(f"v_cndmask_b32 v{12+gp}, v11, v10, vcc")
        a("v_lshlrev_b32 v16, 3, v6")
        a("v_add_u32 v16, v16, v7")
        a("v_lshlrev_b32 v16, 2, v16")
        a(f"v_add_u32 v16, {sm(D_OACC)}, v16")
        a("s_mov_b32 s12, 0x05040100\ns_mov_b32 s13, 0x07060302")
        for r in range(8):
            a(f"v_mov_b32 v{20+r}, 0")
        self.tag_ready()
        lab = a.label("L_pw")
        a("s_lshl_b32 s14, s10, 2")
        a(f"s_add_u32 s14, s14, {sm(D_FLAG_P)}")
        a("v_mov_b32 v18, s14")
        a("s_mov_b32 s57, 0")
        a(f"{lab}:")
        a("ds_read_b32 v17, v18")
        a("s_waitcnt lgkmcnt(0)")
        a("v_readfirstlane_b32 s56, v17")
        a("s_add_u32 s57, s57, 1")
        a("s_cmp_ge_u32 s56, 1")
        a(f"s_cbranch_scc1 {lab}_d")
        a("s_sleep 2")
        a("s_cmp_lt_u32 s57, 0x40000")
        a(f"s_cbranch_scc1 {lab}")
        a(f"{lab}_d:")
        self.stamp(3)
        for gp in range(4):
            a(f"ds_read_b128 v[{28+4*gp}:{31+4*gp}], v{12+gp}")
        a("s_waitcnt vmcnt(8)")
        def L(G, i, d): return VB + 32*G + 4*i + d
        for ph in range(2):
            for dd in range(2):
                d = 2*ph + dd
                for e in range(2):
                    for rp in range(4):
                        a(f"v_perm_b32 v{112+4*(2*dd+e)+rp}, v{L(0,2*rp+1,d)}, v{L(0,2*rp,d)}, s{12+e}")
            if ph == 0:
                a("s_waitcnt lgkmcnt(0)")
            else:
                a("s_nop 1")
            for jj in range(4):
                j = 4*ph + jj
                a(f"v_mfma_f32_16x16x32_bf16 v[{20+4*ph}:{23+4*ph}], v[{28+4*jj}:{31+4*jj}], v[{112+4*jj}:{115+4*jj}], v[{20+4*ph}:{23+4*ph}]")
        a("s_nop 7")
        for gp in range(4):
            a(f"ds_read_b128 v[{28+4*gp}:{31+4*gp}], v{12+gp} offset:64")
        for rp in range(4):
            a(f"s_waitcnt vmcnt({6 - 2*rp})")
            for d in range(4):
                for e in range(2):
                    a(f"v_perm_b32 v{VB+4*(2*d+e)+rp}, v{L(1,2*rp+1,d)}, v{L(1,2*rp,d)}, s{12+e}")
        self.stamp(4)
        a("s_waitcnt lgkmcnt(0)")
        for jj in range(4):
            for ph in range(2):
                j = 4*ph + jj
                a(f"v_mfma_f32_16x16x32_bf16 v[{20+4*ph}:{23+4*ph}], v[{28+4*jj}:{31+4*jj}], v[{VB+4*j}:{VB+4*j+3}], v[{20+4*ph}:{23+4*ph}]")
        a("s_nop 7")
        for ph in range(2):
            for r in range(2):
                a(f"ds_add_f32 v16, v{20+4*ph+r} offset:{r*512 + ph*16}")
        a("s_waitcnt lgkmcnt(0)")
        self.lds_inc(D_CNT_O, 28, rtn=True)
        a("s_cmp_eq_u32 s56, 7")
        a("s_cbranch_scc0 L_VPOST")
        a(f"v_add_u32 v28, {sm(D_OACC)}, v8")
        a("ds_read_b128 v[32:35], v28")
        a("v_lshrrev_b32 v29, 5, v1")
        a("v_lshlrev_b32 v29, 2, v29")
        a(f"v_add_u32 v30, {sm(D_M)}, v29")
        a(f"v_add_u32 v31, {sm(D_L)}, v29")
        a("ds_read_b32 v44, v30")
        a("ds_read_b32 v46, v31")
        a("s_lshl_b32 s14, s2, 12")
        a(f"s_add_u32 s14, s14, {WS_O}")
        a("v_lshlrev_b32 v28, 5, v1")
        a("v_mov_b32 v37, s43\nv_mov_b32 v39, s43\nv_mov_b32 v41, s43\nv_mov_b32 v43, s43\nv_mov_b32 v45, s43\nv_mov_b32 v47, s43")
        a(f"s_mov_b32 s15, 0x{f32bits(SCALE_LOG2E):08x}")
        a("s_waitcnt lgkmcnt(0)")
        a("v_mov_b32 v36, v32\nv_mov_b32 v38, v33\nv_mov_b32 v40, v34\nv_mov_b32 v42, v35")
        a("v_mul_f32 v44, s15, v44")
        a("buffer_store_dwordx4 v[36:39], v28, s[44:47], s14 offen sc1")
        a("buffer_store_dwordx4 v[40:43], v28, s[44:47], s14 offen offset:16 sc1")
        a("v_lshlrev_b32 v29, 2, v29")
        a("s_mov_b32 s58, 1\ns_mov_b32 s59, 1")
        a("s_mov_b64 exec, s[58:59]")
        a("buffer_store_dwordx4 v[44:47], v29, s[44:47], s14 offen offset:2048 sc1")
        a("s_mov_b64 exec, -1")
        self.stamp(5)
        a("s_branch L_VPOST")

    def final_mfma(self, nsub_label):
        pass

    def post(self):
        a = self.a
        a("L_KPOST:")
        a("s_setprio 0")
        a(f"s_cmp_lt_u32 s2, {NLIGHT}")
        a("s_cbranch_scc1 L_KPOST_LIGHT")
        a(f"s_sub_u32 s11, s2, {NLIGHT}")
        a("s_cmp_ge_u32 s11, 162")
        a("s_cbranch_scc1 L_FIN")
        a("s_mul_i32 s12, s11, 7282")
        a("s_lshr_b32 s12, s12, 16")
        a("s_mul_i32 s13, s12, 9")
        a("s_sub_u32 s13, s11, s13")
        a(f"s_mul_i32 s14, s10, {S1_PITCH}")
        a("s_lshl_b32 s15, s12, 10")
        a("s_add_u32 s14, s14, s15")
        a(f"s_add_u32 s14, s14, {WS_S1 + 1024*16}")
        a(f"s_add_u32 s15, s14, {1152*16}")
        a("s_mov_b32 s57, 0")
        a("L_HPOLL:")
        a("buffer_load_dwordx4 v[24:27], v8, s[44:47], s14 offen sc1")
        a("buffer_load_dwordx4 v[28:31], v8, s[44:47], s15 offen sc1")
        a("s_add_u32 s57, s57, 1")
        a("s_waitcnt vmcnt(0)")
        a("v_min3_u32 v32, v25, v27, v29\nv_max3_u32 v33, v25, v27, v29")
        a("v_min_u32 v32, v32, v31\nv_max_u32 v33, v33, v31")
        a("v_cmp_ne_u32 vcc, s43, v32")
        a("v_cmp_ne_u32 s[58:59], s43, v33")
        a("s_or_b64 vcc, vcc, s[58:59]")
        a("s_cbranch_vccz L_HGOT")
        a("s_cmp_lt_u32 s57, 0x10000")
        a("s_cbranch_scc1 L_HPOLL")
        a("L_HGOT:")
        a("s_mov_b32 s52, s32\ns_mov_b32 s53, s33\ns_mov_b32 s54, 5308416\ns_mov_b32 s55, 0x00020000")
        a("s_mov_b32 s56, 1152")
        self.wtile_lane_offsets(56, 12, 13, 14)
        a("s_lshl_b32 s14, s12, 8")
        a("s_lshl_b32 s15, s10, 5")
        a("s_add_u32 s14, s14, s15")
        a("s_mul_i32 s14, s14, 1152")
        a("s_lshl_b32 s15, s13, 7")
        a("s_add_u32 s14, s14, s15")
        a("s_lshl_b32 s15, s10, 12")
        for u in range(4):
            a(f"s_add_u32 m0, s15, {L_W + u*1024}")
            a(f"s_add_u32 s14, s14, {8*1152}" if u > 0 else "s_nop 0")
            a(f"buffer_load_dwordx4 v{12 + (u & 1)}, s[52:55], s14 offen nt lds")
        a("v_lshlrev_b32 v32, 16, v24\nv_and_b32 v33, 0xffff0000, v24\nv_lshlrev_b32 v34, 16, v26\nv_and_b32 v35, 0xffff0000, v26")
        a("v_lshlrev_b32 v36, 16, v28\nv_and_b32 v37, 0xffff0000, v28\nv_lshlrev_b32 v38, 16, v30\nv_and_b32 v39, 0xffff0000, v30")
        a("s_mov_b32 s14, 0xbfb8aa3b")
        for i in range(4):
            a(f"v_mul_f32 v{40+i}, s14, v{32+i}")
        for i in range(4):
            a(f"v_exp_f32 v{40+i}, v{40+i}")
        a("s_nop 0")
        for i in range(4):
            a(f"v_add_f32 v{40+i}, 1.0, v{40+i}")
        for i in range(4):
            a(f"v_rcp_f32 v{40+i}, v{40+i}")
        a("s_nop 0")
        for i in range(4):
            a(f"v_mul_f32 v{40+i}, v{32+i}, v{40+i}")
        a("v_cvt_pk_bf16_f32 v44, v40, v41\nv_cvt_pk_bf16_f32 v45, v42, v43")
        a("v_lshlrev_b32 v40, 16, v44\nv_and_b32 v41, 0xffff0000, v44\nv_lshlrev_b32 v42, 16, v45\nv_and_b32 v43, 0xffff0000, v45")
        for i in range(4):
            a(f"v_mul_f32 v{40+i}, v{40+i}, v{36+i}")
        a("v_cvt_pk_bf16_f32 v44, v40, v41\nv_cvt_pk_bf16_f32 v45, v42, v43")
        a(f"s_mul_i32 s14, s10, {BM_PITCH}")
        a(f"s_add_u32 s14, s14, {L_BM}")
        a("v_lshlrev_b32 v46, 3, v1")
        a("v_add_u32 v46, s14, v46")
        a("ds_write_b64 v46, v[44:45]")
        a("s_waitcnt vmcnt(0) lgkmcnt(0)")
        self.lds_inc(D_CNT_W, 32)
        a("s_cmp_ge_u32 s10, 4")
        a("s_cbranch_scc1 L_HDONE")
        self.lds_wait_ge(D_CNT_W, 8, 32)
        a("s_add_u32 s12, s12, 16")
        a("s_lshl_b32 s13, s13, 6")
        a("s_mov_b32 s15, 0")
        a("s_mov_b32 s14, s10")
        self.tile_mfma_and_publish()
        a("L_HDONE:")
        a("s_cmp_eq_u32 s10, 7")
        a("s_cbranch_scc0 L_FIN")
        a("s_cmp_ge_u32 s11, 144")
        a("s_cbranch_scc1 L_FIN")
        self.reducer()
        a("s_branch L_FIN")

        a("L_KPOST_LIGHT:")
        a("s_and_b32 s12, s2, 15")
        a("s_lshr_b32 s13, s2, 4")
        a("s_mov_b32 s52, s24\ns_mov_b32 s53, s25\ns_mov_b32 s54, 4718592\ns_mov_b32 s55, 0x00020000")
        a("s_mov_b32 s56, 1152")
        self.wtile_lane_offsets(56, 12, 13, 14)
        a("s_lshl_b32 s14, s12, 8")
        a("s_lshl_b32 s15, s10, 5")
        a("s_add_u32 s14, s14, s15")
        a("s_mul_i32 s14, s14, 1152")
        a("s_mul_i32 s15, s13, 384")
        a("s_add_u32 s14, s14, s15")
        a("s_lshl_b32 s15, s10, 12")
        for u in range(4):
            for st in range(3):
                a(f"s_add_u32 m0, s15, {L_W + st*32768 + u*1024}")
                a(f"s_add_u32 s56, s14, {st*128}")
                a(f"buffer_load_dwordx4 v{12 + (u & 1)}, s[52:55], s56 offen nt lds")
            a(f"s_add_u32 s14, s14, {8*1152}")
        a("L_VPOST_LIGHT:")
        a("s_lshr_b32 s4, s3, 1")
        a("s_and_b32 s5, s3, 1")
        a("s_and_b32 s12, s2, 15")
        a("s_lshl_b32 s14, s4, 5")
        a("s_add_u32 s14, s14, s12")
        a("s_lshl_b32 s14, s14, 12")
        a(f"s_add_u32 s14, s14, {WS_O}")
        a("s_lshl_b32 s15, s5, 10")
        a("s_add_u32 s6, s14, s15")
        a("s_add_u32 s7, s6, 0x10000")
        a("s_lshl_b32 s15, s5, 4")
        a("s_add_u32 s8, s14, s15")
        a("s_add_u32 s8, s8, 2048")
        a("s_add_u32 s9, s8, 0x10000")
        a("v_mov_b32 v10, 0")
        a("s_mov_b32 s57, 0")
        a("L_OPOLL:")
        a("buffer_load_dwordx4 v[24:27], v8, s[44:47], s6 offen sc1")
        a("buffer_load_dwordx4 v[28:31], v8, s[44:47], s7 offen sc1")
        a("buffer_load_dwordx4 v[32:35], v10, s[44:47], s8 offen sc1")
        a("buffer_load_dwordx4 v[36:39], v10, s[44:47], s9 offen sc1")
        a("s_add_u32 s57, s57, 1")
        a("s_waitcnt vmcnt(0)")
        a("v_min3_u32 v40, v25, v27, v29\nv_max3_u32 v41, v25, v27, v29")
        a("v_min3_u32 v40, v40, v31, v33\nv_max3_u32 v41, v41, v31, v33")
        a("v_min3_u32 v40, v40, v35, v37\nv_max3_u32 v41, v41, v35, v37")
        a("v_min_u32 v40, v40, v39\nv_max_u32 v41, v41, v39")
        a("v_cmp_ne_u32 vcc, s43, v40")
        a("v_cmp_ne_u32 s[58:59], s43, v41")
        a("s_or_b64 vcc, vcc, s[58:59]")
        a("s_cbranch_vccz L_OGOT")
        a("s_cmp_lt_u32 s57, 0x10000")
        a("s_cbranch_scc1 L_OPOLL")
        a("L_OGOT:")
        self.stamp(6)
        a("v_max_f32 v40, v32, v36")
        a("v_sub_f32 v32, v32, v40")
        a("v_sub_f32 v36, v36, v40")
        a("v_exp_f32 v32, v32")
        a("v_exp_f32 v36, v36")
        a("s_nop 0")
        a("v_mul_f32 v40, v32, v34")
        a("v_fma_f32 v40, v36, v38, v40")
        a("v_rcp_f32 v40, v40")
        a("s_nop 0")
        a("v_mul_f32 v32, v32, v40")
        a("v_mul_f32 v36, v36, v40")
        a("v_mul_f32 v24, v24, v32")
        a("v_mul_f32 v26, v26, v32")
        a("v_fma_f32 v24, v28, v36, v24")
        a("v_fma_f32 v26, v30, v36, v26")
        a("v_cvt_pk_bf16_f32 v24, v24, v26")
        a(f"s_mul_i32 s14, s4, {BM_PITCH}")
        a("s_lshl_b32 s15, s5, 8")
        a("s_add_u32 s14, s14, s15")
        a(f"s_add_u32 s14, s14, {L_BM}")
        a("v_lshlrev_b32 v25, 2, v1")
        a("v_add_u32 v25, s14, v25")
        a("ds_write_b32 v25, v24")
        a("s_waitcnt vmcnt(0) lgkmcnt(0)")
        a("s_barrier")
        a("s_cmp_ge_u32 s3, 12")
        a("s_cbranch_scc1 L_FIN")
        a("s_and_b32 s12, s2, 15")
        a("s_lshr_b32 s13, s2, 4")
        a("s_mul_i32 s13, s13, 192")
        a("s_lshr_b32 s15, s3, 2")
        a("s_lshl_b32 s14, s15, 6")
        a("s_add_u32 s13, s13, s14")
        a("s_lshl_b32 s15, s15, 15")
        a("s_and_b32 s14, s3, 3")
        self.tile_mfma_and_publish(uniq="B")
        self.stamp(7)
        a("s_branch L_FIN")
        a("L_VPOST:")
        a(f"s_cmp_lt_u32 s2, {NLIGHT}")
        a("s_cbranch_scc1 L_VPOST_LIGHT")
        a("s_branch L_FIN")

    def tile_mfma_and_publish(self, uniq="A"):
        a = self.a
        self.tr_addr(28, base_sgpr=15)
        a("s_lshl_b32 s56, s14, 5")
        a("v_xor_b32 v28, s56, v28")
        a("v_and_b32 v29, 7, v6")
        a(f"v_mul_u32_u24 v29, {BM_PITCH}, v29")
        a("v_lshlrev_b32 v30, 4, v7")
        a("v_add_u32 v29, v29, v30")
        a(f"v_add_u32 v29, {L_BM}, v29")
        for r in range(4):
            a(f"v_mov_b32 v{32+r}, 0")
        for ks in range(8):
            a(f"ds_read_b64_tr_b16 v[{48+4*ks}:{49+4*ks}], v28 offset:{ks*4096}")
            a(f"ds_read_b64_tr_b16 v[{50+4*ks}:{51+4*ks}], v28 offset:{ks*4096+512}")
            a(f"ds_read_b128 v[{80+4*ks}:{83+4*ks}], v29 offset:{ks*64}")
            if ks >= 3:
                a("s_waitcnt lgkmcnt(9)")
                k2 = ks - 3
                a(f"v_mfma_f32_16x16x32_bf16 v[32:35], v[{48+4*k2}:{51+4*k2}], v[{80+4*k2}:{83+4*k2}], v[32:35]")
        for k2 in range(5, 8):
            a(f"s_waitcnt lgkmcnt({3*(7-k2)})")
            a(f"v_mfma_f32_16x16x32_bf16 v[32:35], v[{48+4*k2}:{51+4*k2}], v[{80+4*k2}:{83+4*k2}], v[32:35]")
        a("v_and_b32 v29, 7, v6")
        a(f"v_mul_u32_u24 v29, {PART_PITCH}, v29")
        a("v_lshlrev_b32 v30, 5, v7")
        a("v_add_u32 v29, v29, v30")
        a(f"s_mul_i32 s56, s12, {8*PART_PITCH}")
        a("s_lshl_b32 s57, s14, 4")
        a("s_add_u32 s57, s57, s13")
        a("s_lshl_b32 s57, s57, 3")
        a("s_add_u32 s56, s56, s57")
        a(f"s_add_u32 s56, s56, {WS_PART}")
        a("v_mov_b32 v37, s43\nv_mov_b32 v39, s43\nv_mov_b32 v41, s43\nv_mov_b32 v43, s43")
        a("s_nop 1")
        a("v_mov_b32 v36, v32\nv_mov_b32 v38, v33\nv_mov_b32 v40, v34\nv_mov_b32 v42, v35")
        a("s_mov_b32 s58, 0x00ff00ff\ns_mov_b32 s59, 0x00ff00ff")
        a("s_mov_b64 exec, s[58:59]")
        a("buffer_store_dwordx4 v[36:39], v29, s[44:47], s56 offen sc1")
        a("buffer_store_dwordx4 v[40:43], v29, s[44:47], s56 offen offset:16 sc1")
        a("s_mov_b64 exec, -1")

    def reducer(self):
        a = self.a
        a("s_mul_i32 s12, s11, 3641")
        a("s_lshr_b32 s12, s12, 16")
        a("s_mul_i32 s13, s12, 18")
        a("s_sub_u32 s13, s11, s13")
        a("v_lshlrev_b32 v10, 1, v1")
        a("s_mul_i32 s14, s12, 1152")
        a("v_add_u32 v11, s14, v10")
        for i in range(9):
            a(f"global_load_ushort v{24+i}, v11, s[16:17] offset:{128*i}")
            a(f"global_load_ushort v{36+i}, v10, s[34:35] offset:{128*i}")
        a("s_waitcnt vmcnt(0)")
        for i in range(9):
            a(f"v_lshlrev_b32 v{24+i}, 16, v{24+i}")
            a(f"v_lshlrev_b32 v{36+i}, 16, v{36+i}")
        for i in range(9):
            a(f"v_mul_f32 v{24+i}, v{24+i}, v{36+i}")
        for i in range(0, 8, 2):
            a(f"v_cvt_pk_bf16_f32 v{36+i}, v{24+i}, v{25+i}")
        a("v_cvt_pk_bf16_f32 v44, v32, v32")
        a("v_mov_b32 v46, 0")
        for i in range(0, 8, 2):
            a(f"v_lshlrev_b32 v24, 16, v{36+i}\nv_and_b32 v25, 0xffff0000, v{36+i}")
            a("v_add_f32 v46, v46, v24\nv_add_f32 v46, v46, v25")
        a("v_lshlrev_b32 v24, 16, v44\nv_add_f32 v46, v46, v24")
        self.row_reduce("v_add_f32", 46, 47)
        a("s_nop 1")
        a("v_readlane_b32 s14, v46, 0\nv_readlane_b32 s15, v46, 16\nv_readlane_b32 s56, v46, 32\nv_readlane_b32 s57, v46, 48")
        a("s_nop 1")
        a("v_mov_b32 v46, s14\nv_add_f32 v46, s15, v46\nv_add_f32 v46, s56, v46\nv_add_f32 v46, s57, v46")
        a("v_cvt_pk_bf16_f32 v46, v46, v46")
        a("v_lshlrev_b32 v46, 16, v46")
        a("v_mul_f32 v46, 0xbfb8aa3b, v46")
        a("v_exp_f32 v46, v46")
        a("s_nop 0")
        a("v_add_f32 v46, 1.0, v46")
        a("v_rcp_f32 v46, v46")
        a("s_nop 0")
        a("v_cvt_pk_bf16_f32 v46, v46, v46")
        a("v_lshlrev_b32 v46, 16, v46")
        a("v_sub_f32 v47, 1.0, v46")
        a("v_cvt_pk_bf16_f32 v47, v47, v47")
        a("v_lshlrev_b32 v47, 16, v47")
        a(f"v_mul_u32_u24 v10, {8*PART_PITCH}, v7")
        a("v_lshlrev_b32 v11, 4, v6")
        a("v_add_u32 v10, v10, v11")
        a(f"s_mul_i32 s14, s12, {PART_PITCH}")
        a("s_lshl_b32 s15, s13, 8")
        a("s_add_u32 s14, s14, s15")
        a(f"s_add_u32 s14, s14, {WS_PART}")
        for u in range(9):
            a(f"s_add_u32 s{60+u}, s14, {u*4*8*PART_PITCH}")
        a("v_mov_b32 v80, 0\nv_mov_b32 v81, s43\nv_mov_b32 v82, 0\nv_mov_b32 v83, s43")
        a("s_mov_b32 s57, 0")
        a("L_RPOLL:")
        for u in range(8):
            a(f"buffer_load_dwordx4 v[{48+4*u}:{51+4*u}], v10, s[44:47], s{60+u} offen sc1")
        a("s_mov_b32 s58, -1\ns_mov_b32 s59, 0")
        a("s_mov_b64 exec, s[58:59]")
        a("buffer_load_dwordx4 v[80:83], v10, s[44:47], s68 offen sc1")
        a("s_mov_b64 exec, -1")
        a("s_add_u32 s57, s57, 1")
        a("s_waitcnt vmcnt(0)")
        a("v_min3_u32 v24, v49, v51, v53\nv_max3_u32 v25, v49, v51, v53")
        tags = [55] + [x for u in range(2, 9) for x in (49+4*u, 51+4*u)]
        i = 0
        while i < len(tags):
            if i + 1 < len(tags):
                a(f"v_min3_u32 v24, v24, v{tags[i]}, v{tags[i+1]}\nv_max3_u32 v25, v25, v{tags[i]}, v{tags[i+1]}")
                i += 2
            else:
                a(f"v_min_u32 v24, v24, v{tags[i]}\nv_max_u32 v25, v25, v{tags[i]}")
                i += 1
        a("v_cmp_ne_u32 vcc, s43, v24")
        a("v_cmp_ne_u32 s[58:59], s43, v25")
        a("s_or_b64 vcc, vcc, s[58:59]")
        a("s_cbranch_vccz L_RGOT")
        a("s_cmp_lt_u32 s57, 0x10000")
        a("s_cbranch_scc1 L_RPOLL")
        a("L_RGOT:")
        self.stamp(6)
        a("v_add_f32 v26, v48, v52\nv_add_f32 v27, v50, v54")
        a("v_add_f32 v30, v56, v60\nv_add_f32 v31, v58, v62")
        a("v_add_f32 v28, v64, v68\nv_add_f32 v29, v66, v70")
        a("v_add_f32 v32, v72, v76\nv_add_f32 v33, v74, v78")
        a("v_add_f32 v26, v26, v30\nv_add_f32 v27, v27, v31")
        a("v_add_f32 v28, v28, v32\nv_add_f32 v29, v29, v33")
        a("v_add_f32 v28, v28, v80\nv_add_f32 v29, v29, v82")
        for swap in ("v_permlane32_swap_b32", "v_permlane16_swap_b32"):
            for i in range(4):
                a(f"v_mov_b32 v{30+i}, v{26+i}")
            a("s_nop 1")
            for i in range(4):
                a(f"{swap} v{26+i}, v{30+i}")
            a("s_nop 1")
            for i in range(4):
                a(f"v_add_f32 v{26+i}, v{26+i}, v{30+i}")
        a("v_cvt_pk_bf16_f32 v30, v26, v27\nv_cvt_pk_bf16_f32 v31, v28, v29")
        a("v_lshlrev_b32 v26, 16, v30\nv_and_b32 v27, 0xffff0000, v30\nv_lshlrev_b32 v28, 16, v31\nv_and_b32 v29, 0xffff0000, v31")
        a("v_mul_f32 v26, v46, v26\nv_mul_f32 v27, v46, v27\nv_mul_f32 v28, v47, v28\nv_mul_f32 v29, v47, v29")
        a("v_cvt_pk_bf16_f32 v30, v26, v27\nv_cvt_pk_bf16_f32 v31, v28, v29")
        a("v_lshlrev_b32 v26, 16, v30\nv_and_b32 v27, 0xffff0000, v30\nv_lshlrev_b32 v28, 16, v31\nv_and_b32 v29, 0xffff0000, v31")
        a("v_add_f32 v26, v26, v28\nv_add_f32 v27, v27, v29")
        a("v_cvt_pk_bf16_f32 v30, v26, v27")
        a("s_mul_i32 s14, s12, 1152")
        a("s_lshl_b32 s15, s13, 6")
        a("s_add_u32 s14, s14, s15")
        a("v_lshlrev_b32 v10, 2, v6")
        a("v_add_u32 v10, s14, v10")
        a("s_mov_b32 s52, s36\ns_mov_b32 s53, s37\ns_mov_b32 s54, 9216\ns_mov_b32 s55, 0x00020000")
        a("s_mov_b64 exec, 0xffff")
        a("buffer_store_dword v30, v10, s[52:55], 0 offen")
        a("s_cmp_eq_u32 s11, 0")
        a("s_cbranch_scc0 L_RDONE")
        a("s_mov_b64 exec, 1")
        a("v_mov_b32 v10, 0\nv_mov_b32 v11, s43")
        a("buffer_store_dword v11, v10, s[44:47], 0 offen sc1")
        a("L_RDONE:")
        a("s_mov_b64 exec, -1")
        self.stamp(7)

    def epilogue(self):
        a = self.a
        a("L_FIN:")
        if self.stamps:
            a("s_waitcnt lgkmcnt(0)")
            a("s_lshl_b32 s14, s2, 4")
            a("s_add_u32 s14, s14, s3")
            a("s_lshl_b32 s14, s14, 6")
            a(f"s_add_u32 s14, s14, {STAMP_OFF}")
            a("s_add_u32 s40, s40, s14\ns_addc_u32 s41, s41, 0")
            a("v_mov_b32 v1, 0")
            for i in range(8):
                a(f"v_mov_b32 v2, s{80+2*i}\nv_mov_b32 v3, s{81+2*i}")
                a(f"global_store_dwordx2 v1, v[2:3], s[40:41] offset:{8*i}")
        a("L_END:")
        a("s_endpgm")

    def build(self):
        if self.stamps:
            pass
        self.prologue()
        self.kwave()
        self.vwave()
        self.post()
        self.epilogue()
        return wrap(self.a.text(), NWG, 1024, LDS_ALLOC, 128, sgpr=102)

if __name__ == "__main__":
    stamps = "--stamps" in sys.argv
    out = [x for x in sys.argv[1:] if not x.startswith("--")]
    txt = Gen(stamps=stamps).build()
    open(out[0] if out else "k.s", "w").write(txt)
```

```python
import sys
from asmlib import *

NWG = 256
NLIGHT = 48
L_W = 0
L_KSCR = 98304
L_SMALL = 131072
L_S1SLOT = 73728
L_OSLOT = L_KSCR
L_Q = L_SMALL + 4096
L_P = L_Q + 512
L_BM = L_P + 2048
BM_PITCH = 528
LDS_BYTES = L_BM + 8 * BM_PITCH
LDS_ALLOC = 143360
D_S1ACC = 0
D_OACC = 512
D_L = 768
D_CNT_S1 = 776
D_FLAG_Q = 777
D_CNT_M = 778
D_CNT_O = 779
D_CNT_W = 780
D_CNT_HA = 781
D_CNT_VISS = 782
D_FLAG_S1P = 783
D_FLAG_P = 784
D_ZERO = 800
D_M = 1022
def sm(d): return L_SMALL + 4 * d
WS_EPOCH = 0
WS_S1 = 0x10000
S1_PITCH = 3328 * 16
WS_O = 0x100000
WS_PART = 0x200000
PART_PITCH = 576 * 8
WS_BYTES = 0x400000
STAMP_OFF = 0x10000000
SCALE_LOG2E = 0.08838834764831845 * 1.4426950408889634

import struct
def f32bits(x): return struct.unpack("<I", struct.pack("<f", x))[0]

class Gen:
    def __init__(self, stamps=False, stage=99):
        self.a = Asm()
        self.stamps = stamps
        self.stage = stage
        self.nstamp = 0

    def stamp(self, idx):
        if self.stamps:
            self.a("s_memrealtime s[96:97]")
            self.a("s_waitcnt lgkmcnt(0)")
            self.a(f"v_writelane_b32 v2, s96, {idx}")

    def lds_wait_ge(self, dword, value, vt, va=None):
        a = self.a
        lab = a.label("L_lw"); done = a.label("L_lwd")
        a(f"v_mov_b32 v{vt+1}, {sm(dword)}")
        a("s_mov_b32 s57, 0")
        a(f"{lab}:")
        a(f"ds_read_b32 v{vt}, v{vt+1}")
        a("s_waitcnt lgkmcnt(0)")
        a(f"v_readfirstlane_b32 s56, v{vt}")
        a("s_add_u32 s57, s57, 1")
        a(f"s_cmp_ge_u32 s56, {value}")
        a(f"s_cbranch_scc1 {done}")
        a("s_sleep 1")
        a("s_cmp_lt_u32 s57, 0x40000")
        a(f"s_cbranch_scc1 {lab}")
        a(f"{done}:")

    def lds_inc(self, dword, vt, rtn=False):
        a = self.a
        a("s_mov_b64 s[58:59], exec")
        a("s_mov_b64 exec, 1")
        a(f"v_mov_b32 v{vt}, {sm(dword)}")
        a(f"v_mov_b32 v{vt+1}, 1")
        if rtn:
            a(f"ds_add_rtn_u32 v{vt+2}, v{vt}, v{vt+1}")
            a("s_waitcnt lgkmcnt(0)")
            a(f"v_readfirstlane_b32 s56, v{vt+2}")
        else:
            a(f"ds_add_u32 v{vt}, v{vt+1}")
        a("s_mov_b64 exec, s[58:59]")

    def row_reduce(self, op, v, t):
        a = self.a
        for ctl in ("quad_perm:[1,0,3,2]", "quad_perm:[2,3,0,1]", "row_half_mirror", "row_mirror"):
            a("s_nop 1")
            a(f"{op}_dpp v{v}, v{v}, v{v} {ctl} row_mask:0xf bank_mask:0xf")

    def qfetch(self, j_sgpr_expr):
        a = self.a
        lab = a.label("L_qf")
        a(f"s_mul_i32 s14, s4, {S1_PITCH}")
        a("s_lshl_b32 s12, s5, 10")
        a("s_add_u32 s14, s14, s12")
        a("s_lshl_b32 s12, s15, 8")
        a("s_add_u32 s14, s14, s12")
        a(f"s_add_u32 s14, s14, {WS_S1}")
        a("s_add_u32 s12, s40, s14\ns_addc_u32 s13, s41, 0")
        a("s_mov_b32 s11, 0")
        a(f"{lab}:")
        a("s_load_dwordx16 s[16:31], s[12:13], 0 glc")
        a("s_load_dwordx16 s[56:71], s[12:13], 64 glc")
        a("s_load_dwordx16 s[72:87], s[12:13], 128 glc")
        a("s_load_dwordx8 s[32:39], s[12:13], 192 glc")
        a("s_load_dwordx8 s[88:95], s[12:13], 224 glc")
        a("s_add_u32 s11, s11, 1")
        a("s_cmp_ge_u32 s11, 0x8000")
        a(f"s_cbranch_scc1 {lab}_go")
        a("s_waitcnt lgkmcnt(0)")
        a("s_xor_b32 s14, s31, s43\ns_xor_b32 s100, s71, s43\ns_or_b32 s14, s14, s100")
        a("s_xor_b32 s100, s87, s43\ns_or_b32 s14, s14, s100")
        a("s_xor_b32 s100, s39, s43\ns_or_b32 s14, s14, s100")
        a("s_xor_b32 s100, s95, s43\ns_or_b32 s14, s14, s100")
        a(f"s_cbranch_scc1 {lab}")
        regs = list(range(16, 32)) + list(range(56, 72)) + list(range(72, 88)) + list(range(32, 40)) + list(range(88, 96))
        for lane, r in enumerate(regs):
            a(f"v_writelane_b32 v24, s{r}, {lane}")
        a("s_mov_b32 s100, 0xaaaaaaaa\ns_mov_b32 s101, 0xaaaaaaaa")
        a("s_nop 0")
        a("v_cmp_ne_u32 vcc, s43, v24")
        a("s_and_b64 vcc, vcc, s[100:101]")
        a(f"s_cbranch_vccnz {lab}")
        a(f"{lab}_go:")
        a("s_waitcnt lgkmcnt(0)")
        a("v_lshrrev_b32 v25, 1, v1")
        a("v_lshlrev_b32 v25, 2, v25")
        a("s_lshl_b32 s14, s15, 7")
        a(f"s_add_u32 s14, s14, {L_Q}")
        a("v_add_u32 v25, s14, v25")
        a("s_mov_b32 s100, 0x55555555\ns_mov_b32 s101, 0x55555555")
        a("s_mov_b64 exec, s[100:101]")
        a("ds_write_b32 v25, v24")
        a("s_mov_b64 exec, -1")
        a("s_load_dwordx16 s[16:31], s[0:1], 0")
        a("s_load_dwordx8 s[32:39], s[0:1], 64")
        a("s_waitcnt lgkmcnt(0)")
        self.lds_inc(D_FLAG_Q, 25)

    def prologue(self):
        a = self.a
        if self.stamps:
            a("s_memrealtime s[98:99]")
        a(f"s_cmp_ge_u32 s2, {NWG}")
        a("s_cbranch_scc1 L_END")
        a("s_load_dwordx16 s[16:31], s[0:1], 0")
        a("s_load_dwordx8 s[32:39], s[0:1], 64")
        a("s_load_dwordx2 s[40:41], s[0:1], 96")
        a("v_and_b32 v1, 63, v0")
        a("v_lshrrev_b32 v9, 6, v0")
        a("v_lshlrev_b32 v3, 2, v0")
        a(f"v_add_u32 v3, {L_SMALL}, v3")
        a("v_mov_b32 v4, 0")
        a("v_mov_b32 v5, 0xff800000")
        a(f"v_cmp_le_u32 vcc, {D_M}, v0")
        a("v_readfirstlane_b32 s3, v9")
        a("s_nop 0")
        a("v_cndmask_b32 v4, v4, v5, vcc")
        a("ds_write_b32 v3, v4")
        a("v_and_b32 v6, 15, v1")
        a("v_lshrrev_b32 v7, 4, v1")
        a("v_lshlrev_b32 v8, 4, v1")
        a("s_lshr_b32 s4, s2, 5")
        a("s_and_b32 s5, s2, 15")
        a("s_lshl_b32 s6, s4, 4")
        a("s_add_u32 s6, s6, s5")
        a("s_lshl_b32 s6, s6, 20")
        a("s_lshr_b32 s7, s2, 4")
        a("s_and_b32 s7, s7, 1")
        a("s_lshl_b32 s7, s7, 17")
        a("s_add_u32 s6, s6, s7")
        a("s_add_u32 s6, s6, 0xC0000")
        a("s_add_u32 s7, s3, s2")
        a("s_and_b32 s7, s7, 7")
        a("s_lshl_b32 s7, s7, 14")
        a("s_add_u32 s6, s6, s7")
        a("s_add_u32 s7, s6, 4096")
        a("s_add_u32 s8, s6, 8192")
        a("s_add_u32 s9, s6, 12288")
        a("s_and_b32 s10, s3, 7")
        a("v_and_b32 v10, 7, v6")
        a("v_mul_u32_u24 v10, 1152, v10")
        a("v_lshlrev_b32 v11, 4, v7")
        a("v_add_u32 v10, v10, v11")
        a("s_mul_i32 s14, s10, 192")
        a("v_add_u32 v10, s14, v10")
        a(f"s_sub_u32 s11, s2, {NLIGHT}")
        a("s_mov_b32 s12, 8192\ns_mov_b32 s13, s11\ns_mov_b32 s54, 4718592")
        a("s_cmp_lt_i32 s11, 64\ns_cbranch_scc1 L_S1SEL0")
        a("s_mov_b32 s54, 5308416\ns_mov_b32 s12, 9216\ns_sub_u32 s13, s11, 64")
        a("s_cmp_lt_u32 s11, 136\ns_cbranch_scc1 L_S1SEL0")
        a("s_sub_u32 s13, s11, 136")
        a("L_S1SEL0:")
        a("s_mov_b32 s55, 0x00020000")
        a("s_lshl_b32 s13, s13, 7")
        self.wtile_lane_offsets(12, 12, 13, 14)
        a("s_mul_i32 s14, s10, 96")
        a("s_mul_i32 s14, s14, s12")
        a("s_add_u32 s14, s14, s13")
        a("s_lshl_b32 s15, s12, 3")
        a("s_mul_i32 s56, s10, 12288")
        a("s_waitcnt lgkmcnt(0)")
        if self.stamps:
            a("v_mov_b32 v2, 0")
            a("v_writelane_b32 v2, s98, 0")
        a("s_load_dword s42, s[40:41], 0")
        a("s_mov_b32 s44, s40\ns_mov_b32 s45, s41")
        a(f"s_mov_b32 s46, {WS_BYTES}\ns_mov_b32 s47, 0x00020000")
        a("s_cmp_ge_u32 s3, 8")
        a("s_cbranch_scc1 L_VWAVE")

    def tag_ready(self):
        a = self.a
        a("s_waitcnt lgkmcnt(0)")
        a("s_mul_i32 s43, s42, 0x9E3779B1")
        a("s_add_u32 s43, s43, 0x7F4A7C15")

    def wtile_lane_offsets(self, pitch_sgpr, ve, vo, vt):
        a = self.a
        a(f"v_lshrrev_b32 v{vt}, 3, v1")
        a(f"v_mul_lo_u32 v{ve}, v{vt}, s{pitch_sgpr}")
        a(f"v_and_b32 v{vt}, 1, v7")
        a(f"v_lshlrev_b32 v{vt}, 1, v{vt}")
        a(f"v_and_b32 v{vo}, 7, v1")
        a(f"v_xor_b32 v{vt}, v{vt}, v{vo}")
        a(f"v_lshlrev_b32 v{vo}, 4, v{vt}")
        a(f"v_add_u32 v{ve}, v{ve}, v{vo}")
        a(f"v_xor_b32 v{vo}, 64, v{ve}")

    def tr_addr(self, v0, base_const=None, base_sgpr=None):
        a = self.a
        t = v0 + 3
        a(f"v_lshrrev_b32 v{v0}, 2, v6")
        a(f"v_lshlrev_b32 v{t}, 3, v7")
        a(f"v_add_u32 v{t}, v{t}, v{v0}")
        a(f"v_lshlrev_b32 v{t}, 7, v{t}")
        a(f"v_lshrrev_b32 v{v0}, 1, v{v0}")
        a(f"v_and_b32 v{v0+1}, 1, v7")
        a(f"v_lshlrev_b32 v{v0+1}, 1, v{v0+1}")
        a(f"v_or_b32 v{v0}, v{v0}, v{v0+1}")
        a(f"v_lshlrev_b32 v{v0}, 5, v{v0}")
        a(f"v_add_u32 v{t}, v{t}, v{v0}")
        a(f"v_and_b32 v{v0}, 3, v6")
        a(f"v_lshlrev_b32 v{v0}, 3, v{v0}")
        a(f"v_add_u32 v{v0}, v{t}, v{v0}")
        if base_sgpr is not None:
            a(f"v_add_u32 v{v0}, s{base_sgpr}, v{v0}")
        elif base_const:
            a(f"v_add_u32 v{v0}, {base_const}, v{v0}")
        a(f"v_xor_b32 v{v0+1}, 32, v{v0}")
        a(f"v_xor_b32 v{v0+2}, 64, v{v0}")
        a(f"v_xor_b32 v{v0+3}, 0x60, v{v0}")

    def kwave(self):
        a = self.a
        a("L_KWAVE:")
        a("s_mov_b32 s48, s18\ns_mov_b32 s49, s19\ns_mov_b32 s50, 0x8000000\ns_mov_b32 s51, 0x00020000")
        a(f"s_cmp_lt_u32 s2, {NLIGHT}")
        a("s_cbranch_scc1 L_KBAR")
        a("s_cmp_ge_u32 s10, 6")
        a("s_cbranch_scc1 L_KBAR")
        a("s_setprio 3")
        a("s_mov_b32 s52, s22\ns_mov_b32 s53, s23")
        a("s_cmp_lt_u32 s11, 64\ns_cbranch_scc1 L_S1SEL")
        a("s_mov_b32 s52, s28\ns_mov_b32 s53, s29")
        a("s_cmp_lt_u32 s11, 136\ns_cbranch_scc1 L_S1SEL")
        a("s_mov_b32 s52, s30\ns_mov_b32 s53, s31")
        a("L_S1SEL:")
        for u in range(12):
            a(f"s_add_u32 m0, s56, {L_W + u*1024}")
            a("s_add_u32 s14, s14, s15" if u > 0 else "s_nop 0")
            a(f"buffer_load_dwordx4 v{12 + (u & 1)}, s[52:55], s14 offen nt lds")
        for ks in range(3):
            a(f"global_load_dwordx4 v[{16+4*ks}:{19+4*ks}], v10, s[16:17] offset:{64*ks}")
        a("s_barrier")
        self.stamp(1)
        self.tr_addr(28, base_sgpr=56)
        for r in range(16):
            a(f"v_mov_b32 v{32+r}, 0")
        a("s_waitcnt vmcnt(0)")
        self.stamp(2)
        def rd(ks):
            for t in range(4):
                for hf in range(2):
                    r = 48 + (ks*4+t)*4 + hf*2
                    a(f"ds_read_b64_tr_b16 v[{r}:{r+1}], v{28+t} offset:{ks*4096 + hf*512}")
        def mm(ks):
            for t in range(4):
                r = 48 + (ks*4+t)*4
                a(f"v_mfma_f32_16x16x32_bf16 v[{32+4*t}:{35+4*t}], v[{r}:{r+3}], v[{16+4*ks}:{19+4*ks}], v[{32+4*t}:{35+4*t}]")
        rd(0);
        a("s_waitcnt lgkmcnt(7)")
        rd(1)
        a("s_waitcnt lgkmcnt(8)")
        mm(0)
        rd(2)
        a("s_waitcnt lgkmcnt(8)")
        mm(1)
        a("s_waitcnt lgkmcnt(0)")
        mm(2)
        a("v_lshlrev_b32 v10, 3, v7")
        a("v_add_u32 v10, v10, v6")
        a("v_lshlrev_b32 v10, 4, v10")
        a("s_lshl_b32 s14, s10, 11")
        a(f"s_add_u32 s14, s14, {L_S1SLOT}")
        a("v_add_u32 v10, s14, v10")
        a("s_mov_b32 s58, 0x00ff00ff\ns_mov_b32 s59, 0x00ff00ff")
        a("s_nop 1")
        a("s_mov_b64 exec, s[58:59]")
        for t in range(4):
            a(f"ds_write_b128 v10, v[{32+4*t}:{35+4*t}] offset:{t*512}")
        a("s_mov_b64 exec, -1")
        a("s_waitcnt lgkmcnt(0)")
        self.lds_inc(D_CNT_S1, 10, rtn=True)
        a("s_cmp_eq_u32 s56, 5")
        a("s_cbranch_scc0 L_S1DONE")
        a("v_and_b32 v10, 31, v1")
        a("v_lshlrev_b32 v10, 4, v10")
        a("v_lshrrev_b32 v11, 5, v1")
        a("v_lshlrev_b32 v12, 9, v11")
        a("v_add_u32 v10, v10, v12")
        a(f"v_add_u32 v10, {L_S1SLOT}, v10")
        for sl in range(6):
            for i in range(2):
                r = 48 + (sl*2+i)*4
                a(f"ds_read_b128 v[{r}:{r+3}], v10 offset:{sl*2048 + i*1024}")
                if sl == 3 and i == 1:
                    pass
        a("s_waitcnt lgkmcnt(0)")
        for i in range(2):
            for c in range(4):
                R = lambda sl: 48 + (sl*2+i)*4 + c
                d = 16 + 4*i + c
                a(f"v_add_f32 v{d}, v{R(0)}, v{R(1)}")
                a(f"v_add_f32 v{R(2)}, v{R(2)}, v{R(3)}")
                a(f"v_add_f32 v{R(4)}, v{R(4)}, v{R(5)}")
                a(f"v_add_f32 v{d}, v{d}, v{R(2)}")
                a(f"v_add_f32 v{d}, v{d}, v{R(4)}")
        a("v_and_b32 v12, 7, v1")
        a(f"s_mov_b32 s14, {S1_PITCH}")
        a("v_mul_lo_u32 v12, v12, s14")
        a("v_bfe_u32 v13, v1, 3, 2")
        a("v_lshlrev_b32 v14, 2, v11")
        a("v_add_u32 v13, v13, v14")
        a("v_lshlrev_b32 v13, 4, v13")
        a("v_add_u32 v12, v12, v13")
        a("s_lshl_b32 s14, s11, 8")
        a(f"s_add_u32 s14, s14, {WS_S1}")
        self.tag_ready()
        a("v_mov_b32 v25, s43\nv_mov_b32 v27, s43\nv_mov_b32 v29, s43\nv_mov_b32 v31, s43")
        a("v_cvt_pk_bf16_f32 v24, v16, v17")
        a("v_cvt_pk_bf16_f32 v26, v18, v19")
        a("v_cvt_pk_bf16_f32 v28, v20, v21")
        a("v_cvt_pk_bf16_f32 v30, v22, v23")
        a("buffer_store_dwordx4 v[24:27], v12, s[44:47], s14 offen sc1")
        a("buffer_store_dwordx4 v[28:31], v12, s[44:47], s14 offen offset:128 sc1")
        self.lds_inc(D_FLAG_S1P, 10)
        a("L_S1DONE:")
        self.stamp(3)
        self.lds_wait_ge(D_FLAG_S1P, 1, 10)
        a("s_branch L_KLOAD")
        a("L_KBAR:")
        a("s_barrier")
        self.stamp(1)
        a("L_KLOAD:")
        a("s_setprio 2")
        KB = 48
        for u in range(16):
            a(f"buffer_load_dwordx4 v[{KB+4*u}:{KB+4*u+3}], v8, s[48:51], s{6 + u//4} offen offset:{(u%4)*1024} nt")
        a(f"s_lshl_b32 s56, s10, 12")
        a(f"s_add_u32 s56, s56, {L_KSCR}")
        a("v_xor_b32 v10, v6, v7")
        a("v_lshlrev_b32 v10, 4, v10")
        a("v_lshlrev_b32 v11, 8, v7")
        a("v_add_u32 v12, v10, v11")
        a("v_add_u32 v12, s56, v12")
        a("v_xor_b32 v13, 64, v12\nv_xor_b32 v14, 0x80, v12\nv_xor_b32 v15, 0xc0, v12")
        a("v_lshlrev_b32 v11, 8, v6")
        a("v_add_u32 v16, v10, v11")
        a("v_add_u32 v16, s56, v16")
        a("v_xor_b32 v17, 64, v16\nv_xor_b32 v18, 0x80, v16\nv_xor_b32 v19, 0xc0, v16")
        a("v_bfe_u32 v20, v6, 2, 1")
        a("v_lshlrev_b32 v20, 8, v20")
        a("v_lshlrev_b32 v21, 4, v7")
        a("v_add_u32 v20, v20, v21")
        a(f"v_add_u32 v20, {L_Q}, v20")
        self.tag_ready()
        a("s_cmp_lt_u32 s10, 6")
        a("s_cbranch_scc1 L_QWAIT")
        a("s_sub_u32 s15, s10, 6")
        self.qfetch(None)
        a("L_QWAIT:")
        self.lds_wait_ge(D_FLAG_Q, 4, 22)
        self.stamp(4)
        for j in range(4):
            a(f"ds_read_b128 v[{32+4*j}:{35+4*j}], v20 offset:{64*j}")
        for r in range(16):
            a(f"v_mov_b32 v{112+r}, 0")
        a("s_waitcnt vmcnt(0)")
        self.stamp(5)
        def tile_ops(t):
            Gk, tp = t >> 1, t & 1
            for aa in range(4):
                u = 8*Gk + 2*aa + tp
                a(f"ds_write_b128 v{12+aa}, v[{KB+4*u}:{KB+4*u+3}] offset:{aa*1024}")
            for j in range(4):
                u = 8*Gk + 2*j + tp
                a(f"ds_read_b128 v[{KB+4*u}:{KB+4*u+3}], v{16+j}")
        def tile_mm(t):
            Gk, tp = t >> 1, t & 1
            for j in range(4):
                u = 8*Gk + 2*j + tp
                a(f"v_mfma_f32_16x16x32_bf16 v[{112+4*t}:{115+4*t}], v[{32+4*j}:{35+4*j}], v[{KB+4*u}:{KB+4*u+3}], v[{112+4*t}:{115+4*t}]")
        tile_ops(0)
        a("s_waitcnt lgkmcnt(6)")
        tile_ops(1)
        a("s_waitcnt lgkmcnt(8)")
        tile_mm(0)
        tile_ops(2)
        a("s_waitcnt lgkmcnt(8)")
        tile_mm(1)
        tile_ops(3)
        a("s_waitcnt lgkmcnt(8)")
        tile_mm(2)
        a("s_waitcnt lgkmcnt(0)")
        tile_mm(3)
        a("s_nop 7")
        a("v_max_f32 v24, v112, v116")
        a("s_nop 3")
        a("v_max3_f32 v24, v24, v120, v124")
        self.row_reduce("v_max_f32", 24, 25)
        a("v_and_b32 v25, 1, v7")
        a("v_lshlrev_b32 v25, 2, v25")
        a(f"v_add_u32 v25, {sm(D_M)}, v25")
        a("s_mov_b32 s58, 0x00010001\ns_mov_b32 s59, 0")
        a("s_mov_b64 exec, s[58:59]")
        a("ds_max_f32 v25, v24")
        a("s_mov_b64 exec, -1")
        a("s_waitcnt lgkmcnt(0)")
        self.lds_inc(D_CNT_M, 26)
        self.lds_wait_ge(D_CNT_M, 8, 26)
        a("ds_read_b32 v24, v25")
        a(f"s_mov_b32 s14, 0x{f32bits(SCALE_LOG2E):08x}")
        a("s_waitcnt lgkmcnt(0)")
        a("v_mul_f32 v24, s14, v24")
        for t in range(4):
            a(f"v_fma_f32 v{28+t}, v{112+4*t}, s14, -v24")
        for t in range(4):
            a(f"v_exp_f32 v{28+t}, v{28+t}")
        a("s_nop 0")
        a("v_add_f32 v26, v28, v29")
        a("v_add_f32 v27, v30, v31")
        a("v_add_f32 v26, v26, v27")
        self.row_reduce("v_add_f32", 26, 27)
        a("v_cvt_pk_bf16_f32 v28, v28, v29")
        a("v_cvt_pk_bf16_f32 v29, v30, v31")
        a("v_and_b32 v27, 1, v7")
        a("v_lshlrev_b32 v27, 2, v27")
        a(f"v_add_u32 v27, {sm(D_L)}, v27")
        a("s_mov_b32 s58, 0x00010001\ns_mov_b32 s59, 0")
        a("s_mov_b64 exec, s[58:59]")
        a("ds_add_f32 v27, v26")
        a("s_mov_b64 exec, -1")
        a("v_and_b32 v30, 3, v6")
        a("v_lshlrev_b32 v30, 2, v30")
        a("v_lshrrev_b32 v31, 2, v6")
        a("v_add_u32 v30, v30, v31")
        a("v_lshlrev_b32 v30, 2, v30")
        a("v_lshlrev_b32 v31, 7, v7")
        a("v_add_u32 v30, v30, v31")
        a("s_lshl_b32 s14, s10, 8")
        a(f"s_add_u32 s14, s14, {L_P}")
        a("v_add_u32 v30, s14, v30")
        a("s_mov_b32 s58, -1\ns_mov_b32 s59, 0")
        a("s_mov_b64 exec, s[58:59]")
        a("ds_write_b32 v30, v28")
        a("ds_write_b32 v30, v29 offset:64")
        a("s_mov_b64 exec, -1")
        a("s_waitcnt lgkmcnt(0)")
        a("s_lshl_b32 s14, s10, 2")
        a(f"s_add_u32 s14, s14, {sm(D_FLAG_P)}")
        a("v_mov_b32 v30, s14\nv_mov_b32 v31, 1")
        a("s_mov_b64 exec, 1")
        a("ds_write_b32 v30, v31")
        a("s_mov_b64 exec, -1")
        self.stamp(6)
        a("s_branch L_KPOST")

    def vwave(self):
        a = self.a
        a("L_VWAVE:")
        a("s_setprio 1")
        a("s_barrier")
        self.stamp(1)
        a("s_mov_b32 s48, s20\ns_mov_b32 s49, s21\ns_mov_b32 s50, 0x8000000\ns_mov_b32 s51, 0x00020000")
        VB = 48
        a("s_cmp_lt_u32 s3, 14")
        a("s_cbranch_scc1 L_VGATE")
        self.tag_ready()
        a("s_sub_u32 s15, s3, 12")
        self.qfetch(None)
        self.stamp(7)
        a("L_VGATE:")
        a(f"s_cmp_lt_u32 s2, {NLIGHT}")
        a("s_cbranch_scc1 L_VLOAD")
        self.lds_wait_ge(D_FLAG_S1P, 1, 22)
        a("L_VLOAD:")
        for u in range(16):
            a(f"buffer_load_dwordx4 v[{VB+4*u}:{VB+4*u+3}], v8, s[48:51], s{6 + u//4} offen offset:{(u%4)*1024} nt")
        self.lds_inc(D_CNT_VISS, 22)
        self.stamp(2)
        a("s_lshl_b32 s14, s10, 8")
        a(f"s_add_u32 s14, s14, {L_P}")
        a("v_and_b32 v10, 1, v6")
        a("v_lshlrev_b32 v10, 7, v10")
        a("v_lshlrev_b32 v11, 4, v7")
        a("v_add_u32 v10, v10, v11")
        a("v_add_u32 v10, s14, v10")
        a(f"v_mov_b32 v11, {sm(D_ZERO)}")
        for gp in range(4):
            a("v_and_b32 v16, 14, v6")
            a(f"v_cmp_eq_u32 vcc, {4*gp}, v16")
            a("s_nop 1")
            a(f"v_cndmask_b32 v{12+gp}, v11, v10, vcc")
        a("v_lshlrev_b32 v16, 3, v6")
        a("v_add_u32 v16, v16, v7")
        a("v_lshlrev_b32 v16, 2, v16")
        a("s_lshl_b32 s14, s10, 10")
        a(f"s_add_u32 s14, s14, {L_OSLOT}")
        a("v_add_u32 v16, s14, v16")
        a("s_mov_b32 s12, 0x05040100\ns_mov_b32 s13, 0x07060302")
        for r in range(8):
            a(f"v_mov_b32 v{20+r}, 0")
        self.tag_ready()
        lab = a.label("L_pw")
        a("s_lshl_b32 s14, s10, 2")
        a(f"s_add_u32 s14, s14, {sm(D_FLAG_P)}")
        a("v_mov_b32 v18, s14")
        a("s_mov_b32 s57, 0")
        a(f"{lab}:")
        a("ds_read_b32 v17, v18")
        a("s_waitcnt lgkmcnt(0)")
        a("v_readfirstlane_b32 s56, v17")
        a("s_add_u32 s57, s57, 1")
        a("s_cmp_ge_u32 s56, 1")
        a(f"s_cbranch_scc1 {lab}_d")
        a("s_sleep 2")
        a("s_cmp_lt_u32 s57, 0x40000")
        a(f"s_cbranch_scc1 {lab}")
        a(f"{lab}_d:")
        self.stamp(3)
        for gp in range(4):
            a(f"ds_read_b128 v[{28+4*gp}:{31+4*gp}], v{12+gp}")
        a("s_waitcnt vmcnt(8)")
        def L(G, i, d): return VB + 32*G + 4*i + d
        for ph in range(2):
            for dd in range(2):
                d = 2*ph + dd
                for e in range(2):
                    for rp in range(4):
                        a(f"v_perm_b32 v{112+4*(2*dd+e)+rp}, v{L(0,2*rp+1,d)}, v{L(0,2*rp,d)}, s{12+e}")
            if ph == 0:
                a("s_waitcnt lgkmcnt(0)")
            else:
                a("s_nop 1")
            for jj in range(4):
                j = 4*ph + jj
                a(f"v_mfma_f32_16x16x32_bf16 v[{20+4*ph}:{23+4*ph}], v[{28+4*jj}:{31+4*jj}], v[{112+4*jj}:{115+4*jj}], v[{20+4*ph}:{23+4*ph}]")
        a("s_cmp_eq_u32 s3, 15")
        a("s_cbranch_scc0 L_NOWARN")
        a("s_lshl_b32 s14, s2, 12")
        a(f"s_add_u32 s14, s14, {WS_O + 2080}")
        a("v_mov_b32 v112, s43\nv_mov_b32 v113, s43\nv_mov_b32 v17, 0")
        a("s_mov_b64 exec, 1")
        a("buffer_store_dwordx2 v[112:113], v17, s[44:47], s14 offen sc1")
        a("s_mov_b64 exec, -1")
        a("L_NOWARN:")
        a("s_nop 7")
        for gp in range(4):
            a(f"ds_read_b128 v[{28+4*gp}:{31+4*gp}], v{12+gp} offset:64")
        for rp in range(4):
            a(f"s_waitcnt vmcnt({6 - 2*rp})")
            for d in range(4):
                for e in range(2):
                    a(f"v_perm_b32 v{VB+4*(2*d+e)+rp}, v{L(1,2*rp+1,d)}, v{L(1,2*rp,d)}, s{12+e}")
        self.stamp(4)
        a("s_waitcnt lgkmcnt(0)")
        for jj in range(4):
            for ph in range(2):
                j = 4*ph + jj
                a(f"v_mfma_f32_16x16x32_bf16 v[{20+4*ph}:{23+4*ph}], v[{28+4*jj}:{31+4*jj}], v[{VB+4*j}:{VB+4*j+3}], v[{20+4*ph}:{23+4*ph}]")
        a("s_nop 7")
        for r in range(2):
            a(f"ds_write2_b32 v16, v{20+r}, v{24+r} offset0:{r*128} offset1:{r*128+4}")
        a("s_waitcnt lgkmcnt(0)")
        self.lds_inc(D_CNT_O, 28, rtn=True)
        a("s_cmp_eq_u32 s56, 7")
        a("s_cbranch_scc0 L_VPOST")
        a(f"v_add_u32 v28, {L_OSLOT}, v8")
        for sl in range(8):
            a(f"ds_read_b128 v[{48+4*sl}:{51+4*sl}], v28 offset:{sl*1024}")
        a("v_lshrrev_b32 v29, 5, v1")
        a("v_lshlrev_b32 v29, 2, v29")
        a(f"v_add_u32 v30, {sm(D_M)}, v29")
        a(f"v_add_u32 v31, {sm(D_L)}, v29")
        a("ds_read_b32 v44, v30")
        a("ds_read_b32 v46, v31")
        a("s_lshl_b32 s14, s2, 12")
        a(f"s_add_u32 s14, s14, {WS_O}")
        a("v_lshlrev_b32 v28, 5, v1")
        a("v_mov_b32 v37, s43\nv_mov_b32 v39, s43\nv_mov_b32 v41, s43\nv_mov_b32 v43, s43\nv_mov_b32 v45, s43\nv_mov_b32 v47, s43")
        a(f"s_mov_b32 s15, 0x{f32bits(SCALE_LOG2E):08x}")
        a("s_waitcnt lgkmcnt(0)")
        for c in range(4):
            R = lambda sl: 48 + 4*sl + c
            a(f"v_add_f32 v{R(0)}, v{R(0)}, v{R(1)}")
            a(f"v_add_f32 v{R(2)}, v{R(2)}, v{R(3)}")
            a(f"v_add_f32 v{R(4)}, v{R(4)}, v{R(5)}")
            a(f"v_add_f32 v{R(6)}, v{R(6)}, v{R(7)}")
            a(f"v_add_f32 v{R(0)}, v{R(0)}, v{R(2)}")
            a(f"v_add_f32 v{R(4)}, v{R(4)}, v{R(6)}")
            a(f"v_add_f32 v{36+2*c}, v{R(0)}, v{R(4)}")
        a("v_mul_f32 v44, s15, v44")
        a("buffer_store_dwordx4 v[36:39], v28, s[44:47], s14 offen sc1")
        a("buffer_store_dwordx4 v[40:43], v28, s[44:47], s14 offen offset:16 sc1")
        a("v_lshlrev_b32 v29, 2, v29")
        a("s_mov_b32 s58, 1\ns_mov_b32 s59, 1")
        a("s_mov_b64 exec, s[58:59]")
        a("buffer_store_dwordx4 v[44:47], v29, s[44:47], s14 offen offset:2048 sc1")
        a("s_mov_b64 exec, -1")
        self.stamp(5)
        a("s_branch L_VPOST")

    def final_mfma(self, nsub_label):
        pass

    def post(self):
        a = self.a
        a("L_KPOST:")
        a("s_setprio 0")
        a(f"s_cmp_lt_u32 s2, {NLIGHT}")
        a("s_cbranch_scc1 L_KPOST_LIGHT")
        a(f"s_sub_u32 s11, s2, {NLIGHT}")
        a("s_cmp_ge_u32 s11, 162")
        a("s_cbranch_scc1 L_FIN")
        a("s_mul_i32 s12, s11, 7282")
        a("s_lshr_b32 s12, s12, 16")
        a("s_mul_i32 s13, s12, 9")
        a("s_sub_u32 s13, s11, s13")
        a(f"s_mul_i32 s14, s10, {S1_PITCH}")
        a("s_lshl_b32 s15, s12, 10")
        a("s_add_u32 s14, s14, s15")
        a(f"s_add_u32 s14, s14, {WS_S1 + 1024*16}")
        a(f"s_add_u32 s15, s14, {1152*16}")
        a("s_mov_b32 s57, 0")
        a("L_HPOLL:")
        a("buffer_load_dwordx4 v[24:27], v8, s[44:47], s14 offen sc1")
        a("buffer_load_dwordx4 v[28:31], v8, s[44:47], s15 offen sc1")
        a("s_add_u32 s57, s57, 1")
        a("s_waitcnt vmcnt(0)")
        a("v_min3_u32 v32, v25, v27, v29\nv_max3_u32 v33, v25, v27, v29")
        a("v_min_u32 v32, v32, v31\nv_max_u32 v33, v33, v31")
        a("v_cmp_ne_u32 vcc, s43, v32")
        a("v_cmp_ne_u32 s[58:59], s43, v33")
        a("s_or_b64 vcc, vcc, s[58:59]")
        a("s_cbranch_vccz L_HGOT")
        a("s_cmp_lt_u32 s57, 0x10000")
        a("s_cbranch_scc1 L_HPOLL")
        a("L_HGOT:")
        a("v_lshlrev_b32 v32, 16, v24\nv_and_b32 v33, 0xffff0000, v24\nv_lshlrev_b32 v34, 16, v26\nv_and_b32 v35, 0xffff0000, v26")
        a("v_lshlrev_b32 v36, 16, v28\nv_and_b32 v37, 0xffff0000, v28\nv_lshlrev_b32 v38, 16, v30\nv_and_b32 v39, 0xffff0000, v30")
        a("s_mov_b32 s14, 0xbfb8aa3b")
        for i in range(4):
            a(f"v_mul_f32 v{40+i}, s14, v{32+i}")
        for i in range(4):
            a(f"v_exp_f32 v{40+i}, v{40+i}")
        a("s_nop 0")
        for i in range(4):
            a(f"v_add_f32 v{40+i}, 1.0, v{40+i}")
        for i in range(4):
            a(f"v_rcp_f32 v{40+i}, v{40+i}")
        a("s_nop 0")
        for i in range(4):
            a(f"v_mul_f32 v{40+i}, v{32+i}, v{40+i}")
        a("v_cvt_pk_bf16_f32 v44, v40, v41\nv_cvt_pk_bf16_f32 v45, v42, v43")
        a("v_lshlrev_b32 v40, 16, v44\nv_and_b32 v41, 0xffff0000, v44\nv_lshlrev_b32 v42, 16, v45\nv_and_b32 v43, 0xffff0000, v45")
        for i in range(4):
            a(f"v_mul_f32 v{40+i}, v{40+i}, v{36+i}")
        a("v_cvt_pk_bf16_f32 v44, v40, v41\nv_cvt_pk_bf16_f32 v45, v42, v43")
        a(f"s_mul_i32 s14, s10, {BM_PITCH}")
        a(f"s_add_u32 s14, s14, {L_BM}")
        a("v_lshlrev_b32 v46, 3, v1")
        a("v_add_u32 v46, s14, v46")
        a("ds_write_b64 v46, v[44:45]")
        self.lds_wait_ge(D_CNT_VISS, 8, 32)
        a("s_mov_b32 s52, s32\ns_mov_b32 s53, s33\ns_mov_b32 s54, 5308416\ns_mov_b32 s55, 0x00020000")
        a("s_mov_b32 s56, 1152")
        self.wtile_lane_offsets(56, 12, 13, 14)
        a("s_lshl_b32 s14, s12, 8")
        a("s_lshl_b32 s15, s10, 5")
        a("s_add_u32 s14, s14, s15")
        a("s_mul_i32 s14, s14, 1152")
        a("s_lshl_b32 s15, s13, 7")
        a("s_add_u32 s14, s14, s15")
        a("s_lshl_b32 s15, s10, 12")
        for u in range(4):
            a(f"s_add_u32 m0, s15, {L_W + u*1024}")
            a(f"s_add_u32 s14, s14, {8*1152}" if u > 0 else "s_nop 0")
            a(f"buffer_load_dwordx4 v{12 + (u & 1)}, s[52:55], s14 offen nt lds")
        a("s_waitcnt vmcnt(0) lgkmcnt(0)")
        self.lds_inc(D_CNT_W, 32)
        a("s_cmp_ge_u32 s10, 4")
        a("s_cbranch_scc1 L_HDONE")
        self.lds_wait_ge(D_CNT_W, 8, 32)
        a("s_add_u32 s12, s12, 16")
        a("s_lshl_b32 s13, s13, 6")
        a("s_mov_b32 s15, 0")
        a("s_mov_b32 s14, s10")
        self.tile_pre(wait=False)
        self.tile_post()
        a("L_HDONE:")
        a("s_cmp_eq_u32 s10, 7")
        a("s_cbranch_scc0 L_FIN")
        a("s_cmp_ge_u32 s11, 144")
        a("s_cbranch_scc1 L_FIN")
        self.reducer()
        a("s_branch L_FIN")

        a("L_KPOST_LIGHT:")
        a("s_and_b32 s12, s2, 15")
        a("s_lshr_b32 s13, s2, 4")
        self.lds_wait_ge(D_CNT_VISS, 8, 32)
        a("s_mov_b32 s52, s24\ns_mov_b32 s53, s25\ns_mov_b32 s54, 4718592\ns_mov_b32 s55, 0x00020000")
        a("s_mov_b32 s56, 1152")
        self.wtile_lane_offsets(56, 12, 13, 14)
        a("s_lshl_b32 s14, s12, 8")
        a("s_lshl_b32 s15, s10, 5")
        a("s_add_u32 s14, s14, s15")
        a("s_mul_i32 s14, s14, 1152")
        a("s_mul_i32 s15, s13, 384")
        a("s_add_u32 s14, s14, s15")
        a("s_lshl_b32 s15, s10, 12")
        for u in range(4):
            for st in range(3):
                a(f"s_add_u32 m0, s15, {L_W + st*32768 + u*1024}")
                a(f"s_add_u32 s56, s14, {st*128}")
                a(f"buffer_load_dwordx4 v{12 + (u & 1)}, s[52:55], s56 offen nt lds")
            a(f"s_add_u32 s14, s14, {8*1152}")
        a("s_waitcnt vmcnt(0)")
        self.lds_inc(D_CNT_W, 32)
        a("L_VPOST_LIGHT:")
        a("s_cmp_ge_u32 s3, 12")
        a("s_cbranch_scc1 L_LPRE_D")
        a("s_and_b32 s12, s2, 15")
        a("s_lshr_b32 s13, s2, 4")
        a("s_mul_i32 s13, s13, 192")
        a("s_lshr_b32 s15, s3, 2")
        a("s_lshl_b32 s14, s15, 6")
        a("s_add_u32 s13, s13, s14")
        a("s_lshl_b32 s15, s15, 15")
        a("s_and_b32 s14, s3, 3")
        self.tile_pre()
        a("L_LPRE_D:")
        a("s_lshr_b32 s4, s3, 1")
        a("s_and_b32 s5, s3, 1")
        a("s_and_b32 s12, s2, 15")
        a("s_lshl_b32 s14, s4, 5")
        a("s_add_u32 s14, s14, s12")
        a("s_lshl_b32 s14, s14, 12")
        a(f"s_add_u32 s14, s14, {WS_O}")
        a("s_lshl_b32 s15, s5, 10")
        a("s_add_u32 s6, s14, s15")
        a("s_add_u32 s7, s6, 0x10000")
        a("s_lshl_b32 s15, s5, 4")
        a("s_add_u32 s8, s14, s15")
        a("s_add_u32 s8, s8, 2048")
        a("s_add_u32 s9, s8, 0x10000")
        a("s_add_u32 s60, s14, 2080")
        a("s_add_u32 s61, s60, 0x10000")
        a(f"s_mul_i32 s14, s4, {BM_PITCH}")
        a("s_lshl_b32 s15, s5, 8")
        a("s_add_u32 s14, s14, s15")
        a(f"s_add_u32 s14, s14, {L_BM}")
        a("v_lshlrev_b32 v11, 2, v1")
        a("v_add_u32 v11, s14, v11")
        a("v_mov_b32 v10, 0")
        a("s_mov_b32 s57, 0")
        a("s_add_u32 s66, s40, s60\ns_addc_u32 s67, s41, 0")
        a("s_add_u32 s68, s40, s61\ns_addc_u32 s69, s41, 0")
        a("L_OPRE:")
        a("s_load_dword s60, s[66:67], 0 glc")
        a("s_load_dword s61, s[68:69], 0 glc")
        a("s_add_u32 s57, s57, 1")
        a("s_waitcnt lgkmcnt(0)")
        a("s_xor_b32 s60, s60, s43\ns_xor_b32 s61, s61, s43")
        a("s_or_b32 s60, s60, s61")
        a("s_cbranch_scc0 L_OPRE_D")
        a("s_cmp_lt_u32 s57, 0x10000")
        a("s_cbranch_scc1 L_OPRE")
        a("L_OPRE_D:")
        a("s_mov_b32 s57, 0")
        a("L_OPOLL:")
        a("buffer_load_dwordx4 v[24:27], v8, s[44:47], s6 offen sc1")
        a("buffer_load_dwordx4 v[28:31], v8, s[44:47], s7 offen sc1")
        a("buffer_load_dwordx4 v[32:35], v10, s[44:47], s8 offen sc1")
        a("buffer_load_dwordx4 v[36:39], v10, s[44:47], s9 offen sc1")
        a("s_add_u32 s57, s57, 1")
        a("s_waitcnt vmcnt(0)")
        a("v_min3_u32 v40, v25, v27, v29\nv_max3_u32 v41, v25, v27, v29")
        a("v_min3_u32 v40, v40, v31, v33\nv_max3_u32 v41, v41, v31, v33")
        a("v_min3_u32 v40, v40, v35, v37\nv_max3_u32 v41, v41, v35, v37")
        a("v_min_u32 v40, v40, v39\nv_max_u32 v41, v41, v39")
        a("v_cmp_ne_u32 vcc, s43, v40")
        a("v_cmp_ne_u32 s[58:59], s43, v41")
        a("s_or_b64 vcc, vcc, s[58:59]")
        a("s_cbranch_vccz L_OGOT")
        a("s_cmp_lt_u32 s57, 0x10000")
        a("s_cbranch_scc1 L_OPOLL")
        a("L_OGOT:")
        self.stamp(6)
        a("v_max_f32 v40, v32, v36")
        a("v_sub_f32 v32, v32, v40")
        a("v_sub_f32 v36, v36, v40")
        a("v_exp_f32 v32, v32")
        a("v_exp_f32 v36, v36")
        a("s_nop 0")
        a("v_mul_f32 v40, v32, v34")
        a("v_fma_f32 v40, v36, v38, v40")
        a("v_rcp_f32 v40, v40")
        a("s_nop 0")
        a("v_mul_f32 v32, v32, v40")
        a("v_mul_f32 v36, v36, v40")
        a("v_mul_f32 v24, v24, v32")
        a("v_mul_f32 v26, v26, v32")
        a("v_fma_f32 v24, v28, v36, v24")
        a("v_fma_f32 v26, v30, v36, v26")
        a("v_cvt_pk_bf16_f32 v24, v24, v26")
        a("ds_write_b32 v11, v24")
        a("s_waitcnt lgkmcnt(0)")
        a("s_barrier")
        a("s_cmp_ge_u32 s3, 12")
        a("s_cbranch_scc1 L_FIN")
        self.tile_post()
        self.stamp(7)
        a("s_branch L_FIN")
        a("L_VPOST:")
        a(f"s_cmp_lt_u32 s2, {NLIGHT}")
        a("s_cbranch_scc1 L_VPOST_LIGHT")
        a("s_branch L_FIN")

    def tile_pre(self, wait=True):
        a = self.a
        self.tr_addr(28, base_sgpr=15)
        a("s_lshl_b32 s56, s14, 5")
        a("v_xor_b32 v28, s56, v28")
        a("v_and_b32 v12, 7, v6")
        a(f"v_mul_u32_u24 v13, {PART_PITCH}, v12")
        a(f"v_mul_u32_u24 v12, {BM_PITCH}, v12")
        a("v_lshlrev_b32 v30, 4, v7")
        a("v_add_u32 v12, v12, v30")
        a(f"v_add_u32 v12, {L_BM}, v12")
        a("v_lshlrev_b32 v30, 5, v7")
        a("v_add_u32 v13, v13, v30")
        a(f"s_mul_i32 s62, s12, {8*PART_PITCH}")
        a("s_lshl_b32 s57, s14, 4")
        a("s_add_u32 s57, s57, s13")
        a("s_lshl_b32 s57, s57, 3")
        a("s_add_u32 s62, s62, s57")
        a(f"s_add_u32 s62, s62, {WS_PART}")
        if wait:
            self.lds_wait_ge(D_CNT_W, 8, 30)
        for ks in range(8):
            a(f"ds_read_b64_tr_b16 v[{48+4*ks}:{49+4*ks}], v28 offset:{ks*4096}")
            a(f"ds_read_b64_tr_b16 v[{50+4*ks}:{51+4*ks}], v28 offset:{ks*4096+512}")
            if ks == 3: a("s_waitcnt lgkmcnt(4)")
        for r in range(4):
            a(f"v_mov_b32 v{20+r}, 0")
        a("v_mov_b32 v113, s43\nv_mov_b32 v115, s43\nv_mov_b32 v117, s43\nv_mov_b32 v119, s43")
        a("s_mov_b32 s64, 0x00ff00ff\ns_mov_b32 s65, 0x00ff00ff")

    def tile_post(self):
        a = self.a
        for ks in range(8):
            a(f"ds_read_b128 v[{80+4*ks}:{83+4*ks}], v12 offset:{ks*64}")
        for ks in range(8):
            a(f"s_waitcnt lgkmcnt({7-ks})")
            a(f"v_mfma_f32_16x16x32_bf16 v[20:23], v[{48+4*ks}:{51+4*ks}], v[{80+4*ks}:{83+4*ks}], v[20:23]")
        a("s_mov_b64 exec, s[64:65]")
        a("s_nop 6")
        a("v_mov_b32 v112, v20\nv_mov_b32 v114, v21\nv_mov_b32 v116, v22\nv_mov_b32 v118, v23")
        a("buffer_store_dwordx4 v[112:115], v13, s[44:47], s62 offen sc1")
        a("buffer_store_dwordx4 v[116:119], v13, s[44:47], s62 offen offset:16 sc1")
        a("s_mov_b64 exec, -1")

    def reducer(self):
        a = self.a
        a("s_mul_i32 s12, s11, 3641")
        a("s_lshr_b32 s12, s12, 16")
        a("s_mul_i32 s13, s12, 18")
        a("s_sub_u32 s13, s11, s13")
        a("v_lshlrev_b32 v10, 1, v1")
        a("s_mul_i32 s14, s12, 1152")
        a("v_add_u32 v11, s14, v10")
        for i in range(9):
            a(f"global_load_ushort v{24+i}, v11, s[16:17] offset:{128*i}")
            a(f"global_load_ushort v{36+i}, v10, s[34:35] offset:{128*i}")
        a("s_waitcnt vmcnt(0)")
        for i in range(9):
            a(f"v_lshlrev_b32 v{24+i}, 16, v{24+i}")
            a(f"v_lshlrev_b32 v{36+i}, 16, v{36+i}")
        for i in range(9):
            a(f"v_mul_f32 v{24+i}, v{24+i}, v{36+i}")
        for i in range(0, 8, 2):
            a(f"v_cvt_pk_bf16_f32 v{36+i}, v{24+i}, v{25+i}")
        a("v_cvt_pk_bf16_f32 v44, v32, v32")
        a("v_mov_b32 v46, 0")
        for i in range(0, 8, 2):
            a(f"v_lshlrev_b32 v24, 16, v{36+i}\nv_and_b32 v25, 0xffff0000, v{36+i}")
            a("v_add_f32 v46, v46, v24\nv_add_f32 v46, v46, v25")
        a("v_lshlrev_b32 v24, 16, v44\nv_add_f32 v46, v46, v24")
        self.row_reduce("v_add_f32", 46, 47)
        a("s_nop 1")
        a("v_readlane_b32 s14, v46, 0\nv_readlane_b32 s15, v46, 16\nv_readlane_b32 s56, v46, 32\nv_readlane_b32 s57, v46, 48")
        a("s_nop 1")
        a("v_mov_b32 v46, s14\nv_add_f32 v46, s15, v46\nv_add_f32 v46, s56, v46\nv_add_f32 v46, s57, v46")
        a("v_cvt_pk_bf16_f32 v46, v46, v46")
        a("v_lshlrev_b32 v46, 16, v46")
        a("v_mul_f32 v46, 0xbfb8aa3b, v46")
        a("v_exp_f32 v46, v46")
        a("s_nop 0")
        a("v_add_f32 v46, 1.0, v46")
        a("v_rcp_f32 v46, v46")
        a("s_nop 0")
        a("v_cvt_pk_bf16_f32 v46, v46, v46")
        a("v_lshlrev_b32 v46, 16, v46")
        a("v_sub_f32 v47, 1.0, v46")
        a("v_cvt_pk_bf16_f32 v47, v47, v47")
        a("v_lshlrev_b32 v47, 16, v47")
        a(f"v_mul_u32_u24 v10, {8*PART_PITCH}, v7")
        a("v_lshlrev_b32 v11, 4, v6")
        a("v_add_u32 v10, v10, v11")
        a(f"s_mul_i32 s14, s12, {PART_PITCH}")
        a("s_lshl_b32 s15, s13, 8")
        a("s_add_u32 s14, s14, s15")
        a(f"s_add_u32 s14, s14, {WS_PART}")
        for u in range(9):
            a(f"s_add_u32 s{60+u}, s14, {u*4*8*PART_PITCH}")
        a("v_mov_b32 v80, 0\nv_mov_b32 v81, s43\nv_mov_b32 v82, 0\nv_mov_b32 v83, s43")
        self.lds_wait_ge(D_CNT_O, 8, 24)
        a("s_mov_b32 s57, 0")
        a("L_RPOLLH:")
        for u in range(4, 8):
            a(f"buffer_load_dwordx4 v[{48+4*u}:{51+4*u}], v10, s[44:47], s{60+u} offen sc1")
        a("s_mov_b32 s58, -1\ns_mov_b32 s59, 0")
        a("s_mov_b64 exec, s[58:59]")
        a("buffer_load_dwordx4 v[80:83], v10, s[44:47], s68 offen sc1")
        a("s_mov_b64 exec, -1")
        for u in range(4):
            a(f"buffer_load_dwordx4 v[{48+4*u}:{51+4*u}], v10, s[44:47], s{60+u} offen sc1")
        a("s_add_u32 s57, s57, 1")
        a("s_waitcnt vmcnt(4)")
        a("v_min3_u32 v24, v65, v67, v69\nv_max3_u32 v25, v65, v67, v69")
        a("v_min3_u32 v24, v24, v71, v73\nv_max3_u32 v25, v25, v71, v73")
        a("v_min3_u32 v24, v24, v75, v77\nv_max3_u32 v25, v25, v75, v77")
        a("v_min3_u32 v24, v24, v79, v81\nv_max3_u32 v25, v25, v79, v81")
        a("v_min_u32 v24, v24, v83\nv_max_u32 v25, v25, v83")
        a("v_cmp_ne_u32 vcc, s43, v24")
        a("v_cmp_ne_u32 s[58:59], s43, v25")
        a("s_or_b64 vcc, vcc, s[58:59]")
        a("s_cbranch_vccz L_RGOTH")
        a("s_waitcnt vmcnt(0)")
        a("s_cmp_lt_u32 s57, 0x10000")
        a("s_cbranch_scc1 L_RPOLLH")
        a("L_RGOTH:")
        a("v_add_f32 v28, v64, v68\nv_add_f32 v29, v66, v70")
        a("v_add_f32 v32, v72, v76\nv_add_f32 v33, v74, v78")
        a("v_add_f32 v28, v28, v32\nv_add_f32 v29, v29, v33")
        a("v_add_f32 v28, v28, v80\nv_add_f32 v29, v29, v82")
        for swap in ("v_permlane32_swap_b32", "v_permlane16_swap_b32"):
            a("v_mov_b32 v30, v28\nv_mov_b32 v31, v29")
            a("s_nop 1")
            a(f"{swap} v28, v30\n{swap} v29, v31")
            a("s_nop 1")
            a("v_add_f32 v28, v28, v30\nv_add_f32 v29, v29, v31")
        a("v_cvt_pk_bf16_f32 v31, v28, v29")
        a("v_lshlrev_b32 v28, 16, v31\nv_and_b32 v29, 0xffff0000, v31")
        a("v_mul_f32 v28, v47, v28\nv_mul_f32 v29, v47, v29")
        a("v_cvt_pk_bf16_f32 v31, v28, v29")
        a("v_lshlrev_b32 v28, 16, v31\nv_and_b32 v29, 0xffff0000, v31")
        a("s_mul_i32 s14, s12, 1152")
        a("s_lshl_b32 s15, s13, 6")
        a("s_add_u32 s14, s14, s15")
        a("v_lshlrev_b32 v11, 2, v6")
        a("v_add_u32 v11, s14, v11")
        a("s_mov_b32 s52, s36\ns_mov_b32 s53, s37\ns_mov_b32 s54, 9216\ns_mov_b32 s55, 0x00020000")
        a("s_mov_b32 s57, 0")
        a("s_branch L_RCHK")
        a("L_RPOLL:")
        for u in range(4):
            a(f"buffer_load_dwordx4 v[{48+4*u}:{51+4*u}], v10, s[44:47], s{60+u} offen sc1")
        a("s_add_u32 s57, s57, 1")
        a("L_RCHK:")
        a("s_waitcnt vmcnt(0)")
        a("v_min3_u32 v24, v49, v51, v53\nv_max3_u32 v25, v49, v51, v53")
        a("v_min3_u32 v24, v24, v55, v57\nv_max3_u32 v25, v25, v55, v57")
        a("v_min3_u32 v24, v24, v59, v61\nv_max3_u32 v25, v25, v59, v61")
        a("v_min_u32 v24, v24, v63\nv_max_u32 v25, v25, v63")
        a("v_add_f32 v26, v48, v52\nv_add_f32 v27, v50, v54")
        a("v_cmp_ne_u32 vcc, s43, v24")
        a("v_cmp_ne_u32 s[58:59], s43, v25")
        a("v_add_f32 v30, v56, v60\nv_add_f32 v31, v58, v62")
        a("s_or_b64 vcc, vcc, s[58:59]")
        a("s_cbranch_vccz L_RGOT")
        a("s_cmp_lt_u32 s57, 0x10000")
        a("s_cbranch_scc1 L_RPOLL")
        a("L_RGOT:")
        self.stamp(6)
        a("v_add_f32 v26, v26, v30\nv_add_f32 v27, v27, v31")
        for swap in ("v_permlane32_swap_b32", "v_permlane16_swap_b32"):
            a("v_mov_b32 v30, v26\nv_mov_b32 v31, v27")
            a("s_nop 1")
            a(f"{swap} v26, v30\n{swap} v27, v31")
            a("s_nop 1")
            a("v_add_f32 v26, v26, v30\nv_add_f32 v27, v27, v31")
        a("v_cvt_pk_bf16_f32 v30, v26, v27")
        a("v_lshlrev_b32 v26, 16, v30\nv_and_b32 v27, 0xffff0000, v30")
        a("v_mul_f32 v26, v46, v26\nv_mul_f32 v27, v46, v27")
        a("v_cvt_pk_bf16_f32 v30, v26, v27")
        a("v_lshlrev_b32 v26, 16, v30\nv_and_b32 v27, 0xffff0000, v30")
        a("v_add_f32 v26, v26, v28\nv_add_f32 v27, v27, v29")
        a("v_cvt_pk_bf16_f32 v30, v26, v27")
        a("s_mov_b64 exec, 0xffff")
        a("buffer_store_dword v30, v11, s[52:55], 0 offen")
        a("s_cmp_eq_u32 s11, 0")
        a("s_cbranch_scc0 L_RDONE")
        a("s_mov_b64 exec, 1")
        a("v_mov_b32 v10, 0\nv_mov_b32 v11, s43")
        a("buffer_store_dword v11, v10, s[44:47], 0 offen sc1")
        a("L_RDONE:")
        a("s_mov_b64 exec, -1")
        self.stamp(7)

    def epilogue(self):
        a = self.a
        a("L_FIN:")
        if self.stamps:
            a("s_lshl_b32 s14, s2, 4")
            a("s_add_u32 s14, s14, s3")
            a("s_lshl_b32 s14, s14, 6")
            a(f"s_add_u32 s14, s14, {STAMP_OFF}")
            a("s_add_u32 s40, s40, s14\ns_addc_u32 s41, s41, 0")
            a("v_mov_b32 v3, 0")
            a("v_and_b32 v4, 63, v0")
            a("v_lshlrev_b32 v4, 3, v4")
            a("s_mov_b64 exec, 0xff")
            a("global_store_dwordx2 v4, v[2:3], s[40:41]")
        a("L_END:")
        a("s_endpgm")

    def build(self):
        if self.stamps:
            pass
        self.prologue()
        self.kwave()
        self.vwave()
        self.post()
        self.epilogue()
        return wrap(self.a.text(), NWG, 1024, LDS_ALLOC, 128, sgpr=102)

if __name__ == "__main__":
    stamps = "--stamps" in sys.argv
    out = [x for x in sys.argv[1:] if not x.startswith("--")]
    txt = Gen(stamps=stamps).build()
    open(out[0] if out else "k.s", "w").write(txt)
```

```python
PLANS = {
    "A": dict(nL=[0, 2, 0, 14, 2, 13, 4, 13], sorder=[0, 2, 1, 3, 4, 5, 6, 7], nD=[32, 30, 32, 4, 30, 3, 28, 3]),
    "B": dict(nL=[0, 0, 0, 16, 0, 16, 0, 16], sorder=[0, 2, 1, 3, 4, 5, 6, 7], nD=[32, 32, 32, 1, 32, 1, 32, 0]),
    "U": dict(nL=[6]*8, sorder=[0, 2, 1, 3, 4, 5, 6, 7], nD=[21, 20, 20, 20, 21, 20, 20, 20]),
    "P": dict(nL=[0, 12, 0, 12, 0, 12, 0, 12], sorder=[0, 2, 1, 3, 4, 5, 6, 7], nD=[32, 9, 32, 8, 32, 9, 32, 8]),
    "C": dict(nL=[0, 4, 0, 13, 2, 13, 4, 12], sorder=[0, 2, 1, 3, 4, 5, 6, 7], nD=[32, 28, 32, 4, 30, 4, 28, 4]),
}
def tables(plan):
    p = PLANS[plan]
    nL, nD = p["nL"], p["nD"]
    assert sum(nL) == 48 and sum(nD) == 162, (sum(nL), sum(nD))
    Lbase = [sum(nL[:x]) for x in range(8)]
    nS = [32 - n for n in nL]
    Sbase = [0]*8
    acc = 0
    for x in p["sorder"]:
        Sbase[x] = acc; acc += nS[x]
    assert acc == 208
    Dbase = [sum(nD[:x]) for x in range(8)]
    for x in range(8): assert nD[x] <= nS[x]
    return nL, Lbase, Sbase, nD, Dbase
def roles(plan):
    nL, Lbase, Sbase, nD, Dbase = tables(plan)
    role, td = [], []
    for w in range(256):
        x, i = w & 7, w >> 3
        if i < nL[x]:
            role.append(Lbase[x] + i); td.append(255)
        else:
            ih = i - nL[x]
            role.append(48 + Sbase[x] + ih)
            td.append(Dbase[x] + ih if ih < nD[x] else 255)
    assert sorted(role) == list(range(256))
    assert sorted(t for t in td if t != 255) == list(range(162))
    return role, td
def pack(bs):
    v = 0
    for i, b in enumerate(bs): v |= (b & 0xff) << (8 * i)
    return v & 0xffffffff, v >> 32
if __name__ == "__main__":
    for k in PLANS:
        r, t = roles(k); print(k, tables(k))
```

```python
import sys
from asmlib import *
import rolemap

NWG = 256
NLIGHT = 48
WD0 = 46
L_W = 0
L_KSCR = 98304
L_SMALL = 131072
L_S1SLOT = 73728
L_OSLOT = L_KSCR
L_Q = L_SMALL + 4096
L_P = L_Q + 512
L_BM = L_P + 2048
BM_PITCH = 528
LDS_BYTES = L_BM + 8 * BM_PITCH
LDS_ALLOC = 143360
D_L = 768
D_CNT_S1 = 776
D_FLAG_Q = 777
D_CNT_M = 778
D_CNT_O = 779
D_CNT_W = 780
D_CNT_HA = 781
D_CNT_VISS = 782
D_FLAG_S1P = 783
D_FLAG_P = 784
D_CNT_KISS = 792
D_CNT_VL = 793
D_ZERO = 800
D_M = 1022
def sm(d): return L_SMALL + 4 * d
WS_EPOCH = 0
WS_FO = 0x4000
WS_F2 = 0x8000
WS_F3 = 0x9000
WS_S1 = 0x10000
S1_PITCH = 3328 * 16
WS_O = 0x100000
WS_PART = 0x200000
PART_PITCH = 576 * 8
WS_BYTES = 0x400000
STAMP_OFF = 0x10000000
SCALE_LOG2E = 0.08838834764831845 * 1.4426950408889634

import struct
def f32bits(x): return struct.unpack("<I", struct.pack("<f", x))[0]

class Gen:
    def __init__(self, stamps=False, **opt):
        self.a = Asm()
        self.stamps = stamps
        self.opt = dict(wd="late", gate="all", kiss=True, vgpr=128, red0=0, ofl="cnto", kpost_prio=3, plan="P", viss=8, wo="vland", ngate=6)
        self.opt.update(opt)

    def stamp(self, idx):
        if self.stamps:
            self.a("s_memrealtime s[96:97]")
            self.a("s_waitcnt lgkmcnt(0)")
            self.a(f"v_writelane_b32 v2, s96, {idx}")

    def lds_wait_ge(self, dword, value, vt, sleep=1):
        a = self.a
        lab = a.label("L_lw"); done = a.label("L_lwd")
        a(f"v_mov_b32 v{vt+1}, {sm(dword)}")
        a("s_mov_b32 s57, 0")
        a(f"{lab}:")
        a(f"ds_read_b32 v{vt}, v{vt+1}")
        a("s_waitcnt lgkmcnt(0)")
        a(f"v_readfirstlane_b32 s56, v{vt}")
        a("s_add_u32 s57, s57, 1")
        a(f"s_cmp_ge_u32 s56, {value}")
        a(f"s_cbranch_scc1 {done}")
        a(f"s_sleep {sleep}")
        a("s_cmp_lt_u32 s57, 0x40000")
        a(f"s_cbranch_scc1 {lab}")
        a(f"{done}:")

    def lds_inc(self, dword, vt, rtn=False):
        a = self.a
        a("s_mov_b64 s[58:59], exec")
        a("s_mov_b64 exec, 1")
        a(f"v_mov_b32 v{vt}, {sm(dword)}")
        a(f"v_mov_b32 v{vt+1}, 1")
        if rtn:
            a(f"ds_add_rtn_u32 v{vt+2}, v{vt}, v{vt+1}")
            a("s_waitcnt lgkmcnt(0)")
            a(f"v_readfirstlane_b32 s56, v{vt+2}")
        else:
            a(f"ds_add_u32 v{vt}, v{vt+1}")
        a("s_mov_b64 exec, s[58:59]")

    def flag_store(self, soff, vt):
        a = self.a
        a(f"v_mov_b32 v{vt}, s43")
        a("s_mov_b64 exec, 1")
        a(f"buffer_store_dword v{vt}, off, s[44:47], s{soff} sc1")
        a("s_mov_b64 exec, -1")

    def row_reduce(self, op, v):
        a = self.a
        for ctl in ("quad_perm:[1,0,3,2]", "quad_perm:[2,3,0,1]", "row_half_mirror", "row_mirror"):
            a("s_nop 1")
            a(f"{op}_dpp v{v}, v{v}, v{v} {ctl} row_mask:0xf bank_mask:0xf")

    def qfetch(self):
        a = self.a
        lab = a.label("L_qf")
        a(f"s_mul_i32 s14, s4, {S1_PITCH}")
        a("s_lshl_b32 s12, s5, 10")
        a("s_add_u32 s14, s14, s12")
        a("s_lshl_b32 s12, s15, 8")
        a("s_add_u32 s14, s14, s12")
        a(f"s_add_u32 s14, s14, {WS_S1}")
        a("s_add_u32 s12, s40, s14\ns_addc_u32 s13, s41, 0")
        a("s_mov_b32 s11, 0")
        a(f"{lab}:")
        a("s_load_dwordx16 s[16:31], s[12:13], 0 glc")
        a("s_load_dwordx16 s[56:71], s[12:13], 64 glc")
        a("s_load_dwordx16 s[72:87], s[12:13], 128 glc")
        a("s_load_dwordx8 s[32:39], s[12:13], 192 glc")
        a("s_load_dwordx8 s[88:95], s[12:13], 224 glc")
        a("s_add_u32 s11, s11, 1")
        a("s_cmp_ge_u32 s11, 0x8000")
        a(f"s_cbranch_scc1 {lab}_go")
        a("s_waitcnt lgkmcnt(0)")
        a("s_xor_b32 s14, s31, s43\ns_xor_b32 s100, s71, s43\ns_or_b32 s14, s14, s100")
        a("s_xor_b32 s100, s87, s43\ns_or_b32 s14, s14, s100")
        a("s_xor_b32 s100, s39, s43\ns_or_b32 s14, s14, s100")
        a("s_xor_b32 s100, s95, s43\ns_or_b32 s14, s14, s100")
        a(f"s_cbranch_scc1 {lab}")
        regs = list(range(16, 32)) + list(range(56, 72)) + list(range(72, 88)) + list(range(32, 40)) + list(range(88, 96))
        for lane, r in enumerate(regs):
            a(f"v_writelane_b32 v24, s{r}, {lane}")
        a("s_mov_b32 s100, 0xaaaaaaaa\ns_mov_b32 s101, 0xaaaaaaaa")
        a("s_nop 0")
        a("v_cmp_ne_u32 vcc, s43, v24")
        a("s_and_b64 vcc, vcc, s[100:101]")
        a(f"s_cbranch_vccnz {lab}")
        a(f"{lab}_go:")
        a("s_waitcnt lgkmcnt(0)")
        a("v_lshrrev_b32 v25, 1, v1")
        a("v_lshlrev_b32 v25, 2, v25")
        a("s_lshl_b32 s14, s15, 7")
        a(f"s_add_u32 s14, s14, {L_Q}")
        a("v_add_u32 v25, s14, v25")
        a("s_mov_b32 s100, 0x55555555\ns_mov_b32 s101, 0x55555555")
        a("s_mov_b64 exec, s[100:101]")
        a("ds_write_b32 v25, v24")
        a("s_mov_b64 exec, -1")
        a("s_load_dwordx16 s[16:31], s[0:1], 0")
        a("s_load_dwordx8 s[32:39], s[0:1], 64")
        a("s_waitcnt lgkmcnt(0)")
        self.lds_inc(D_FLAG_Q, 25)

    def prologue(self):
        a = self.a
        if self.stamps:
            a("s_memrealtime s[96:97]")
        a(f"s_cmp_ge_u32 s2, {NWG}")
        a("s_cbranch_scc1 L_END")
        a("s_load_dwordx16 s[16:31], s[0:1], 0")
        a("s_load_dwordx8 s[32:39], s[0:1], 64")
        a("s_load_dwordx2 s[40:41], s[0:1], 96")
        nL, Lb, Sb, nD, Db = rolemap.tables(self.opt["plan"])
        a("s_and_b32 s99, s2, 7")
        a("s_lshl_b32 s99, s99, 3")
        def look(tab, dst):
            lo, hi = rolemap.pack(tab)
            a(f"s_mov_b32 s56, 0x{lo:08x}\ns_mov_b32 s57, 0x{hi:08x}")
            a("s_lshr_b64 s[56:57], s[56:57], s99")
            a(f"s_and_b32 s{dst}, s56, 0xff")
        look(nL, 60); look(Lb, 61); look(Sb, 62); look(nD, 63); look(Db, 64)
        a("s_lshr_b32 s65, s2, 3")
        a("s_add_u32 s98, s61, s65")
        a("s_mov_b32 s99, 255")
        a("s_cmp_lt_u32 s65, s60")
        a("s_cbranch_scc1 L_ROLE")
        a("s_sub_u32 s65, s65, s60")
        a("s_add_u32 s98, s62, s65")
        a(f"s_add_u32 s98, s98, {NLIGHT}")
        a("s_cmp_lt_u32 s65, s63")
        a("s_cbranch_scc0 L_ROLE")
        a("s_add_u32 s99, s64, s65")
        a("L_ROLE:")
        a("v_and_b32 v1, 63, v0")
        a("v_lshrrev_b32 v9, 6, v0")
        a("v_lshlrev_b32 v3, 2, v0")
        a(f"v_add_u32 v3, {L_SMALL}, v3")
        a("v_mov_b32 v4, 0")
        a("v_mov_b32 v5, 0xff800000")
        a(f"v_cmp_le_u32 vcc, {D_M}, v0")
        a("v_readfirstlane_b32 s3, v9")
        a("s_nop 0")
        a("v_cndmask_b32 v4, v4, v5, vcc")
        a("ds_write_b32 v3, v4")
        a("v_and_b32 v6, 15, v1")
        a("v_lshrrev_b32 v7, 4, v1")
        a("v_lshlrev_b32 v8, 4, v1")
        a("s_lshr_b32 s4, s2, 5")
        a("s_and_b32 s5, s2, 15")
        a("s_lshl_b32 s6, s4, 4")
        a("s_add_u32 s6, s6, s5")
        a("s_lshl_b32 s6, s6, 20")
        a("s_lshr_b32 s7, s2, 4")
        a("s_and_b32 s7, s7, 1")
        a("s_lshl_b32 s7, s7, 17")
        a("s_add_u32 s6, s6, s7")
        a("s_add_u32 s6, s6, 0xC0000")
        a("s_add_u32 s7, s3, s2")
        a("s_and_b32 s7, s7, 7")
        a("s_lshl_b32 s7, s7, 14")
        a("s_add_u32 s6, s6, s7")
        a("s_add_u32 s7, s6, 4096")
        a("s_add_u32 s8, s6, 8192")
        a("s_add_u32 s9, s6, 12288")
        a("s_and_b32 s10, s3, 7")
        a(f"s_sub_u32 s11, s98, {NLIGHT}")
        a("s_cmp_ge_u32 s3, 8")
        a("s_cbranch_scc1 L_VPRO")
        a("s_waitcnt lgkmcnt(0)")
        self.common_after_args()
        a("s_branch L_KWAVE")
        a("L_VPRO:")
        a("v_and_b32 v10, 7, v6")
        a("v_mul_u32_u24 v10, 1152, v10")
        a("v_lshlrev_b32 v11, 4, v7")
        a("v_add_u32 v10, v10, v11")
        a("s_mul_i32 s14, s10, 192")
        a("v_add_u32 v10, s14, v10")
        a("s_mov_b32 s12, 8192\ns_mov_b32 s13, s11\ns_mov_b32 s54, 4718592")
        a("s_cmp_lt_i32 s11, 64\ns_cbranch_scc1 L_S1SEL0")
        a("s_mov_b32 s54, 5308416\ns_mov_b32 s12, 9216\ns_sub_u32 s13, s11, 64")
        a("s_cmp_lt_u32 s11, 136\ns_cbranch_scc1 L_S1SEL0")
        a("s_sub_u32 s13, s11, 136")
        a("L_S1SEL0:")
        a("s_mov_b32 s55, 0x00020000")
        a("s_lshl_b32 s13, s13, 7")
        self.wtile_lane_offsets(12, 12, 13, 14)
        a("s_mul_i32 s14, s10, 96")
        a("s_mul_i32 s14, s14, s12")
        a("s_add_u32 s14, s14, s13")
        a("s_lshl_b32 s15, s12, 3")
        a("s_mul_i32 s56, s10, 12288")
        a("s_waitcnt lgkmcnt(0)")
        self.common_after_args()

    def common_after_args(self):
        a = self.a
        if self.stamps:
            a("v_mov_b32 v2, 0")
            a("v_writelane_b32 v2, s96, 0")
        a("s_load_dword s42, s[40:41], 0")
        a("s_mov_b32 s44, s40\ns_mov_b32 s45, s41")
        a(f"s_mov_b32 s46, {WS_BYTES}\ns_mov_b32 s47, 0x00020000")

    def tag_ready(self):
        a = self.a
        a("s_waitcnt lgkmcnt(0)")
        a("s_mul_i32 s43, s42, 0x9E3779B1")
        a("s_add_u32 s43, s43, 0x7F4A7C15")

    def wtile_lane_offsets(self, pitch_sgpr, ve, vo, vt):
        a = self.a
        a(f"v_lshrrev_b32 v{vt}, 3, v1")
        a(f"v_mul_lo_u32 v{ve}, v{vt}, s{pitch_sgpr}")
        a(f"v_and_b32 v{vt}, 1, v7")
        a(f"v_lshlrev_b32 v{vt}, 1, v{vt}")
        a(f"v_and_b32 v{vo}, 7, v1")
        a(f"v_xor_b32 v{vt}, v{vt}, v{vo}")
        a(f"v_lshlrev_b32 v{vo}, 4, v{vt}")
        a(f"v_add_u32 v{ve}, v{ve}, v{vo}")
        a(f"v_xor_b32 v{vo}, 64, v{ve}")

    def tr_addr(self, v0, base_const=None, base_sgpr=None):
        a = self.a
        t = v0 + 3
        a(f"v_lshrrev_b32 v{v0}, 2, v6")
        a(f"v_lshlrev_b32 v{t}, 3, v7")
        a(f"v_add_u32 v{t}, v{t}, v{v0}")
        a(f"v_lshlrev_b32 v{t}, 7, v{t}")
        a(f"v_lshrrev_b32 v{v0}, 1, v{v0}")
        a(f"v_and_b32 v{v0+1}, 1, v7")
        a(f"v_lshlrev_b32 v{v0+1}, 1, v{v0+1}")
        a(f"v_or_b32 v{v0}, v{v0}, v{v0+1}")
        a(f"v_lshlrev_b32 v{v0}, 5, v{v0}")
        a(f"v_add_u32 v{t}, v{t}, v{v0}")
        a(f"v_and_b32 v{v0}, 3, v6")
        a(f"v_lshlrev_b32 v{v0}, 3, v{v0}")
        a(f"v_add_u32 v{v0}, v{t}, v{v0}")
        if base_sgpr is not None:
            a(f"v_add_u32 v{v0}, s{base_sgpr}, v{v0}")
        elif base_const:
            a(f"v_add_u32 v{v0}, {base_const}, v{v0}")
        a(f"v_xor_b32 v{v0+1}, 32, v{v0}")
        a(f"v_xor_b32 v{v0+2}, 64, v{v0}")
        a(f"v_xor_b32 v{v0+3}, 0x60, v{v0}")

    def s1job(self):
        a = self.a
        a("s_setprio 3")
        a("s_mov_b32 s52, s22\ns_mov_b32 s53, s23")
        a("s_cmp_lt_u32 s11, 64\ns_cbranch_scc1 L_S1SEL")
        a("s_mov_b32 s52, s28\ns_mov_b32 s53, s29")
        a("s_cmp_lt_u32 s11, 136\ns_cbranch_scc1 L_S1SEL")
        a("s_mov_b32 s52, s30\ns_mov_b32 s53, s31")
        a("L_S1SEL:")
        for u in range(12):
            a(f"s_add_u32 m0, s56, {L_W + u*1024}")
            a("s_add_u32 s14, s14, s15" if u > 0 else "s_nop 0")
            a(f"buffer_load_dwordx4 v{12 + (u & 1)}, s[52:55], s14 offen nt lds")
        for ks in range(3):
            a(f"global_load_dwordx4 v[{16+4*ks}:{19+4*ks}], v10, s[16:17] offset:{64*ks}")
        a("s_barrier")
        self.stamp(1)
        self.tr_addr(28, base_sgpr=56)
        a("s_waitcnt vmcnt(0)")
        def rd(ks):
            for t in range(4):
                for hf in range(2):
                    r = 48 + (ks*4+t)*4 + hf*2
                    a(f"ds_read_b64_tr_b16 v[{r}:{r+1}], v{28+t} offset:{ks*4096 + hf*512}")
        def mm(ks):
            for t in range(4):
                r = 48 + (ks*4+t)*4
                c = "0" if ks == 0 else f"v[{32+4*t}:{35+4*t}]"
                a(f"v_mfma_f32_16x16x32_bf16 v[{32+4*t}:{35+4*t}], v[{r}:{r+3}], v[{16+4*ks}:{19+4*ks}], {c}")
        rd(0)
        a("s_waitcnt lgkmcnt(7)")
        rd(1)
        a("s_waitcnt lgkmcnt(8)")
        mm(0)
        rd(2)
        a("s_waitcnt lgkmcnt(8)")
        mm(1)
        a("s_waitcnt lgkmcnt(0)")
        mm(2)
        a("v_lshlrev_b32 v10, 3, v7")
        a("v_add_u32 v10, v10, v6")
        a("v_lshlrev_b32 v10, 4, v10")
        a("s_lshl_b32 s14, s10, 11")
        a(f"s_add_u32 s14, s14, {L_S1SLOT}")
        a("v_add_u32 v10, s14, v10")
        a("s_mov_b32 s58, 0x00ff00ff\ns_mov_b32 s59, 0x00ff00ff")
        a("s_nop 1")
        a("s_mov_b64 exec, s[58:59]")
        for t in range(4):
            a(f"ds_write_b128 v10, v[{32+4*t}:{35+4*t}] offset:{t*512}")
        a("s_mov_b64 exec, -1")
        a("s_waitcnt lgkmcnt(0)")
        self.lds_inc(D_CNT_S1, 10, rtn=True)
        a("s_cmp_eq_u32 s56, 5")
        a("s_cbranch_scc0 L_S1DONE")
        a("v_and_b32 v10, 31, v1")
        a("v_lshlrev_b32 v10, 4, v10")
        a("v_lshrrev_b32 v11, 5, v1")
        a("v_lshlrev_b32 v12, 9, v11")
        a("v_add_u32 v10, v10, v12")
        a(f"v_add_u32 v10, {L_S1SLOT}, v10")
        for sl in range(6):
            for i in range(2):
                r = 48 + (sl*2+i)*4
                a(f"ds_read_b128 v[{r}:{r+3}], v10 offset:{sl*2048 + i*1024}")
        a("v_and_b32 v12, 7, v1")
        a(f"s_mov_b32 s14, {S1_PITCH}")
        a("v_mul_lo_u32 v12, v12, s14")
        a("v_bfe_u32 v13, v1, 3, 2")
        a("v_lshlrev_b32 v14, 2, v11")
        a("v_add_u32 v13, v13, v14")
        a("v_lshlrev_b32 v13, 4, v13")
        a("v_add_u32 v12, v12, v13")
        a("s_lshl_b32 s14, s11, 8")
        a(f"s_add_u32 s14, s14, {WS_S1}")
        self.tag_ready()
        for i in range(2):
            for c in range(4):
                R = lambda sl: 48 + (sl*2+i)*4 + c
                d = 16 + 4*i + c
                a(f"v_add_f32 v{d}, v{R(0)}, v{R(1)}")
                a(f"v_add_f32 v{R(2)}, v{R(2)}, v{R(3)}")
                a(f"v_add_f32 v{R(4)}, v{R(4)}, v{R(5)}")
                a(f"v_add_f32 v{d}, v{d}, v{R(2)}")
                a(f"v_add_f32 v{d}, v{d}, v{R(4)}")
        a("v_mov_b32 v25, s43\nv_mov_b32 v27, s43\nv_mov_b32 v29, s43\nv_mov_b32 v31, s43")
        a("v_cvt_pk_bf16_f32 v24, v16, v17")
        a("v_cvt_pk_bf16_f32 v26, v18, v19")
        a("v_cvt_pk_bf16_f32 v28, v20, v21")
        a("v_cvt_pk_bf16_f32 v30, v22, v23")
        a("buffer_store_dwordx4 v[24:27], v12, s[44:47], s14 offen sc1")
        a("buffer_store_dwordx4 v[28:31], v12, s[44:47], s14 offen offset:128 sc1")
        self.lds_inc(D_FLAG_S1P, 10)
        a("L_S1DONE:")
        self.stamp(6)

    def kwave(self):
        a = self.a
        o = self.opt
        a("L_KWAVE:")
        a("s_mov_b32 s48, s18\ns_mov_b32 s49, s19\ns_mov_b32 s50, 0x8000000\ns_mov_b32 s51, 0x00020000")
        a("s_setprio 2")
        a("s_barrier")
        self.stamp(1)
        if o["gate"] != "none":
            a(f"s_cmp_ge_u32 s10, {o['ngate']}")
            a("s_cbranch_scc1 L_KLOAD")
            lim = 64 if o["gate"] == "q" else 208
            a(f"s_cmp_ge_u32 s11, {lim}")
            a("s_cbranch_scc1 L_KLOAD")
            self.lds_wait_ge(D_FLAG_S1P, 1, 10)
        a("L_KLOAD:")
        KB = 48
        for u in range(16):
            a(f"buffer_load_dwordx4 v[{KB+4*u}:{KB+4*u+3}], v8, s[48:51], s{6 + u//4} offen offset:{(u%4)*1024} nt")
        self.lds_inc(D_CNT_KISS, 10)
        self.stamp(2)
        a("s_mov_b32 s61, 0")
        a("s_cmp_ge_u32 s99, 162")
        a("s_cbranch_scc1 L_NOHP")
        a("s_cmp_ge_u32 s10, 6")
        a("s_cbranch_scc1 L_NOHP")
        self.haddr()
        a("buffer_load_dwordx4 v[120:123], v8, s[44:47], s14 offen sc1")
        a("buffer_load_dwordx4 v[124:127], v8, s[44:47], s15 offen sc1")
        a("s_mov_b32 s61, 2")
        if o["wd"] == "kearly":
            self.wd_dma_early(waitflag=True)
        a("L_NOHP:")
        a(f"s_lshl_b32 s56, s10, 12")
        a(f"s_add_u32 s56, s56, {L_KSCR}")
        a("v_xor_b32 v10, v6, v7")
        a("v_lshlrev_b32 v10, 4, v10")
        a("v_lshlrev_b32 v11, 8, v7")
        a("v_add_u32 v12, v10, v11")
        a("v_add_u32 v12, s56, v12")
        a("v_xor_b32 v13, 64, v12\nv_xor_b32 v14, 0x80, v12\nv_xor_b32 v15, 0xc0, v12")
        a("v_lshlrev_b32 v11, 8, v6")
        a("v_add_u32 v16, v10, v11")
        a("v_add_u32 v16, s56, v16")
        a("v_xor_b32 v17, 64, v16\nv_xor_b32 v18, 0x80, v16\nv_xor_b32 v19, 0xc0, v16")
        a("v_bfe_u32 v20, v6, 2, 1")
        a("v_lshlrev_b32 v20, 8, v20")
        a("v_lshlrev_b32 v21, 4, v7")
        a("v_add_u32 v20, v20, v21")
        a(f"v_add_u32 v20, {L_Q}, v20")
        self.tag_ready()
        a("s_cmp_lt_u32 s10, 6")
        a("s_cbranch_scc1 L_QWAIT")
        a("s_sub_u32 s15, s10, 6")
        self.qfetch()
        a("s_mov_b32 s61, 0")
        a("s_cmp_ge_u32 s99, 162")
        a("s_cbranch_scc1 L_QWAIT")
        self.haddr()
        a("buffer_load_dwordx4 v[120:123], v8, s[44:47], s14 offen sc1")
        a("buffer_load_dwordx4 v[124:127], v8, s[44:47], s15 offen sc1")
        a("s_mov_b32 s61, 2")
        a("L_QWAIT:")
        self.lds_wait_ge(D_FLAG_Q, 4, 22)
        self.stamp(4)
        for j in range(4):
            a(f"ds_read_b128 v[{32+4*j}:{35+4*j}], v20 offset:{64*j}")
        a("s_cmp_eq_u32 s61, 0")
        a("s_cbranch_scc1 L_KW0")
        if o["wd"] == "kearly":
            a("s_cmp_eq_u32 s61, 2")
            a("s_cbranch_scc1 L_KW2")
            a("s_waitcnt vmcnt(10)")
            a("s_branch L_KW1")
            a("L_KW2:")
        a("s_waitcnt vmcnt(2)")
        a("s_branch L_KW1")
        a("L_KW0:")
        a("s_waitcnt vmcnt(0)")
        a("L_KW1:")
        self.stamp(5)
        ACC = [112, 116, 24, 28]
        def tile_ops(t):
            Gk, tp = t >> 1, t & 1
            for aa in range(4):
                u = 8*Gk + 2*aa + tp
                a(f"ds_write_b128 v{12+aa}, v[{KB+4*u}:{KB+4*u+3}] offset:{aa*1024}")
            for j in range(4):
                u = 8*Gk + 2*j + tp
                a(f"ds_read_b128 v[{KB+4*u}:{KB+4*u+3}], v{16+j}")
        def tile_mm(t):
            Gk, tp = t >> 1, t & 1
            for j in range(4):
                u = 8*Gk + 2*j + tp
                c = "0" if j == 0 else f"v[{ACC[t]}:{ACC[t]+3}]"
                a(f"v_mfma_f32_16x16x32_bf16 v[{ACC[t]}:{ACC[t]+3}], v[{32+4*j}:{35+4*j}], v[{KB+4*u}:{KB+4*u+3}], {c}")
        tile_ops(0)
        a("s_waitcnt lgkmcnt(6)")
        tile_ops(1)
        a("s_waitcnt lgkmcnt(8)")
        tile_mm(0)
        tile_ops(2)
        a("s_waitcnt lgkmcnt(8)")
        tile_mm(1)
        tile_ops(3)
        a("s_waitcnt lgkmcnt(8)")
        tile_mm(2)
        a("s_waitcnt lgkmcnt(0)")
        tile_mm(3)
        a("v_and_b32 v22, 1, v7")
        a("v_lshlrev_b32 v22, 2, v22")
        a(f"v_add_u32 v23, {sm(D_L)}, v22")
        a(f"v_add_u32 v22, {sm(D_M)}, v22")
        a("s_mov_b32 s58, 0x00010001\ns_mov_b32 s59, 0")
        a("v_max_f32 v21, v112, v116")
        a("s_nop 3")
        a("v_max3_f32 v21, v21, v24, v28")
        self.row_reduce("v_max_f32", 21)
        a("s_mov_b64 exec, s[58:59]")
        a("ds_max_f32 v22, v21")
        a("s_mov_b64 exec, -1")
        a("s_waitcnt lgkmcnt(0)")
        self.lds_inc(D_CNT_M, 26)
        a("v_and_b32 v30, 3, v6")
        a("v_lshlrev_b32 v30, 2, v30")
        a("v_lshrrev_b32 v31, 2, v6")
        a("v_add_u32 v30, v30, v31")
        a("v_lshlrev_b32 v30, 2, v30")
        a("v_lshlrev_b32 v31, 7, v7")
        a("v_add_u32 v30, v30, v31")
        a("s_lshl_b32 s14, s10, 8")
        a(f"s_add_u32 s14, s14, {L_P}")
        a("v_add_u32 v30, s14, v30")
        a("s_lshl_b32 s15, s10, 2")
        a(f"s_add_u32 s15, s15, {sm(D_FLAG_P)}")
        a(f"s_mov_b32 s14, 0x{f32bits(SCALE_LOG2E):08x}")
        self.lds_wait_ge(D_CNT_M, 8, 26, sleep=0)
        a("ds_read_b32 v21, v22")
        a("s_waitcnt lgkmcnt(0)")
        a("v_mul_f32 v21, s14, v21")
        E = [112, 116, 24, 28]
        for t in range(4):
            a(f"v_fma_f32 v{E[t]}, v{E[t]}, s14, -v21")
        for t in range(4):
            a(f"v_exp_f32 v{E[t]}, v{E[t]}")
        a("s_nop 0")
        a("v_add_f32 v26, v112, v116")
        a("v_add_f32 v27, v24, v28")
        a("v_cvt_pk_bf16_f32 v25, v112, v116")
        a("v_cvt_pk_bf16_f32 v29, v24, v28")
        a("v_add_f32 v26, v26, v27")
        a("s_mov_b32 s58, -1\ns_mov_b32 s59, 0")
        a("s_mov_b64 exec, s[58:59]")
        a("ds_write_b32 v30, v25")
        a("ds_write_b32 v30, v29 offset:64")
        a("s_mov_b64 exec, -1")
        self.row_reduce("v_add_f32", 26)
        a("s_mov_b32 s58, 0x00010001\ns_mov_b32 s59, 0")
        a("s_mov_b64 exec, s[58:59]")
        a("ds_add_f32 v23, v26")
        a("s_mov_b64 exec, -1")
        a("v_mov_b32 v30, s15\nv_mov_b32 v31, 1")
        a("s_waitcnt lgkmcnt(0)")
        a("s_mov_b64 exec, 1")
        a("ds_write_b32 v30, v31")
        a("s_mov_b64 exec, -1")
        self.stamp(6)
        a("s_branch L_KPOST")

    def haddr(self):
        a = self.a
        a("s_mov_b32 s11, s99")
        a("s_mul_i32 s12, s11, 7282")
        a("s_lshr_b32 s12, s12, 16")
        a("s_mul_i32 s13, s12, 9")
        a("s_sub_u32 s13, s11, s13")
        a(f"s_mul_i32 s14, s10, {S1_PITCH}")
        a("s_lshl_b32 s15, s12, 10")
        a("s_add_u32 s14, s14, s15")
        a(f"s_add_u32 s14, s14, {WS_S1 + 1024*16}")
        a(f"s_add_u32 s15, s14, {1152*16}")

    def wd_dma_early(self, waitflag=False):
        a = self.a
        a("s_cmp_ge_u32 s99, 162")
        a("s_cbranch_scc1 L_NOWD")
        a("s_cmp_ge_u32 s10, 4")
        a("s_cbranch_scc1 L_NOWD")
        if waitflag:
            self.lds_wait_ge(D_FLAG_S1P, 1, 10)
        a("s_mov_b32 s11, s99")
        a("s_mul_i32 s12, s11, 7282")
        a("s_lshr_b32 s12, s12, 16")
        a("s_mul_i32 s13, s12, 9")
        a("s_sub_u32 s13, s11, s13")
        a("s_mov_b32 s52, s32\ns_mov_b32 s53, s33\ns_mov_b32 s54, 5308416\ns_mov_b32 s55, 0x00020000")
        a("s_mov_b32 s56, 1152")
        self.wtile_lane_offsets(56, 12, 13, 14)
        a("s_lshl_b32 s14, s12, 8")
        a("s_lshl_b32 s15, s10, 6")
        a("s_add_u32 s14, s14, s15")
        a("s_mul_i32 s14, s14, 1152")
        a("s_lshl_b32 s15, s13, 7")
        a("s_add_u32 s14, s14, s15")
        a("s_mul_i32 s15, s10, 12288")
        for u in range(8):
            a(f"s_add_u32 m0, s15, {L_W + u*1024}")
            a(f"s_add_u32 s14, s14, {8*1152}" if u > 0 else "s_nop 0")
            a(f"buffer_load_dwordx4 v{12 + (u & 1)}, s[52:55], s14 offen nt lds")
        a("s_mov_b32 s61, 10" if waitflag else "s_mov_b32 s61, 1")
        a("L_NOWD:")

    def vwave(self):
        a = self.a
        o = self.opt
        a("L_VWAVE:")
        a("s_mov_b32 s48, s20\ns_mov_b32 s49, s21\ns_mov_b32 s50, 0x8000000\ns_mov_b32 s51, 0x00020000")
        a(f"s_cmp_lt_u32 s98, {NLIGHT}")
        a("s_cbranch_scc1 L_VBAR")
        a("s_cmp_ge_u32 s10, 6")
        a("s_cbranch_scc1 L_VBAR")
        self.s1job()
        a("s_setprio 1")
        a("s_branch L_VGATE")
        a("L_VBAR:")
        a("s_setprio 1")
        a("s_barrier")
        self.stamp(1)
        VB = 48
        a("s_cmp_lt_u32 s3, 14")
        a("s_cbranch_scc1 L_VGATE")
        self.tag_ready()
        a("s_sub_u32 s15, s3, 12")
        self.qfetch()
        self.stamp(7)
        a("L_VGATE:")
        if o["kiss"]:
            self.lds_wait_ge(D_CNT_KISS, 8, 22)
        a("s_mov_b32 s61, 0")
        if o["wd"] == "early":
            self.wd_dma_early()
        for u in range(16):
            a(f"buffer_load_dwordx4 v[{VB+4*u}:{VB+4*u+3}], v8, s[48:51], s{6 + u//4} offen offset:{(u%4)*1024} nt")
        self.lds_inc(D_CNT_VISS, 22)
        self.stamp(2)
        a("s_lshl_b32 s14, s10, 8")
        a(f"s_add_u32 s14, s14, {L_P}")
        a("v_and_b32 v10, 1, v6")
        a("v_lshlrev_b32 v10, 7, v10")
        a("v_lshlrev_b32 v11, 4, v7")
        a("v_add_u32 v10, v10, v11")
        a("v_add_u32 v10, s14, v10")
        a(f"v_mov_b32 v11, {sm(D_ZERO)}")
        a("v_and_b32 v16, 14, v6")
        for gp in range(4):
            a(f"v_cmp_eq_u32 vcc, {4*gp}, v16")
            a("s_nop 1")
            a(f"v_cndmask_b32 v{12+gp}, v11, v10, vcc")
        a("v_lshlrev_b32 v10, 3, v6")
        a("v_add_u32 v10, v10, v7")
        a("v_lshlrev_b32 v10, 2, v10")
        a("s_lshl_b32 s14, s10, 10")
        a(f"s_add_u32 s14, s14, {L_OSLOT}")
        a("v_add_u32 v10, s14, v10")
        a("s_mov_b32 s12, 0x05040100\ns_mov_b32 s13, 0x07060302")
        a("s_lshl_b32 s60, s5, 10")
        a("s_lshl_b32 s14, s4, 7")
        a("s_add_u32 s60, s60, s14")
        a("s_lshr_b32 s14, s2, 4\ns_and_b32 s14, s14, 1\ns_lshl_b32 s14, s14, 2")
        a("s_add_u32 s60, s60, s14")
        a(f"s_add_u32 s60, s60, {WS_FO}")
        self.tag_ready()
        a("v_mov_b32 v11, s43")
        lab = a.label("L_pw")
        a("s_lshl_b32 s14, s10, 2")
        a(f"s_add_u32 s14, s14, {sm(D_FLAG_P)}")
        a("v_mov_b32 v18, s14")
        a("s_mov_b32 s57, 0")
        a(f"{lab}:")
        a("ds_read_b32 v17, v18")
        a("s_waitcnt lgkmcnt(0)")
        a("v_readfirstlane_b32 s56, v17")
        a("s_add_u32 s57, s57, 1")
        a("s_cmp_ge_u32 s56, 1")
        a(f"s_cbranch_scc1 {lab}_d")
        a("s_sleep 2")
        a("s_cmp_lt_u32 s57, 0x40000")
        a(f"s_cbranch_scc1 {lab}")
        a(f"{lab}_d:")
        self.stamp(3)
        for gp in range(4):
            a(f"ds_read_b128 v[{28+4*gp}:{31+4*gp}], v{12+gp}")
        a("s_waitcnt vmcnt(8)")
        if o["wd"] == "early":
            a("s_cmp_eq_u32 s61, 0")
            a("s_cbranch_scc1 L_NOWINC")
            self.lds_inc(D_CNT_W, 16)
            a("L_NOWINC:")
        T = [112, 116, 44, 16]
        def L(G, i, d): return VB + 32*G + 4*i + d
        for ph in range(2):
            for dd in range(2):
                d = 2*ph + dd
                for e in range(2):
                    for rp in range(4):
                        a(f"v_perm_b32 v{T[2*dd+e]+rp}, v{L(0,2*rp+1,d)}, v{L(0,2*rp,d)}, s{12+e}")
            if ph == 0:
                a("s_waitcnt lgkmcnt(0)")
            else:
                a("s_nop 1")
            for jj in range(4):
                c = "0" if jj == 0 else f"v[{20+4*ph}:{23+4*ph}]"
                a(f"v_mfma_f32_16x16x32_bf16 v[{20+4*ph}:{23+4*ph}], v[{28+4*jj}:{31+4*jj}], v[{T[jj]}:{T[jj]+3}], {c}")
        a("s_nop 7")
        for gp in range(4):
            a(f"ds_read_b128 v[{28+4*gp}:{31+4*gp}], v{12+gp} offset:64")
        for rp in range(4):
            a(f"s_waitcnt vmcnt({6 - 2*rp})")
            if rp == 3 and o["ofl"] == "land":
                a("s_mov_b64 exec, 1")
                a(f"v_mov_b32 v16, {sm(D_CNT_VL)}\nv_mov_b32 v17, 1")
                a("ds_add_rtn_u32 v18, v16, v17")
                a("s_mov_b64 exec, -1")
            for d in range(4):
                for e in range(2):
                    a(f"v_perm_b32 v{VB+4*(2*d+e)+rp}, v{L(1,2*rp+1,d)}, v{L(1,2*rp,d)}, s{12+e}")
        self.stamp(4)
        a("s_waitcnt lgkmcnt(0)")
        if o["ofl"] == "land":
            a("v_readfirstlane_b32 s56, v18")
            a("s_cmp_eq_u32 s56, 7")
            a("s_cbranch_scc0 L_NOFL")
            a("s_mov_b64 exec, 1")
            a("buffer_store_dword v11, off, s[44:47], s60 sc1")
            a("s_mov_b64 exec, -1")
            a("L_NOFL:")
        for jj in range(4):
            for ph in range(2):
                j = 4*ph + jj
                a(f"v_mfma_f32_16x16x32_bf16 v[{20+4*ph}:{23+4*ph}], v[{28+4*jj}:{31+4*jj}], v[{VB+4*j}:{VB+4*j+3}], v[{20+4*ph}:{23+4*ph}]")
        a("s_nop 7")
        for r in range(2):
            a(f"ds_write2_b32 v10, v{20+r}, v{24+r} offset0:{r*128} offset1:{r*128+4}")
        a("s_waitcnt lgkmcnt(0)")
        self.lds_inc(D_CNT_O, 28, rtn=True)
        a("s_cmp_eq_u32 s56, 7")
        a("s_cbranch_scc0 L_VPOST")
        if o["ofl"] == "cnto":
            a("s_mov_b64 exec, 1")
            a("buffer_store_dword v11, off, s[44:47], s60 sc1")
            a("s_mov_b64 exec, -1")
        a(f"v_add_u32 v28, {L_OSLOT}, v8")
        for sl in range(8):
            a(f"ds_read_b128 v[{48+4*sl}:{51+4*sl}], v28 offset:{sl*1024}")
        a("v_lshrrev_b32 v29, 5, v1")
        a("v_lshlrev_b32 v29, 2, v29")
        a(f"v_add_u32 v30, {sm(D_M)}, v29")
        a(f"v_add_u32 v31, {sm(D_L)}, v29")
        a("ds_read_b32 v44, v30")
        a("ds_read_b32 v46, v31")
        a("s_lshl_b32 s14, s2, 12")
        a(f"s_add_u32 s14, s14, {WS_O}")
        a("v_lshlrev_b32 v28, 5, v1")
        a("v_mov_b32 v37, s43\nv_mov_b32 v39, s43\nv_mov_b32 v41, s43\nv_mov_b32 v43, s43\nv_mov_b32 v45, s43\nv_mov_b32 v47, s43")
        a(f"s_mov_b32 s15, 0x{f32bits(SCALE_LOG2E):08x}")
        a("v_lshlrev_b32 v29, 2, v29")
        a("s_mov_b32 s58, 1\ns_mov_b32 s59, 1")
        a("s_waitcnt lgkmcnt(0)")
        for c in range(4):
            R = lambda sl: 48 + 4*sl + c
            a(f"v_add_f32 v{R(0)}, v{R(0)}, v{R(1)}")
            a(f"v_add_f32 v{R(2)}, v{R(2)}, v{R(3)}")
            a(f"v_add_f32 v{R(4)}, v{R(4)}, v{R(5)}")
            a(f"v_add_f32 v{R(6)}, v{R(6)}, v{R(7)}")
            a(f"v_add_f32 v{R(0)}, v{R(0)}, v{R(2)}")
            a(f"v_add_f32 v{R(4)}, v{R(4)}, v{R(6)}")
            a(f"v_add_f32 v{36+2*c}, v{R(0)}, v{R(4)}")
            if c == 1:
                a("buffer_store_dwordx4 v[36:39], v28, s[44:47], s14 offen sc1")
        a("v_mul_f32 v44, s15, v44")
        a("buffer_store_dwordx4 v[40:43], v28, s[44:47], s14 offen offset:16 sc1")
        a("s_mov_b64 exec, s[58:59]")
        a("buffer_store_dwordx4 v[44:47], v29, s[44:47], s14 offen offset:2048 sc1")
        a("s_mov_b64 exec, -1")
        self.stamp(5)
        a("s_branch L_VPOST")

    def post(self):
        a = self.a
        o = self.opt
        early = o["wd"] in ("early", "kearly")
        a("L_KPOST:")
        a(f"s_setprio {o['kpost_prio']}")
        a(f"s_cmp_lt_u32 s98, {NLIGHT}")
        a("s_cbranch_scc1 L_KPOST_LIGHT")
        a("s_cmp_ge_u32 s99, 162")
        a("s_cbranch_scc1 L_HDONE")
        self.haddr()
        a("s_mov_b32 s57, 0")
        a("s_branch L_HCHK")
        a("L_HPOLL:")
        a("s_sleep 8")
        a("buffer_load_dwordx4 v[120:123], v8, s[44:47], s14 offen sc1")
        a("buffer_load_dwordx4 v[124:127], v8, s[44:47], s15 offen sc1")
        a("L_HCHK:")
        a("s_add_u32 s57, s57, 1")
        a("s_waitcnt vmcnt(0)")
        a("v_min3_u32 v32, v121, v123, v125\nv_max3_u32 v33, v121, v123, v125")
        a("v_min_u32 v32, v32, v127\nv_max_u32 v33, v33, v127")
        a("v_cmp_ne_u32 vcc, s43, v32")
        a("v_cmp_ne_u32 s[58:59], s43, v33")
        a("s_or_b64 vcc, vcc, s[58:59]")
        a("s_cbranch_vccz L_HGOT")
        a("s_cmp_lt_u32 s57, 0x10000")
        a("s_cbranch_scc1 L_HPOLL")
        a("L_HGOT:")
        a("s_cmp_eq_u32 s10, 7")
        a("s_cbranch_scc1 L_HG2")
        self.stamp(3)
        a("L_HG2:")
        a("v_lshlrev_b32 v32, 16, v120\nv_and_b32 v33, 0xffff0000, v120\nv_lshlrev_b32 v34, 16, v122\nv_and_b32 v35, 0xffff0000, v122")
        a("v_lshlrev_b32 v36, 16, v124\nv_and_b32 v37, 0xffff0000, v124\nv_lshlrev_b32 v38, 16, v126\nv_and_b32 v39, 0xffff0000, v126")
        a("s_mov_b32 s14, 0xbfb8aa3b")
        for i in range(4):
            a(f"v_mul_f32 v{40+i}, s14, v{32+i}")
        for i in range(4):
            a(f"v_exp_f32 v{40+i}, v{40+i}")
        a("s_nop 0")
        for i in range(4):
            a(f"v_add_f32 v{40+i}, 1.0, v{40+i}")
        for i in range(4):
            a(f"v_rcp_f32 v{40+i}, v{40+i}")
        a("s_nop 0")
        for i in range(4):
            a(f"v_mul_f32 v{40+i}, v{32+i}, v{40+i}")
        a("v_cvt_pk_bf16_f32 v44, v40, v41\nv_cvt_pk_bf16_f32 v45, v42, v43")
        a("v_lshlrev_b32 v40, 16, v44\nv_and_b32 v41, 0xffff0000, v44\nv_lshlrev_b32 v42, 16, v45\nv_and_b32 v43, 0xffff0000, v45")
        for i in range(4):
            a(f"v_mul_f32 v{40+i}, v{40+i}, v{36+i}")
        a("v_cvt_pk_bf16_f32 v44, v40, v41\nv_cvt_pk_bf16_f32 v45, v42, v43")
        a(f"s_mul_i32 s14, s10, {BM_PITCH}")
        a(f"s_add_u32 s14, s14, {L_BM}")
        a("v_lshlrev_b32 v46, 3, v1")
        a("v_add_u32 v46, s14, v46")
        a("ds_write_b64 v46, v[44:45]")
        if not early:
            self.lds_wait_ge(D_CNT_VISS if o["wd"] == "late" else D_CNT_O, o["viss"] if o["wd"] == "late" else 8, 32)
            self.lds_wait_ge(D_FLAG_S1P, 1, 32)
            a("s_mov_b32 s52, s32\ns_mov_b32 s53, s33\ns_mov_b32 s54, 5308416\ns_mov_b32 s55, 0x00020000")
            a("s_mov_b32 s56, 1152")
            self.wtile_lane_offsets(56, 12, 13, 14)
            a("s_lshl_b32 s14, s12, 8")
            a("s_lshl_b32 s15, s10, 5")
            a("s_add_u32 s14, s14, s15")
            a("s_mul_i32 s14, s14, 1152")
            a("s_lshl_b32 s15, s13, 7")
            a("s_add_u32 s14, s14, s15")
            a("s_lshl_b32 s15, s10, 12")
            for u in range(4):
                a(f"s_add_u32 m0, s15, {L_W + u*1024}")
                a(f"s_add_u32 s14, s14, {8*1152}" if u > 0 else "s_nop 0")
                a(f"buffer_load_dwordx4 v{12 + (u & 1)}, s[52:55], s14 offen nt lds")
        a("s_waitcnt vmcnt(0) lgkmcnt(0)")
        self.lds_inc(D_CNT_W, 32)
        a("s_cmp_ge_u32 s10, 4")
        a("s_cbranch_scc1 L_HDONE")
        a("s_lshl_b32 s63, s13, 10")
        a("s_lshl_b32 s14, s12, 2")
        a("s_add_u32 s63, s63, s14")
        a(f"s_add_u32 s63, s63, {WS_F3}")
        a("s_add_u32 s12, s12, 16")
        a("s_lshl_b32 s13, s13, 6")
        a("s_mov_b32 s15, 0")
        a("s_mov_b32 s14, s10")
        if early:
            self.tile_pre(wait=12 if o["wd"] == "early" else 8, ksoff=lambda ks: (ks >> 1) * 12288 + (ks & 1) * 4096)
        else:
            self.tile_pre(wait=8)
        self.stamp(1)
        self.tile_post()
        self.stamp(7)
        self.lds_inc(D_CNT_HA, 32, rtn=True)
        a("s_cmp_eq_u32 s56, 3")
        a("s_cbranch_scc0 L_HDONE")
        a("v_mov_b32 v32, s43")
        a("v_lshlrev_b32 v33, 7, v1")
        a("s_mov_b64 exec, 0xff")
        a("buffer_store_dword v32, v33, s[44:47], s63 offen sc1")
        a("s_mov_b64 exec, -1")
        a("L_HDONE:")
        a("s_cmp_eq_u32 s10, 7")
        a("s_cbranch_scc0 L_FIN")
        a(f"s_sub_u32 s11, s98, {NLIGHT + o['red0']}")
        a("s_cmp_ge_u32 s11, 144")
        a("s_cbranch_scc1 L_FIN")
        a("s_setprio 0")
        self.reducer()
        a("s_branch L_FIN")

        a("L_KPOST_LIGHT:")
        a("s_and_b32 s12, s98, 15")
        a("s_lshr_b32 s13, s98, 4")
        self.lds_wait_ge(D_CNT_VISS if o["wo"] == "viss" else D_CNT_O, 8, 32)
        a("s_mov_b32 s52, s24\ns_mov_b32 s53, s25\ns_mov_b32 s54, 4718592\ns_mov_b32 s55, 0x00020000")
        a("s_mov_b32 s56, 1152")
        self.wtile_lane_offsets(56, 12, 13, 14)
        a("s_lshl_b32 s14, s12, 8")
        a("s_lshl_b32 s15, s10, 5")
        a("s_add_u32 s14, s14, s15")
        a("s_mul_i32 s14, s14, 1152")
        a("s_mul_i32 s15, s13, 384")
        a("s_add_u32 s14, s14, s15")
        a("s_lshl_b32 s15, s10, 12")
        for u in range(4):
            for st in range(3):
                a(f"s_add_u32 m0, s15, {L_W + st*32768 + u*1024}")
                a(f"s_add_u32 s56, s14, {st*128}")
                a(f"buffer_load_dwordx4 v{12 + (u & 1)}, s[52:55], s56 offen nt lds")
            a(f"s_add_u32 s14, s14, {8*1152}")
        a("s_waitcnt vmcnt(0)")
        self.lds_inc(D_CNT_W, 32)
        a("L_VPOST_LIGHT:")
        a("s_cmp_ge_u32 s3, 12")
        a("s_cbranch_scc1 L_LPRE_D")
        a("s_and_b32 s12, s98, 15")
        a("s_lshr_b32 s13, s98, 4")
        a("s_mul_i32 s13, s13, 192")
        a("s_lshr_b32 s15, s3, 2")
        a("s_lshl_b32 s14, s15, 6")
        a("s_add_u32 s13, s13, s14")
        a("s_lshl_b32 s15, s15, 15")
        a("s_and_b32 s14, s3, 3")
        self.tile_pre(wait=8)
        a("L_LPRE_D:")
        a("s_lshr_b32 s4, s3, 1")
        a("s_and_b32 s5, s3, 1")
        a("s_and_b32 s12, s98, 15")
        a("s_lshl_b32 s14, s4, 5")
        a("s_add_u32 s14, s14, s12")
        a("s_lshl_b32 s14, s14, 12")
        a(f"s_add_u32 s14, s14, {WS_O}")
        a("s_lshl_b32 s15, s5, 10")
        a("s_add_u32 s6, s14, s15")
        a("s_add_u32 s7, s6, 0x10000")
        a("s_lshl_b32 s15, s5, 4")
        a("s_add_u32 s8, s14, s15")
        a("s_add_u32 s8, s8, 2048")
        a("s_add_u32 s9, s8, 0x10000")
        a("s_lshl_b32 s60, s12, 10")
        a("s_lshl_b32 s14, s4, 7")
        a("s_add_u32 s60, s60, s14")
        a(f"s_add_u32 s60, s60, {WS_FO}")
        a("s_add_u32 s66, s40, s60\ns_addc_u32 s67, s41, 0")
        a("v_lshlrev_b32 v5, 7, v1")
        a("s_lshr_b32 s63, s98, 4\ns_lshl_b32 s63, s63, 10")
        a("s_lshl_b32 s14, s12, 2")
        a("s_add_u32 s63, s63, s14")
        a(f"s_add_u32 s63, s63, {WS_F2}")
        a(f"s_mul_i32 s14, s4, {BM_PITCH}")
        a("s_lshl_b32 s15, s5, 8")
        a("s_add_u32 s14, s14, s15")
        a(f"s_add_u32 s14, s14, {L_BM}")
        a("v_lshlrev_b32 v11, 2, v1")
        a("v_add_u32 v11, s14, v11")
        a("v_mov_b32 v10, 0")
        a("v_mov_b32 v9, s43")
        a("s_mov_b32 s68, s43\ns_mov_b32 s69, s43")
        a("s_mov_b32 s57, 0")
        a("L_OPRE:")
        a("s_load_dwordx2 s[60:61], s[66:67], 0 glc")
        a("s_add_u32 s57, s57, 1")
        a("s_waitcnt lgkmcnt(0)")
        a("s_cmp_eq_u64 s[60:61], s[68:69]")
        a("s_cbranch_scc1 L_OPRE_D")
        a("s_cmp_lt_u32 s57, 0x10000")
        a("s_cbranch_scc1 L_OPRE")
        a("L_OPRE_D:")
        a("s_mov_b32 s57, 0")
        a("L_OPOLL:")
        a("buffer_load_dwordx4 v[32:35], v10, s[44:47], s8 offen sc1")
        a("buffer_load_dwordx4 v[36:39], v10, s[44:47], s9 offen sc1")
        a("buffer_load_dwordx4 v[24:27], v8, s[44:47], s6 offen sc1")
        a("buffer_load_dwordx4 v[28:31], v8, s[44:47], s7 offen sc1")
        a("s_add_u32 s57, s57, 1")
        a("s_waitcnt vmcnt(2)")
        a("v_max_f32 v40, v32, v36")
        a("v_sub_f32 v42, v32, v40")
        a("v_sub_f32 v43, v36, v40")
        a("v_exp_f32 v42, v42")
        a("v_exp_f32 v43, v43")
        a("v_min3_u32 v44, v33, v35, v37\nv_max3_u32 v45, v33, v35, v37")
        a("v_mul_f32 v40, v42, v34")
        a("v_fma_f32 v40, v43, v38, v40")
        a("v_rcp_f32 v40, v40")
        a("v_min_u32 v44, v44, v39\nv_max_u32 v45, v45, v39")
        a("v_mul_f32 v42, v42, v40")
        a("v_mul_f32 v43, v43, v40")
        a("s_waitcnt vmcnt(0)")
        a("v_min3_u32 v44, v44, v25, v27\nv_max3_u32 v45, v45, v25, v27")
        a("v_min3_u32 v44, v44, v29, v31\nv_max3_u32 v45, v45, v29, v31")
        a("v_mul_f32 v24, v24, v42")
        a("v_mul_f32 v26, v26, v42")
        a("v_cmp_ne_u32 vcc, s43, v44")
        a("v_cmp_ne_u32 s[58:59], s43, v45")
        a("v_fma_f32 v24, v28, v43, v24")
        a("v_fma_f32 v26, v30, v43, v26")
        a("s_or_b64 vcc, vcc, s[58:59]")
        a("v_cvt_pk_bf16_f32 v24, v24, v26")
        a("s_cbranch_vccz L_OGOT")
        a("s_cmp_lt_u32 s57, 0x10000")
        a("s_cbranch_scc1 L_OPOLL")
        a("L_OGOT:")
        a("ds_write_b32 v11, v24")
        self.stamp(6)
        a("s_waitcnt lgkmcnt(0)")
        a("s_barrier")
        a("s_cmp_ge_u32 s3, 12")
        a("s_cbranch_scc1 L_LFLAG")
        self.tile_post()
        self.stamp(7)
        a("s_branch L_FIN")
        a("L_LFLAG:")
        a("s_cmp_eq_u32 s3, 12")
        a("s_cbranch_scc0 L_FIN")
        a("s_mov_b64 exec, 0xff")
        a("buffer_store_dword v9, v5, s[44:47], s63 offen sc1")
        a("s_mov_b64 exec, -1")
        a("s_branch L_FIN")
        a("L_VPOST:")
        a(f"s_cmp_lt_u32 s98, {NLIGHT}")
        a("s_cbranch_scc1 L_VPOST_LIGHT")
        a("s_branch L_FIN")

    def tile_pre(self, wait=8, ksoff=lambda ks: ks * 4096):
        a = self.a
        self.tr_addr(28, base_sgpr=15)
        a("s_lshl_b32 s56, s14, 5")
        a("v_xor_b32 v28, s56, v28")
        a("v_and_b32 v12, 7, v6")
        a(f"v_mul_u32_u24 v13, {PART_PITCH}, v12")
        a(f"v_mul_u32_u24 v12, {BM_PITCH}, v12")
        a("v_lshlrev_b32 v30, 4, v7")
        a("v_add_u32 v12, v12, v30")
        a(f"v_add_u32 v12, {L_BM}, v12")
        a("v_lshlrev_b32 v30, 5, v7")
        a("v_add_u32 v13, v13, v30")
        a(f"s_mul_i32 s62, s12, {8*PART_PITCH}")
        a("s_lshl_b32 s57, s14, 4")
        a("s_add_u32 s57, s57, s13")
        a("s_lshl_b32 s57, s57, 3")
        a("s_add_u32 s62, s62, s57")
        a(f"s_add_u32 s62, s62, {WS_PART}")
        self.lds_wait_ge(D_CNT_W, wait, 30)
        for ks in range(8):
            a(f"ds_read_b64_tr_b16 v[{48+4*ks}:{49+4*ks}], v28 offset:{ksoff(ks)}")
            a(f"ds_read_b64_tr_b16 v[{50+4*ks}:{51+4*ks}], v28 offset:{ksoff(ks)+512}")
            if ks == 3: a("s_waitcnt lgkmcnt(4)")
        a("v_mov_b32 v113, s43\nv_mov_b32 v115, s43\nv_mov_b32 v117, s43\nv_mov_b32 v119, s43")
        a("s_mov_b32 s64, 0x00ff00ff\ns_mov_b32 s65, 0x00ff00ff")

    def tile_post(self):
        a = self.a
        for ks in range(8):
            a(f"ds_read_b128 v[{80+4*ks}:{83+4*ks}], v12 offset:{ks*64}")
        for ks in range(8):
            a(f"s_waitcnt lgkmcnt({7-ks})")
            acc = 20 if ks % 2 == 0 else 24
            c = "0" if ks < 2 else f"v[{acc}:{acc+3}]"
            a(f"v_mfma_f32_16x16x32_bf16 v[{acc}:{acc+3}], v[{48+4*ks}:{51+4*ks}], v[{80+4*ks}:{83+4*ks}], {c}")
        a("s_mov_b64 exec, s[64:65]")
        a("s_nop 6")
        a("v_add_f32 v112, v20, v24\nv_add_f32 v114, v21, v25\nv_add_f32 v116, v22, v26\nv_add_f32 v118, v23, v27")
        a("buffer_store_dwordx4 v[112:115], v13, s[44:47], s62 offen sc1")
        a("buffer_store_dwordx4 v[116:119], v13, s[44:47], s62 offen offset:16 sc1")
        a("s_mov_b64 exec, -1")

    def chk16(self, base, dst):
        a = self.a
        for i in range(8):
            a(f"s_xor_b64 s[{base+2*i}:{base+2*i+1}], s[{base+2*i}:{base+2*i+1}], s[70:71]")
        for i in range(4):
            a(f"s_or_b64 s[{base+4*i}:{base+4*i+1}], s[{base+4*i}:{base+4*i+1}], s[{base+4*i+2}:{base+4*i+3}]")
        a(f"s_or_b64 s[{base}:{base+1}], s[{base}:{base+1}], s[{base+4}:{base+5}]")
        a(f"s_or_b64 s[{base+8}:{base+9}], s[{base+8}:{base+9}], s[{base+12}:{base+13}]")
        a(f"s_or_b64 s[{base}:{base+1}], s[{base}:{base+1}], s[{base+8}:{base+9}]")

    def hloads(self):
        a = self.a
        for u in range(4, 8):
            a(f"buffer_load_dwordx4 v[{48+4*u}:{51+4*u}], v10, s[44:47], s{60+u} offen sc1")
        a("s_mov_b32 s58, -1\ns_mov_b32 s59, 0")
        a("s_mov_b64 exec, s[58:59]")
        a("buffer_load_dwordx4 v[80:83], v10, s[44:47], s68 offen sc1")
        a("s_mov_b64 exec, -1")

    def reducer(self):
        a = self.a
        a("s_mul_i32 s12, s11, 3641")
        a("s_lshr_b32 s12, s12, 16")
        a("s_mul_i32 s13, s12, 18")
        a("s_sub_u32 s13, s11, s13")
        a("v_lshlrev_b32 v10, 1, v1")
        a("s_mul_i32 s14, s12, 1152")
        a("v_add_u32 v11, s14, v10")
        for i in range(9):
            a(f"global_load_ushort v{24+i}, v11, s[16:17] offset:{128*i}")
            a(f"global_load_ushort v{36+i}, v10, s[34:35] offset:{128*i}")
        a("s_lshr_b32 s14, s13, 1")
        a("s_lshl_b32 s14, s14, 10")
        a("s_lshl_b32 s15, s12, 7")
        a("s_add_u32 s14, s14, s15")
        a(f"s_add_u32 s14, s14, {WS_F3}")
        a("s_add_u32 s90, s40, s14\ns_addc_u32 s91, s41, 0")
        a("s_mul_i32 s14, s13, 43")
        a("s_lshr_b32 s14, s14, 8")
        a("s_lshl_b32 s14, s14, 10")
        a("s_add_u32 s14, s14, s15")
        a(f"s_add_u32 s14, s14, {WS_F2}")
        a("s_add_u32 s92, s40, s14\ns_addc_u32 s93, s41, 0")
        a("s_mov_b32 s70, s43\ns_mov_b32 s71, s43")
        a("s_waitcnt vmcnt(0)")
        for i in range(9):
            a(f"v_lshlrev_b32 v{24+i}, 16, v{24+i}")
            a(f"v_lshlrev_b32 v{36+i}, 16, v{36+i}")
        for i in range(9):
            a(f"v_mul_f32 v{24+i}, v{24+i}, v{36+i}")
        for i in range(0, 8, 2):
            a(f"v_cvt_pk_bf16_f32 v{36+i}, v{24+i}, v{25+i}")
        a("v_cvt_pk_bf16_f32 v44, v32, v32")
        a("v_mov_b32 v46, 0")
        for i in range(0, 8, 2):
            a(f"v_lshlrev_b32 v24, 16, v{36+i}\nv_and_b32 v25, 0xffff0000, v{36+i}")
            a("v_add_f32 v46, v46, v24\nv_add_f32 v46, v46, v25")
        a("v_lshlrev_b32 v24, 16, v44\nv_add_f32 v46, v46, v24")
        self.row_reduce("v_add_f32", 46)
        a("s_nop 1")
        a("v_readlane_b32 s14, v46, 0\nv_readlane_b32 s15, v46, 16\nv_readlane_b32 s56, v46, 32\nv_readlane_b32 s57, v46, 48")
        a("s_nop 1")
        a("v_mov_b32 v46, s14\nv_add_f32 v46, s15, v46\nv_add_f32 v46, s56, v46\nv_add_f32 v46, s57, v46")
        a("v_cvt_pk_bf16_f32 v46, v46, v46")
        a("v_lshlrev_b32 v46, 16, v46")
        a("v_mul_f32 v46, 0xbfb8aa3b, v46")
        a("v_exp_f32 v46, v46")
        a("s_nop 0")
        a("v_add_f32 v46, 1.0, v46")
        a("v_rcp_f32 v46, v46")
        a("s_nop 0")
        a("v_cvt_pk_bf16_f32 v46, v46, v46")
        a("v_lshlrev_b32 v46, 16, v46")
        a("v_sub_f32 v47, 1.0, v46")
        a("v_cvt_pk_bf16_f32 v47, v47, v47")
        a("v_lshlrev_b32 v47, 16, v47")
        a(f"v_mul_u32_u24 v10, {8*PART_PITCH}, v7")
        a("v_lshlrev_b32 v11, 4, v6")
        a("v_add_u32 v10, v10, v11")
        a(f"s_mul_i32 s14, s12, {PART_PITCH}")
        a("s_lshl_b32 s15, s13, 8")
        a("s_add_u32 s14, s14, s15")
        a(f"s_add_u32 s14, s14, {WS_PART}")
        for u in range(9):
            a(f"s_add_u32 s{60+u}, s14, {u*4*8*PART_PITCH}")
        a("v_mov_b32 v80, 0\nv_mov_b32 v81, s43\nv_mov_b32 v82, 0\nv_mov_b32 v83, s43")
        a("s_mul_i32 s14, s12, 1152")
        a("s_lshl_b32 s15, s13, 6")
        a("s_add_u32 s14, s14, s15")
        a("v_lshlrev_b32 v11, 2, v6")
        a("v_add_u32 v11, s14, v11")
        a("s_mov_b32 s52, s36\ns_mov_b32 s53, s37\ns_mov_b32 s54, 9216\ns_mov_b32 s55, 0x00020000")
        a("s_setprio 3")
        a("s_mov_b32 s57, 0\ns_mov_b32 s15, 0")
        a("L_RF:")
        a("s_load_dwordx16 s[16:31], s[92:93], 0 glc")
        a("s_cmp_lg_u32 s15, 0")
        a("s_cbranch_scc1 L_RF_W")
        a("s_load_dwordx16 s[72:87], s[90:91], 0 glc")
        a("s_load_dwordx2 s[88:89], s[90:91], 64 glc")
        a("s_waitcnt lgkmcnt(0)")
        a("s_xor_b64 s[88:89], s[88:89], s[70:71]")
        self.chk16(72, None)
        a("s_or_b64 s[72:73], s[72:73], s[88:89]")
        a("s_cbranch_scc1 L_RF_N")
        self.hloads()
        a("s_mov_b32 s15, 1")
        self.stamp(3)
        a("L_RF_W:")
        a("s_waitcnt lgkmcnt(0)")
        self.chk16(16, None)
        a("s_cbranch_scc0 L_RF_D")
        a("L_RF_N:")
        a("s_add_u32 s57, s57, 1")
        a("s_cmp_lt_u32 s57, 0x10000")
        a("s_cbranch_scc1 L_RF")
        a("L_RF_D:")
        a("s_setprio 3")
        a("s_mov_b32 s57, 0")
        a("s_branch L_RP2")
        a("L_RPOLL:")
        self.hloads()
        a("L_RP2:")
        for u in range(4):
            a(f"buffer_load_dwordx4 v[{48+4*u}:{51+4*u}], v10, s[44:47], s{60+u} offen sc1")
        a("s_add_u32 s57, s57, 1")
        a("s_waitcnt vmcnt(4)")
        a("v_min3_u32 v24, v65, v67, v69\nv_max3_u32 v25, v65, v67, v69")
        a("v_min3_u32 v24, v24, v71, v73\nv_max3_u32 v25, v25, v71, v73")
        a("v_min3_u32 v24, v24, v75, v77\nv_max3_u32 v25, v25, v75, v77")
        a("v_min3_u32 v24, v24, v79, v81\nv_max3_u32 v25, v25, v79, v81")
        a("v_min_u32 v24, v24, v83\nv_max_u32 v25, v25, v83")
        a("v_add_f32 v28, v64, v68\nv_add_f32 v29, v66, v70")
        a("v_add_f32 v32, v72, v76\nv_add_f32 v33, v74, v78")
        a("v_add_f32 v28, v28, v32\nv_add_f32 v29, v29, v33")
        a("v_add_f32 v28, v28, v80\nv_add_f32 v29, v29, v82")
        for swap in ("v_permlane32_swap_b32", "v_permlane16_swap_b32"):
            a("v_mov_b32 v30, v28\nv_mov_b32 v31, v29")
            a("s_nop 1")
            a(f"{swap} v28, v30\n{swap} v29, v31")
            a("s_nop 1")
            a("v_add_f32 v28, v28, v30\nv_add_f32 v29, v29, v31")
        a("v_cvt_pk_bf16_f32 v31, v28, v29")
        a("v_lshlrev_b32 v28, 16, v31\nv_and_b32 v29, 0xffff0000, v31")
        a("v_mul_f32 v28, v47, v28\nv_mul_f32 v29, v47, v29")
        a("v_cvt_pk_bf16_f32 v31, v28, v29")
        a("v_lshlrev_b32 v28, 16, v31\nv_and_b32 v29, 0xffff0000, v31")
        a("s_waitcnt vmcnt(0)")
        a("v_min3_u32 v24, v24, v49, v51\nv_max3_u32 v25, v25, v49, v51")
        a("v_min3_u32 v24, v24, v53, v55\nv_max3_u32 v25, v25, v53, v55")
        a("v_min3_u32 v24, v24, v57, v59\nv_max3_u32 v25, v25, v57, v59")
        a("v_min3_u32 v24, v24, v61, v63\nv_max3_u32 v25, v25, v61, v63")
        a("v_add_f32 v26, v48, v52\nv_add_f32 v27, v50, v54")
        a("v_cmp_ne_u32 vcc, s43, v24")
        a("v_cmp_ne_u32 s[58:59], s43, v25")
        a("v_add_f32 v30, v56, v60\nv_add_f32 v31, v58, v62")
        a("s_or_b64 vcc, vcc, s[58:59]")
        a("v_add_f32 v26, v26, v30\nv_add_f32 v27, v27, v31")
        a("s_cbranch_vccz L_RGOT")
        a("s_cmp_lt_u32 s57, 0x10000")
        a("s_cbranch_scc1 L_RPOLL")
        a("L_RGOT:")
        self.stamp(6)
        for swap in ("v_permlane32_swap_b32", "v_permlane16_swap_b32"):
            a("v_mov_b32 v30, v26\nv_mov_b32 v31, v27")
            a("s_nop 1")
            a(f"{swap} v26, v30\n{swap} v27, v31")
            a("s_nop 1")
            a("v_add_f32 v26, v26, v30\nv_add_f32 v27, v27, v31")
        a("v_cvt_pk_bf16_f32 v30, v26, v27")
        a("v_lshlrev_b32 v26, 16, v30\nv_and_b32 v27, 0xffff0000, v30")
        a("v_mul_f32 v26, v46, v26\nv_mul_f32 v27, v46, v27")
        a("v_cvt_pk_bf16_f32 v30, v26, v27")
        a("v_lshlrev_b32 v26, 16, v30\nv_and_b32 v27, 0xffff0000, v30")
        a("v_add_f32 v26, v26, v28\nv_add_f32 v27, v27, v29")
        a("v_cvt_pk_bf16_f32 v30, v26, v27")
        a("s_mov_b64 exec, 0xffff")
        a("buffer_store_dword v30, v11, s[52:55], 0 offen")
        a("s_cmp_eq_u32 s11, 0")
        a("s_cbranch_scc0 L_RDONE")
        a("s_mov_b64 exec, 1")
        a("v_mov_b32 v11, s43")
        a("buffer_store_dword v11, off, s[44:47], 0 sc1")
        a("L_RDONE:")
        a("s_mov_b64 exec, -1")
        self.stamp(7)

    def epilogue(self):
        a = self.a
        a("L_FIN:")
        if self.stamps:
            a("s_lshl_b32 s14, s2, 4")
            a("s_add_u32 s14, s14, s3")
            a("s_lshl_b32 s14, s14, 6")
            a(f"s_add_u32 s14, s14, {STAMP_OFF}")
            a("s_add_u32 s40, s40, s14\ns_addc_u32 s41, s41, 0")
            a("v_mov_b32 v3, 0")
            a("v_and_b32 v4, 63, v0")
            a("v_lshlrev_b32 v4, 3, v4")
            a("s_mov_b64 exec, 0xff")
            a("global_store_dwordx2 v4, v[2:3], s[40:41]")
        a("L_END:")
        a("s_endpgm")

    def build(self):
        self.prologue()
        self.vwave_first = True
        self.vwave()
        self.kwave()
        self.post()
        self.epilogue()
        return wrap(self.a.text(), NWG, 1024, LDS_ALLOC, self.opt["vgpr"], sgpr=102)

if __name__ == "__main__":
    stamps = "--stamps" in sys.argv
    opt = {}
    outs = []
    for x in sys.argv[1:]:
        if x.startswith("--"):
            if "=" in x:
                k, v = x[2:].split("=")
                if v in ("True", "False"): v = (v == "True")
                elif v.lstrip("-").isdigit(): v = int(v)
                opt[k] = v
        else:
            outs.append(x)
    txt = Gen(stamps=stamps, **opt).build()
    open(outs[0] if outs else "k.s", "w").write(txt)
```

```python
PLANS = {
    "A": dict(nL=[0, 2, 0, 14, 2, 13, 4, 13], sorder=[0, 2, 1, 3, 4, 5, 6, 7], nD=[32, 30, 32, 4, 30, 3, 28, 3]),
    "B": dict(nL=[0, 0, 0, 16, 0, 16, 0, 16], sorder=[0, 2, 1, 3, 4, 5, 6, 7], nD=[32, 32, 32, 1, 32, 1, 32, 0]),
    "U": dict(nL=[6]*8, sorder=[0, 2, 1, 3, 4, 5, 6, 7], nD=[21, 20, 20, 20, 21, 20, 20, 20]),
    "P": dict(nL=[0, 12, 0, 12, 0, 12, 0, 12], sorder=[0, 2, 1, 3, 4, 5, 6, 7], nD=[32, 9, 32, 8, 32, 9, 32, 8]),
    "Q": dict(nL=[0, 12, 0, 12, 0, 12, 0, 12], sorder=[0, 2, 1, 3, 4, 5, 6, 7], nD=[32, 9, 32, 8, 32, 9, 32, 8], n3=[13, 0, 13, 0, 0, 0, 0, 0]),
    "R": dict(nL=[0, 10, 0, 12, 0, 13, 0, 13], sorder=[0, 2, 1, 3, 4, 5, 6, 7], nD=[32, 10, 32, 8, 32, 8, 32, 8], n3=[14, 0, 12, 0, 0, 0, 0, 0]),
    "S": dict(nL=[0, 12, 0, 12, 0, 12, 0, 12], sorder=[0, 2, 1, 3, 4, 5, 6, 7], nD=[32, 9, 32, 8, 32, 9, 32, 8], n3=[9, 0, 9, 0, 4, 0, 4, 0]),
    "V": dict(nL=[2, 6, 2, 6, 8, 8, 8, 8], sorder=[0, 2, 1, 3, 4, 5, 6, 7], nD=[30, 20, 30, 20, 16, 15, 16, 15], n3=[7, 6, 7, 6, 0, 0, 0, 0]),
    "W": dict(nL=[0, 6, 0, 6, 8, 10, 8, 10], sorder=[0, 2, 1, 3, 4, 5, 6, 7], nD=[32, 20, 32, 20, 16, 13, 16, 13], n3=[8, 5, 8, 5, 0, 0, 0, 0]),
    "X": dict(nL=[2, 8, 2, 8, 4, 10, 4, 10], sorder=[0, 2, 1, 3, 4, 5, 6, 7], nD=[30, 14, 30, 14, 28, 9, 28, 9], n3=[6, 3, 6, 3, 4, 0, 4, 0]),
    "Y": dict(nL=[0, 12, 0, 12, 0, 12, 0, 12], sorder=[0, 2, 1, 3, 4, 5, 6, 7], nD=[23, 15, 23, 15, 28, 15, 28, 15], n3=[9, 0, 9, 0, 4, 0, 4, 0], skip3=True),
    "Z": dict(nL=[0, 12, 0, 12, 0, 12, 0, 12], sorder=[0, 2, 1, 3, 4, 5, 6, 7], nD=[32, 9, 32, 8, 32, 9, 32, 8], n3=[7, 6, 7, 6, 0, 0, 0, 0]),
    "D": dict(nL=[0, 10, 0, 10, 4, 12, 2, 10], sorder=[0, 2, 1, 3, 4, 5, 6, 7], nD=[32, 11, 32, 11, 28, 9, 30, 9], n3=[7, 6, 7, 6, 0, 0, 0, 0]),
    "F": dict(nL=[0, 8, 0, 8, 6, 12, 4, 10], sorder=[0, 2, 1, 3, 4, 5, 6, 7], nD=[32, 14, 32, 14, 26, 8, 28, 8], n3=[8, 5, 8, 5, 0, 0, 0, 0]),
    "G": dict(nL=[0, 12, 0, 12, 0, 12, 0, 12], sorder=[0, 2, 1, 3, 4, 5, 6, 7], nD=[32, 9, 32, 8, 32, 9, 32, 8], n3=[4, 4, 3, 3, 3, 3, 3, 3]),
    "T": dict(nL=[0, 6, 0, 10, 4, 12, 4, 12], sorder=[0, 2, 1, 3, 4, 5, 6, 7], nD=[32, 16, 32, 10, 28, 8, 28, 8], n3=[13, 0, 13, 0, 0, 0, 0, 0]),
}
def tables(plan):
    p = PLANS[plan]
    nL, nD = p["nL"], p["nD"]
    n3 = p.get("n3", [0]*8)
    use3 = "n3" in p
    assert sum(nL) == 48 and sum(nD) == 162, (sum(nL), sum(nD))
    assert (not use3) or sum(n3) == 26
    Lbase = [sum(nL[:x]) for x in range(8)]
    nS = [32 - n for n in nL]
    Sbase = [0]*8
    K3base = [sum(n3[:x]) for x in range(8)]
    acc = 0
    for x in p["sorder"]:
        Sbase[x] = acc; acc += nS[x] - n3[x]
    assert acc == (182 if use3 else 208)
    Dbase = [sum(nD[:x]) for x in range(8)]
    skip3 = p.get("skip3", False)
    for x in range(8): assert nD[x] <= nS[x] - (n3[x] if skip3 else 0)
    return dict(skip3=skip3, nL=nL, Lbase=Lbase, Sbase=Sbase, nD=nD, Dbase=Dbase, n3=n3, K3base=K3base, use3=use3)
def roles(plan):
    t = tables(plan)
    role, td = [], []
    for w in range(256):
        x, i = w & 7, w >> 3
        if i < t["nL"][x]:
            role.append(t["Lbase"][x] + i); td.append(255)
        else:
            ih = i - t["nL"][x]
            if not t["use3"]:
                hs = t["Sbase"][x] + ih
            elif ih < t["n3"][x]:
                hs = (t["K3base"][x] + ih) * 8 + 3
            else:
                n = t["Sbase"][x] + ih - t["n3"][x]
                d = (n * 9363) >> 16
                r = n - 7 * d
                hs = 8 * d + r + (1 if r >= 3 else 0)
            role.append(48 + hs)
            idd = ih - (t["n3"][x] if t["skip3"] else 0)
            td.append(t["Dbase"][x] + idd if 0 <= idd < t["nD"][x] else 255)
    assert sorted(role) == list(range(256)), sorted(role)
    assert sorted(t_ for t_ in td if t_ != 255) == list(range(162))
    return role, td
def pack(bs):
    v = 0
    for i, b in enumerate(bs): v |= (b & 0xff) << (8 * i)
    return v & 0xffffffff, v >> 32
if __name__ == "__main__":
    for k in PLANS:
        r, t = roles(k); print(k, tables(k))
```

```python
import sys
from asmlib import *
import rolemap

NWG = 256
NLIGHT = 48
WD0 = 46
L_W = 0
L_KSCR = 98304
L_SMALL = 131072
L_S1SLOT = 73728
L_OSLOT = L_KSCR
L_Q = L_SMALL + 4096
L_P = L_Q + 512
L_BM = L_P + 2048
BM_PITCH = 528
LDS_BYTES = L_BM + 8 * BM_PITCH
LDS_ALLOC = 143360
D_L = 768
D_CNT_S1 = 776
D_FLAG_Q = 777
D_CNT_M = 778
D_CNT_O = 779
D_CNT_W = 780
D_CNT_HA = 781
D_CNT_VISS = 782
D_FLAG_S1P = 783
D_FLAG_P = 784
D_CNT_KISS = 792
D_CNT_VL = 793
D_ZERO = 800
D_M = 1022
def sm(d): return L_SMALL + 4 * d
WS_EPOCH = 0
WS_FO = 0x4000
WS_F2 = 0x8000
WS_F3 = 0x9000
WS_S1 = 0x10000
S1_PITCH = 3328 * 16
WS_O = 0x100000
WS_PART = 0x200000
PART_PITCH = 576 * 8
WS_BYTES = 0x400000
STAMP_OFF = 0x10000000
SCALE_LOG2E = 0.08838834764831845 * 1.4426950408889634

import struct
def f32bits(x): return struct.unpack("<I", struct.pack("<f", x))[0]

class Gen:
    def __init__(self, stamps=False, **opt):
        self.a = Asm()
        self.stamps = stamps
        self.opt = dict(wd="late", gate="all", kiss=True, vgpr=128, red0=0, ofl="cnto", kpost_prio=3, plan="S", viss=8, wo="vland", ngate=6, qf="after", win=12, win3=4, swap=1, cpf=0, ab=0, ab1=0, lay=1, c3u=0, c3w=0)
        self.opt.update(opt)

    def stamp(self, idx):
        if self.stamps:
            self.a("s_memrealtime s[96:97]")
            self.a("s_waitcnt lgkmcnt(0)")
            self.a(f"v_writelane_b32 v2, s96, {idx}")

    def lds_wait_ge(self, dword, value, vt, sleep=1):
        a = self.a
        lab = a.label("L_lw"); done = a.label("L_lwd")
        a(f"v_mov_b32 v{vt+1}, {sm(dword)}")
        a("s_mov_b32 s57, 0")
        a(f"{lab}:")
        a(f"ds_read_b32 v{vt}, v{vt+1}")
        a("s_waitcnt lgkmcnt(0)")
        a(f"v_readfirstlane_b32 s56, v{vt}")
        a("s_add_u32 s57, s57, 1")
        a(f"s_cmp_ge_u32 s56, {value}")
        a(f"s_cbranch_scc1 {done}")
        a(f"s_sleep {sleep}")
        a("s_cmp_lt_u32 s57, 0x40000")
        a(f"s_cbranch_scc1 {lab}")
        a(f"{done}:")

    def lds_inc(self, dword, vt, rtn=False):
        a = self.a
        a("s_mov_b64 s[58:59], exec")
        a("s_mov_b64 exec, 1")
        a(f"v_mov_b32 v{vt}, {sm(dword)}")
        a(f"v_mov_b32 v{vt+1}, 1")
        if rtn:
            a(f"ds_add_rtn_u32 v{vt+2}, v{vt}, v{vt+1}")
            a("s_waitcnt lgkmcnt(0)")
            a(f"v_readfirstlane_b32 s56, v{vt+2}")
        else:
            a(f"ds_add_u32 v{vt}, v{vt+1}")
        a("s_mov_b64 exec, s[58:59]")

    def flag_store(self, soff, vt):
        a = self.a
        a(f"v_mov_b32 v{vt}, s43")
        a("s_mov_b64 exec, 1")
        a(f"buffer_store_dword v{vt}, off, s[44:47], s{soff} sc1")
        a("s_mov_b64 exec, -1")

    def row_reduce(self, op, v):
        a = self.a
        for ctl in ("quad_perm:[1,0,3,2]", "quad_perm:[2,3,0,1]", "row_half_mirror", "row_mirror"):
            a("s_nop 1")
            a(f"{op}_dpp v{v}, v{v}, v{v} {ctl} row_mask:0xf bank_mask:0xf")

    def qfetch(self):
        a = self.a
        lab = a.label("L_qf")
        a(f"s_mul_i32 s14, s4, {S1_PITCH}")
        a("s_lshl_b32 s12, s5, 10")
        a("s_add_u32 s14, s14, s12")
        a("s_lshl_b32 s12, s15, 8")
        a("s_add_u32 s14, s14, s12")
        a(f"s_add_u32 s14, s14, {WS_S1}")
        a("s_add_u32 s12, s40, s14\ns_addc_u32 s13, s41, 0")
        a("s_mov_b32 s11, 0")
        a(f"{lab}:")
        a("s_load_dwordx16 s[16:31], s[12:13], 0 glc")
        a("s_load_dwordx16 s[56:71], s[12:13], 64 glc")
        a("s_load_dwordx16 s[72:87], s[12:13], 128 glc")
        a("s_load_dwordx8 s[32:39], s[12:13], 192 glc")
        a("s_load_dwordx8 s[88:95], s[12:13], 224 glc")
        a("s_add_u32 s11, s11, 1")
        a("s_cmp_ge_u32 s11, 0x8000")
        a(f"s_cbranch_scc1 {lab}_go")
        a("s_waitcnt lgkmcnt(0)")
        a("s_xor_b32 s14, s31, s43\ns_xor_b32 s100, s71, s43\ns_or_b32 s14, s14, s100")
        a("s_xor_b32 s100, s87, s43\ns_or_b32 s14, s14, s100")
        a("s_xor_b32 s100, s39, s43\ns_or_b32 s14, s14, s100")
        a("s_xor_b32 s100, s95, s43\ns_or_b32 s14, s14, s100")
        a(f"s_cbranch_scc1 {lab}")
        regs = list(range(16, 32)) + list(range(56, 72)) + list(range(72, 88)) + list(range(32, 40)) + list(range(88, 96))
        for lane, r in enumerate(regs):
            a(f"v_writelane_b32 v24, s{r}, {lane}")
        a("s_mov_b32 s100, 0xaaaaaaaa\ns_mov_b32 s101, 0xaaaaaaaa")
        a("s_nop 0")
        a("v_cmp_ne_u32 vcc, s43, v24")
        a("s_and_b64 vcc, vcc, s[100:101]")
        a(f"s_cbranch_vccnz {lab}")
        a(f"{lab}_go:")
        a("s_waitcnt lgkmcnt(0)")
        a("v_lshrrev_b32 v25, 1, v1")
        a("v_lshlrev_b32 v25, 2, v25")
        a("s_lshl_b32 s14, s15, 7")
        a(f"s_add_u32 s14, s14, {L_Q}")
        a("v_add_u32 v25, s14, v25")
        a("s_mov_b32 s100, 0x55555555\ns_mov_b32 s101, 0x55555555")
        a("s_mov_b64 exec, s[100:101]")
        a("ds_write_b32 v25, v24")
        a("s_mov_b64 exec, -1")
        a("s_load_dwordx16 s[16:31], s[0:1], 0")
        a("s_load_dwordx8 s[32:39], s[0:1], 64")
        a("s_waitcnt lgkmcnt(0)")
        self.lds_inc(D_FLAG_Q, 25)

    def prologue(self):
        a = self.a
        if self.stamps:
            a("s_memrealtime s[96:97]")
        a(f"s_cmp_ge_u32 s2, {NWG}")
        a("s_cbranch_scc1 L_END")
        a("s_load_dwordx16 s[16:31], s[0:1], 0")
        a("s_load_dwordx8 s[32:39], s[0:1], 64")
        a("s_load_dwordx2 s[40:41], s[0:1], 96")
        T = rolemap.tables(self.opt["plan"])
        a("s_and_b32 s99, s2, 7")
        a("s_lshl_b32 s99, s99, 3")
        def look(tab, dst):
            lo, hi = rolemap.pack(tab)
            a(f"s_mov_b32 s56, 0x{lo:08x}\ns_mov_b32 s57, 0x{hi:08x}")
            a("s_lshr_b64 s[56:57], s[56:57], s99")
            a(f"s_and_b32 s{dst}, s56, 0xff")
        look(T["nL"], 60); look(T["Lbase"], 61); look(T["Sbase"], 62); look(T["nD"], 63); look(T["Dbase"], 64)
        if T["use3"]:
            look(T["n3"], 66); look(T["K3base"], 67)
        a("s_lshr_b32 s65, s2, 3")
        a("s_add_u32 s98, s61, s65")
        a("s_mov_b32 s99, 255")
        a("s_cmp_lt_u32 s65, s60")
        a("s_cbranch_scc1 L_ROLE")
        a("s_sub_u32 s65, s65, s60")
        if T["skip3"]:
            a("s_sub_u32 s69, s65, s66")
            a("s_add_u32 s68, s64, s69")
            a("s_cmp_lt_u32 s69, s63")
        else:
            a("s_add_u32 s68, s64, s65")
            a("s_cmp_lt_u32 s65, s63")
        a("s_cselect_b32 s99, s68, 255")
        if T["use3"]:
            a("s_add_u32 s98, s67, s65\ns_lshl_b32 s98, s98, 3")
            a(f"s_add_u32 s98, s98, {NLIGHT + 3}")
            a("s_cmp_lt_u32 s65, s66")
            a("s_cbranch_scc1 L_ROLE")
            a("s_add_u32 s68, s62, s65\ns_sub_u32 s68, s68, s66")
            a("s_mul_i32 s69, s68, 9363\ns_lshr_b32 s69, s69, 16")
            a("s_mul_i32 s70, s69, 7\ns_sub_u32 s68, s68, s70")
            a("s_lshl_b32 s98, s69, 3\ns_add_u32 s98, s98, s68")
            a("s_cmp_ge_u32 s68, 3")
            a(f"s_addc_u32 s98, s98, {NLIGHT}")
        else:
            a("s_add_u32 s98, s62, s65")
            a(f"s_add_u32 s98, s98, {NLIGHT}")
        a("L_ROLE:")
        a("v_and_b32 v1, 63, v0")
        a("v_lshrrev_b32 v9, 6, v0")
        a("v_lshlrev_b32 v3, 2, v0")
        a(f"v_add_u32 v3, {L_SMALL}, v3")
        a("v_mov_b32 v4, 0")
        a("v_mov_b32 v5, 0xff800000")
        a(f"v_cmp_le_u32 vcc, {D_M}, v0")
        a("v_readfirstlane_b32 s3, v9")
        a("s_nop 0")
        a("v_cndmask_b32 v4, v4, v5, vcc")
        if self.opt["swap"]:
            a("s_xor_b32 s3, s3, 8")
        a("ds_write_b32 v3, v4")
        if self.opt["cpf"]:
            a("s_cmp_eq_u32 s3, 7")
            a("s_cbranch_scc0 L_NOCPF")
            a("s_getpc_b64 s[12:13]")
            a("L_CPFPC:")
            a(f"s_sub_u32 s12, s12, L_CPFPC-{NAME}_kernel")
            a("s_subb_u32 s13, s13, 0")
            a("v_lshlrev_b32 v10, 7, v1")
            a("global_load_dword v48, v10, s[12:13]")
            a("v_add_u32 v10, 0x2000, v10")
            a(f"v_cmp_gt_u32 vcc, L_END-{NAME}_kernel, v10")
            a("s_and_b64 exec, exec, vcc")
            a("global_load_dword v49, v10, s[12:13]")
            a("s_mov_b64 exec, -1")
            a("L_NOCPF:")
        a("v_and_b32 v6, 15, v1")
        a("v_lshrrev_b32 v7, 4, v1")
        a("v_lshlrev_b32 v8, 4, v1")
        a("s_lshr_b32 s4, s2, 5")
        a("s_and_b32 s5, s2, 15")
        a("s_lshl_b32 s6, s4, 4")
        a("s_add_u32 s6, s6, s5")
        a("s_lshl_b32 s6, s6, 20")
        a("s_lshr_b32 s7, s2, 4")
        a("s_and_b32 s7, s7, 1")
        a("s_lshl_b32 s7, s7, 17")
        a("s_add_u32 s6, s6, s7")
        a("s_add_u32 s6, s6, 0xC0000")
        a("s_add_u32 s7, s3, s2")
        a("s_and_b32 s7, s7, 7")
        a("s_lshl_b32 s7, s7, 14")
        a("s_add_u32 s6, s6, s7")
        a("s_add_u32 s7, s6, 4096")
        a("s_add_u32 s8, s6, 8192")
        a("s_add_u32 s9, s6, 12288")
        a("s_and_b32 s10, s3, 7")
        a(f"s_sub_u32 s11, s98, {NLIGHT}")
        a("s_cmp_ge_u32 s3, 8")
        a("s_cbranch_scc1 L_VPRO")
        a("s_waitcnt lgkmcnt(0)")
        self.common_after_args()
        a("s_branch L_KWAVE")
        a("L_VPRO:")
        a("v_and_b32 v10, 7, v6")
        a("v_mul_u32_u24 v10, 1152, v10")
        a("v_lshlrev_b32 v11, 4, v7")
        a("v_add_u32 v10, v10, v11")
        a("s_mul_i32 s14, s10, 192")
        a("v_add_u32 v10, s14, v10")
        a("s_mov_b32 s12, 8192\ns_mov_b32 s13, s11\ns_mov_b32 s54, 4718592")
        a("s_cmp_lt_i32 s11, 64\ns_cbranch_scc1 L_S1SEL0")
        a("s_mov_b32 s54, 5308416\ns_mov_b32 s12, 9216\ns_sub_u32 s13, s11, 64")
        a("s_cmp_lt_u32 s11, 136\ns_cbranch_scc1 L_S1SEL0")
        a("s_sub_u32 s13, s11, 136")
        a("L_S1SEL0:")
        a("s_mov_b32 s55, 0x00020000")
        a("s_lshl_b32 s13, s13, 7")
        self.wtile_lane_offsets(12, 12, 13, 14)
        a("s_mul_i32 s14, s10, 96")
        a("s_mul_i32 s14, s14, s12")
        a("s_add_u32 s14, s14, s13")
        a("s_lshl_b32 s15, s12, 3")
        a("s_mul_i32 s56, s10, 12288")
        a("s_waitcnt lgkmcnt(0)")
        self.common_after_args()

    def common_after_args(self):
        a = self.a
        if self.stamps:
            a("v_mov_b32 v2, 0")
            a("v_writelane_b32 v2, s96, 0")
        a("s_load_dword s42, s[40:41], 0")
        a("s_mov_b32 s44, s40\ns_mov_b32 s45, s41")
        a(f"s_mov_b32 s46, {WS_BYTES}\ns_mov_b32 s47, 0x00020000")

    def tag_ready(self):
        a = self.a
        a("s_waitcnt lgkmcnt(0)")
        a("s_mul_i32 s43, s42, 0x9E3779B1")
        a("s_add_u32 s43, s43, 0x7F4A7C15")

    def wtile_lane_offsets(self, pitch_sgpr, ve, vo, vt):
        a = self.a
        a(f"v_lshrrev_b32 v{vt}, 3, v1")
        a(f"v_mul_lo_u32 v{ve}, v{vt}, s{pitch_sgpr}")
        a(f"v_and_b32 v{vt}, 1, v7")
        a(f"v_lshlrev_b32 v{vt}, 1, v{vt}")
        a(f"v_and_b32 v{vo}, 7, v1")
        a(f"v_xor_b32 v{vt}, v{vt}, v{vo}")
        a(f"v_lshlrev_b32 v{vo}, 4, v{vt}")
        a(f"v_add_u32 v{ve}, v{ve}, v{vo}")
        a(f"v_xor_b32 v{vo}, 64, v{ve}")

    def tr_addr(self, v0, base_const=None, base_sgpr=None):
        a = self.a
        t = v0 + 3
        a(f"v_lshrrev_b32 v{v0}, 2, v6")
        a(f"v_lshlrev_b32 v{t}, 3, v7")
        a(f"v_add_u32 v{t}, v{t}, v{v0}")
        a(f"v_lshlrev_b32 v{t}, 7, v{t}")
        a(f"v_lshrrev_b32 v{v0}, 1, v{v0}")
        a(f"v_and_b32 v{v0+1}, 1, v7")
        a(f"v_lshlrev_b32 v{v0+1}, 1, v{v0+1}")
        a(f"v_or_b32 v{v0}, v{v0}, v{v0+1}")
        a(f"v_lshlrev_b32 v{v0}, 5, v{v0}")
        a(f"v_add_u32 v{t}, v{t}, v{v0}")
        a(f"v_and_b32 v{v0}, 3, v6")
        a(f"v_lshlrev_b32 v{v0}, 3, v{v0}")
        a(f"v_add_u32 v{v0}, v{t}, v{v0}")
        if base_sgpr is not None:
            a(f"v_add_u32 v{v0}, s{base_sgpr}, v{v0}")
        elif base_const:
            a(f"v_add_u32 v{v0}, {base_const}, v{v0}")
        a(f"v_xor_b32 v{v0+1}, 32, v{v0}")
        a(f"v_xor_b32 v{v0+2}, 64, v{v0}")
        a(f"v_xor_b32 v{v0+3}, 0x60, v{v0}")

    def s1job(self):
        a = self.a
        a("s_setprio 3")
        a("s_mov_b32 s52, s22\ns_mov_b32 s53, s23")
        a("s_cmp_lt_u32 s11, 64\ns_cbranch_scc1 L_S1SEL")
        a("s_mov_b32 s52, s28\ns_mov_b32 s53, s29")
        a("s_cmp_lt_u32 s11, 136\ns_cbranch_scc1 L_S1SEL")
        a("s_mov_b32 s52, s30\ns_mov_b32 s53, s31")
        a("L_S1SEL:")
        def dma(u):
            a(f"s_add_u32 m0, s56, {L_W + u*1024}")
            a("s_add_u32 s14, s14, s15" if u > 0 else "s_nop 0")
            a(f"buffer_load_dwordx4 v{12 + (u & 1)}, s[52:55], s14 offen nt lds")
        def xl():
            for ks in range(3):
                a(f"global_load_dwordx4 v[{16+4*ks}:{19+4*ks}], v10, s[16:17] offset:{64*ks}")
        W, W3 = self.opt["win"], self.opt["win3"]
        if W >= 12 and not self.opt["c3w"]:
            for u in range(12): dma(u)
            xl()
            a("s_barrier")
            self.stamp(1)
        else:
            xl()
            a("s_and_b32 s57, s11, 7")
            a("s_cmp_eq_u32 s57, 3")
            a("s_cbranch_scc0 L_S1WN")
            if self.opt["c3w"] == 1:
                a("s_cmp_ge_u32 s11, 64")
                a("s_cbranch_scc0 L_S1WN")
            for u in range(W3): dma(u)
            a("s_barrier")
            self.stamp(1)
            for u in range(W3, 12):
                a(f"s_waitcnt vmcnt({W3-1})")
                dma(u)
            a("s_branch L_S1WD")
            a("L_S1WN:")
            for u in range(min(W, 12)): dma(u)
            a("s_barrier")
            self.stamp(1)
            for u in range(W, 12):
                a(f"s_waitcnt vmcnt({W-1})")
                dma(u)
            a("L_S1WD:")
        self.tr_addr(28, base_sgpr=56)
        a("s_waitcnt vmcnt(0)")
        def rd(ks):
            for t in range(4):
                for hf in range(2):
                    r = 48 + (ks*4+t)*4 + hf*2
                    a(f"ds_read_b64_tr_b16 v[{r}:{r+1}], v{28+t} offset:{ks*4096 + hf*512}")
        def mm(ks):
            for t in range(4):
                r = 48 + (ks*4+t)*4
                c = "0" if ks == 0 else f"v[{32+4*t}:{35+4*t}]"
                a(f"v_mfma_f32_16x16x32_bf16 v[{32+4*t}:{35+4*t}], v[{r}:{r+3}], v[{16+4*ks}:{19+4*ks}], {c}")
        rd(0)
        a("s_waitcnt lgkmcnt(7)")
        rd(1)
        a("s_waitcnt lgkmcnt(8)")
        mm(0)
        rd(2)
        a("s_waitcnt lgkmcnt(8)")
        mm(1)
        a("s_waitcnt lgkmcnt(0)")
        mm(2)
        a("v_lshlrev_b32 v10, 3, v7")
        a("v_add_u32 v10, v10, v6")
        a("v_lshlrev_b32 v10, 4, v10")
        a("s_lshl_b32 s14, s10, 11")
        a(f"s_add_u32 s14, s14, {L_S1SLOT}")
        a("v_add_u32 v10, s14, v10")
        a("s_mov_b32 s58, 0x00ff00ff\ns_mov_b32 s59, 0x00ff00ff")
        a("s_nop 1")
        a("s_mov_b64 exec, s[58:59]")
        for t in range(4):
            a(f"ds_write_b128 v10, v[{32+4*t}:{35+4*t}] offset:{t*512}")
        a("s_mov_b64 exec, -1")
        a("s_waitcnt lgkmcnt(0)")
        self.lds_inc(D_CNT_S1, 10, rtn=True)
        a("s_cmp_eq_u32 s56, 5")
        a("s_cbranch_scc0 L_S1DONE")
        a("v_and_b32 v10, 31, v1")
        a("v_lshlrev_b32 v10, 4, v10")
        a("v_lshrrev_b32 v11, 5, v1")
        a("v_lshlrev_b32 v12, 9, v11")
        a("v_add_u32 v10, v10, v12")
        a(f"v_add_u32 v10, {L_S1SLOT}, v10")
        for sl in range(6):
            for i in range(2):
                r = 48 + (sl*2+i)*4
                a(f"ds_read_b128 v[{r}:{r+3}], v10 offset:{sl*2048 + i*1024}")
        a("v_and_b32 v12, 7, v1")
        a(f"s_mov_b32 s14, {S1_PITCH}")
        a("v_mul_lo_u32 v12, v12, s14")
        a("v_bfe_u32 v13, v1, 3, 2")
        a("v_lshlrev_b32 v14, 2, v11")
        a("v_add_u32 v13, v13, v14")
        a("v_lshlrev_b32 v13, 4, v13")
        a("v_add_u32 v12, v12, v13")
        a("s_lshl_b32 s14, s11, 8")
        a(f"s_add_u32 s14, s14, {WS_S1}")
        self.tag_ready()
        for i in range(2):
            for c in range(4):
                R = lambda sl: 48 + (sl*2+i)*4 + c
                d = 16 + 4*i + c
                a(f"v_add_f32 v{d}, v{R(0)}, v{R(1)}")
                a(f"v_add_f32 v{R(2)}, v{R(2)}, v{R(3)}")
                a(f"v_add_f32 v{R(4)}, v{R(4)}, v{R(5)}")
                a(f"v_add_f32 v{d}, v{d}, v{R(2)}")
                a(f"v_add_f32 v{d}, v{d}, v{R(4)}")
        a("v_mov_b32 v25, s43\nv_mov_b32 v27, s43\nv_mov_b32 v29, s43\nv_mov_b32 v31, s43")
        a("v_cvt_pk_bf16_f32 v24, v16, v17")
        a("v_cvt_pk_bf16_f32 v26, v18, v19")
        a("v_cvt_pk_bf16_f32 v28, v20, v21")
        a("v_cvt_pk_bf16_f32 v30, v22, v23")
        a("buffer_store_dwordx4 v[24:27], v12, s[44:47], s14 offen sc1")
        a("buffer_store_dwordx4 v[28:31], v12, s[44:47], s14 offen offset:128 sc1")
        self.lds_inc(D_FLAG_S1P, 10)
        a("L_S1DONE:")
        self.stamp(6)

    def kwave(self):
        a = self.a
        o = self.opt
        a("L_KWAVE:")
        a("s_mov_b32 s48, s18\ns_mov_b32 s49, s19\ns_mov_b32 s50, 0x8000000\ns_mov_b32 s51, 0x00020000")
        a("s_setprio 2")
        a("s_barrier")
        self.stamp(1)
        if o["qf"] == "first":
            a("s_cmp_lt_u32 s10, 6")
            a("s_cbranch_scc1 L_KGATE")
            self.tag_ready()
            a("s_sub_u32 s15, s10, 6")
            self.qfetch()
            a("s_branch L_KLOAD")
            a("L_KGATE:")
        if o["gate"] != "none":
            a(f"s_cmp_ge_u32 s10, {o['ngate']}")
            a("s_cbranch_scc1 L_KLOAD")
            lim = 64 if o["gate"] == "q" else 208
            a(f"s_cmp_ge_u32 s11, {lim}")
            a("s_cbranch_scc1 L_KLOAD")
            if o["c3u"]:
                if o["c3u"] == 1:
                    a("s_cmp_lt_u32 s11, 64")
                    a("s_cbranch_scc1 L_KG2")
                a("s_and_b32 s56, s11, 7")
                a("s_cmp_eq_u32 s56, 3")
                a("s_cbranch_scc1 L_KLOAD")
                a("L_KG2:")
            self.lds_wait_ge(D_FLAG_S1P, 1, 10)
        a("L_KLOAD:")
        KB = 48
        for u in range(16):
            a(f"buffer_load_dwordx4 v[{KB+4*u}:{KB+4*u+3}], v8, s[48:51], s{6 + u//4} offen offset:{(u%4)*1024} nt")
        self.lds_inc(D_CNT_KISS, 10)
        self.stamp(2)
        a("s_mov_b32 s61, 0")
        a("s_cmp_ge_u32 s99, 162")
        a("s_cbranch_scc1 L_NOHP")
        if o["qf"] != "first":
            a("s_cmp_ge_u32 s10, 6")
            a("s_cbranch_scc1 L_NOHP")
        self.haddr()
        a("buffer_load_dwordx4 v[120:123], v8, s[44:47], s14 offen sc1")
        a("buffer_load_dwordx4 v[124:127], v8, s[44:47], s15 offen sc1")
        a("s_mov_b32 s61, 2")
        if o["wd"] == "kearly":
            self.wd_dma_early(waitflag=True)
        a("L_NOHP:")
        a(f"s_lshl_b32 s56, s10, 12")
        a(f"s_add_u32 s56, s56, {L_KSCR}")
        a("v_xor_b32 v10, v6, v7")
        a("v_lshlrev_b32 v10, 4, v10")
        a("v_lshlrev_b32 v11, 8, v7")
        a("v_add_u32 v12, v10, v11")
        a("v_add_u32 v12, s56, v12")
        a("v_xor_b32 v13, 64, v12\nv_xor_b32 v14, 0x80, v12\nv_xor_b32 v15, 0xc0, v12")
        a("v_lshlrev_b32 v11, 8, v6")
        a("v_add_u32 v16, v10, v11")
        a("v_add_u32 v16, s56, v16")
        a("v_xor_b32 v17, 64, v16\nv_xor_b32 v18, 0x80, v16\nv_xor_b32 v19, 0xc0, v16")
        a("v_bfe_u32 v20, v6, 2, 1")
        a("v_lshlrev_b32 v20, 8, v20")
        a("v_lshlrev_b32 v21, 4, v7")
        a("v_add_u32 v20, v20, v21")
        a(f"v_add_u32 v20, {L_Q}, v20")
        self.tag_ready()
        if o["qf"] != "first":
            a("s_cmp_lt_u32 s10, 6")
            a("s_cbranch_scc1 L_QWAIT")
            a("s_sub_u32 s15, s10, 6")
            self.qfetch()
            a("s_mov_b32 s61, 0")
            a("s_cmp_ge_u32 s99, 162")
            a("s_cbranch_scc1 L_QWAIT")
            self.haddr()
            a("buffer_load_dwordx4 v[120:123], v8, s[44:47], s14 offen sc1")
            a("buffer_load_dwordx4 v[124:127], v8, s[44:47], s15 offen sc1")
            a("s_mov_b32 s61, 2")
        a("L_QWAIT:")
        self.lds_wait_ge(D_FLAG_Q, 4, 22)
        self.stamp(4)
        for j in range(4):
            a(f"ds_read_b128 v[{32+4*j}:{35+4*j}], v20 offset:{64*j}")
        a("s_cmp_eq_u32 s61, 0")
        a("s_cbranch_scc1 L_KW0")
        if o["wd"] == "kearly":
            a("s_cmp_eq_u32 s61, 2")
            a("s_cbranch_scc1 L_KW2")
            a("s_waitcnt vmcnt(10)")
            a("s_branch L_KW1")
            a("L_KW2:")
        a("s_waitcnt vmcnt(2)")
        a("s_branch L_KW1")
        a("L_KW0:")
        a("s_waitcnt vmcnt(0)")
        a("L_KW1:")
        self.stamp(5)
        ACC = [112, 116, 24, 28]
        def tile_ops(t):
            Gk, tp = t >> 1, t & 1
            for aa in range(4):
                u = 8*Gk + 2*aa + tp
                a(f"ds_write_b128 v{12+aa}, v[{KB+4*u}:{KB+4*u+3}] offset:{aa*1024}")
            for j in range(4):
                u = 8*Gk + 2*j + tp
                a(f"ds_read_b128 v[{KB+4*u}:{KB+4*u+3}], v{16+j}")
        def tile_mm(t):
            Gk, tp = t >> 1, t & 1
            for j in range(4):
                u = 8*Gk + 2*j + tp
                c = "0" if j == 0 else f"v[{ACC[t]}:{ACC[t]+3}]"
                a(f"v_mfma_f32_16x16x32_bf16 v[{ACC[t]}:{ACC[t]+3}], v[{32+4*j}:{35+4*j}], v[{KB+4*u}:{KB+4*u+3}], {c}")
        tile_ops(0)
        a("s_waitcnt lgkmcnt(6)")
        tile_ops(1)
        a("s_waitcnt lgkmcnt(8)")
        tile_mm(0)
        tile_ops(2)
        a("s_waitcnt lgkmcnt(8)")
        tile_mm(1)
        tile_ops(3)
        a("s_waitcnt lgkmcnt(8)")
        tile_mm(2)
        a("s_waitcnt lgkmcnt(0)")
        tile_mm(3)
        a("v_and_b32 v22, 1, v7")
        a("v_lshlrev_b32 v22, 2, v22")
        a(f"v_add_u32 v23, {sm(D_L)}, v22")
        a(f"v_add_u32 v22, {sm(D_M)}, v22")
        a("s_mov_b32 s58, 0x00010001\ns_mov_b32 s59, 0")
        a("v_max_f32 v21, v112, v116")
        a("s_nop 3")
        a("v_max3_f32 v21, v21, v24, v28")
        self.row_reduce("v_max_f32", 21)
        a("s_mov_b64 exec, s[58:59]")
        a("ds_max_f32 v22, v21")
        a("s_mov_b64 exec, -1")
        a("s_waitcnt lgkmcnt(0)")
        self.lds_inc(D_CNT_M, 26)
        a("v_and_b32 v30, 3, v6")
        a("v_lshlrev_b32 v30, 2, v30")
        a("v_lshrrev_b32 v31, 2, v6")
        a("v_add_u32 v30, v30, v31")
        a("v_lshlrev_b32 v30, 2, v30")
        a("v_lshlrev_b32 v31, 7, v7")
        a("v_add_u32 v30, v30, v31")
        a("s_lshl_b32 s14, s10, 8")
        a(f"s_add_u32 s14, s14, {L_P}")
        a("v_add_u32 v30, s14, v30")
        a("s_lshl_b32 s15, s10, 2")
        a(f"s_add_u32 s15, s15, {sm(D_FLAG_P)}")
        a(f"s_mov_b32 s14, 0x{f32bits(SCALE_LOG2E):08x}")
        self.lds_wait_ge(D_CNT_M, 8, 26, sleep=0)
        a("ds_read_b32 v21, v22")
        a("s_waitcnt lgkmcnt(0)")
        a("v_mul_f32 v21, s14, v21")
        E = [112, 116, 24, 28]
        for t in range(4):
            a(f"v_fma_f32 v{E[t]}, v{E[t]}, s14, -v21")
        for t in range(4):
            a(f"v_exp_f32 v{E[t]}, v{E[t]}")
        a("s_nop 0")
        a("v_add_f32 v26, v112, v116")
        a("v_add_f32 v27, v24, v28")
        a("v_cvt_pk_bf16_f32 v25, v112, v116")
        a("v_cvt_pk_bf16_f32 v29, v24, v28")
        a("v_add_f32 v26, v26, v27")
        a("s_mov_b32 s58, -1\ns_mov_b32 s59, 0")
        a("s_mov_b64 exec, s[58:59]")
        a("ds_write_b32 v30, v25")
        a("ds_write_b32 v30, v29 offset:64")
        a("s_mov_b64 exec, -1")
        self.row_reduce("v_add_f32", 26)
        a("s_mov_b32 s58, 0x00010001\ns_mov_b32 s59, 0")
        a("s_mov_b64 exec, s[58:59]")
        a("ds_add_f32 v23, v26")
        a("s_mov_b64 exec, -1")
        a("v_mov_b32 v30, s15\nv_mov_b32 v31, 1")
        a("s_waitcnt lgkmcnt(0)")
        a("s_mov_b64 exec, 1")
        a("ds_write_b32 v30, v31")
        a("s_mov_b64 exec, -1")
        self.stamp(6)
        a("s_branch L_KPOST")

    def haddr(self):
        a = self.a
        a("s_mov_b32 s11, s99")
        a("s_mul_i32 s12, s11, 7282")
        a("s_lshr_b32 s12, s12, 16")
        a("s_mul_i32 s13, s12, 9")
        a("s_sub_u32 s13, s11, s13")
        a(f"s_mul_i32 s14, s10, {S1_PITCH}")
        a("s_lshl_b32 s15, s12, 10")
        a("s_add_u32 s14, s14, s15")
        a(f"s_add_u32 s14, s14, {WS_S1 + 1024*16}")
        a(f"s_add_u32 s15, s14, {1152*16}")

    def wd_dma_early(self, waitflag=False):
        a = self.a
        a("s_cmp_ge_u32 s99, 162")
        a("s_cbranch_scc1 L_NOWD")
        a("s_cmp_ge_u32 s10, 4")
        a("s_cbranch_scc1 L_NOWD")
        if waitflag:
            self.lds_wait_ge(D_FLAG_S1P, 1, 10)
        a("s_mov_b32 s11, s99")
        a("s_mul_i32 s12, s11, 7282")
        a("s_lshr_b32 s12, s12, 16")
        a("s_mul_i32 s13, s12, 9")
        a("s_sub_u32 s13, s11, s13")
        a("s_mov_b32 s52, s32\ns_mov_b32 s53, s33\ns_mov_b32 s54, 5308416\ns_mov_b32 s55, 0x00020000")
        a("s_mov_b32 s56, 1152")
        self.wtile_lane_offsets(56, 12, 13, 14)
        a("s_lshl_b32 s14, s12, 8")
        a("s_lshl_b32 s15, s10, 6")
        a("s_add_u32 s14, s14, s15")
        a("s_mul_i32 s14, s14, 1152")
        a("s_lshl_b32 s15, s13, 7")
        a("s_add_u32 s14, s14, s15")
        a("s_mul_i32 s15, s10, 12288")
        for u in range(8):
            a(f"s_add_u32 m0, s15, {L_W + u*1024}")
            a(f"s_add_u32 s14, s14, {8*1152}" if u > 0 else "s_nop 0")
            a(f"buffer_load_dwordx4 v{12 + (u & 1)}, s[52:55], s14 offen nt lds")
        a("s_mov_b32 s61, 10" if waitflag else "s_mov_b32 s61, 1")
        a("L_NOWD:")

    def vwave(self):
        a = self.a
        o = self.opt
        a("L_VWAVE:")
        a("s_mov_b32 s48, s20\ns_mov_b32 s49, s21\ns_mov_b32 s50, 0x8000000\ns_mov_b32 s51, 0x00020000")
        a(f"s_cmp_lt_u32 s98, {NLIGHT}")
        a("s_cbranch_scc1 L_VBAR")
        a("s_cmp_ge_u32 s10, 6")
        a("s_cbranch_scc1 L_VBAR")
        self.s1job()
        a("s_setprio 1")
        a("s_branch L_VGATE")
        a("L_VBAR:")
        a("s_setprio 1")
        a("s_barrier")
        self.stamp(1)
        VB = 48
        a("s_cmp_lt_u32 s3, 14")
        a("s_cbranch_scc1 L_VGATE")
        self.tag_ready()
        a("s_sub_u32 s15, s3, 12")
        self.qfetch()
        self.stamp(7)
        a("L_VGATE:")
        if o["kiss"]:
            self.lds_wait_ge(D_CNT_KISS, 8, 22)
        a("s_mov_b32 s61, 0")
        if o["wd"] == "early":
            self.wd_dma_early()
        for u in range(16):
            a(f"buffer_load_dwordx4 v[{VB+4*u}:{VB+4*u+3}], v8, s[48:51], s{6 + u//4} offen offset:{(u%4)*1024} nt")
        self.lds_inc(D_CNT_VISS, 22)
        self.stamp(2)
        a("s_lshl_b32 s14, s10, 8")
        a(f"s_add_u32 s14, s14, {L_P}")
        a("v_and_b32 v10, 1, v6")
        a("v_lshlrev_b32 v10, 7, v10")
        a("v_lshlrev_b32 v11, 4, v7")
        a("v_add_u32 v10, v10, v11")
        a("v_add_u32 v10, s14, v10")
        a(f"v_mov_b32 v11, {sm(D_ZERO)}")
        a("v_and_b32 v16, 14, v6")
        for gp in range(4):
            a(f"v_cmp_eq_u32 vcc, {4*gp}, v16")
            a("s_nop 1")
            a(f"v_cndmask_b32 v{12+gp}, v11, v10, vcc")
        a("v_lshlrev_b32 v10, 3, v6")
        a("v_add_u32 v10, v10, v7")
        a("v_lshlrev_b32 v10, 2, v10")
        a("s_lshl_b32 s14, s10, 10")
        a(f"s_add_u32 s14, s14, {L_OSLOT}")
        a("v_add_u32 v10, s14, v10")
        a("s_mov_b32 s12, 0x05040100\ns_mov_b32 s13, 0x07060302")
        a("s_lshl_b32 s60, s5, 10")
        a("s_lshl_b32 s14, s4, 7")
        a("s_add_u32 s60, s60, s14")
        a("s_lshr_b32 s14, s2, 4\ns_and_b32 s14, s14, 1\ns_lshl_b32 s14, s14, 2")
        a("s_add_u32 s60, s60, s14")
        a(f"s_add_u32 s60, s60, {WS_FO}")
        self.tag_ready()
        a("v_mov_b32 v11, s43")
        lab = a.label("L_pw")
        a("s_lshl_b32 s14, s10, 2")
        a(f"s_add_u32 s14, s14, {sm(D_FLAG_P)}")
        a("v_mov_b32 v18, s14")
        a("s_mov_b32 s57, 0")
        a(f"{lab}:")
        a("ds_read_b32 v17, v18")
        a("s_waitcnt lgkmcnt(0)")
        a("v_readfirstlane_b32 s56, v17")
        a("s_add_u32 s57, s57, 1")
        a("s_cmp_ge_u32 s56, 1")
        a(f"s_cbranch_scc1 {lab}_d")
        a("s_sleep 2")
        a("s_cmp_lt_u32 s57, 0x40000")
        a(f"s_cbranch_scc1 {lab}")
        a(f"{lab}_d:")
        self.stamp(3)
        for gp in range(4):
            a(f"ds_read_b128 v[{28+4*gp}:{31+4*gp}], v{12+gp}")
        a("s_waitcnt vmcnt(8)")
        if o["wd"] == "early":
            a("s_cmp_eq_u32 s61, 0")
            a("s_cbranch_scc1 L_NOWINC")
            self.lds_inc(D_CNT_W, 16)
            a("L_NOWINC:")
        T = [112, 116, 44, 16]
        def L(G, i, d): return VB + 32*G + 4*i + d
        for ph in range(2):
            for dd in range(2):
                d = 2*ph + dd
                for e in range(2):
                    for rp in range(4):
                        a(f"v_perm_b32 v{T[2*dd+e]+rp}, v{L(0,2*rp+1,d)}, v{L(0,2*rp,d)}, s{12+e}")
            if ph == 0:
                a("s_waitcnt lgkmcnt(0)")
            else:
                a("s_nop 1")
            for jj in range(4):
                c = "0" if jj == 0 else f"v[{20+4*ph}:{23+4*ph}]"
                a(f"v_mfma_f32_16x16x32_bf16 v[{20+4*ph}:{23+4*ph}], v[{28+4*jj}:{31+4*jj}], v[{T[jj]}:{T[jj]+3}], {c}")
        a("s_nop 7")
        for gp in range(4):
            a(f"ds_read_b128 v[{28+4*gp}:{31+4*gp}], v{12+gp} offset:64")
        for rp in range(4):
            a(f"s_waitcnt vmcnt({6 - 2*rp})")
            if rp == 3 and o["ofl"] == "land":
                a("s_mov_b64 exec, 1")
                a(f"v_mov_b32 v16, {sm(D_CNT_VL)}\nv_mov_b32 v17, 1")
                a("ds_add_rtn_u32 v18, v16, v17")
                a("s_mov_b64 exec, -1")
            for d in range(4):
                for e in range(2):
                    a(f"v_perm_b32 v{VB+4*(2*d+e)+rp}, v{L(1,2*rp+1,d)}, v{L(1,2*rp,d)}, s{12+e}")
        self.stamp(4)
        a("s_waitcnt lgkmcnt(0)")
        if o["ofl"] == "land":
            a("v_readfirstlane_b32 s56, v18")
            a("s_cmp_eq_u32 s56, 7")
            a("s_cbranch_scc0 L_NOFL")
            a("s_mov_b64 exec, 1")
            a("buffer_store_dword v11, off, s[44:47], s60 sc1")
            a("s_mov_b64 exec, -1")
            a("L_NOFL:")
        for jj in range(4):
            for ph in range(2):
                j = 4*ph + jj
                a(f"v_mfma_f32_16x16x32_bf16 v[{20+4*ph}:{23+4*ph}], v[{28+4*jj}:{31+4*jj}], v[{VB+4*j}:{VB+4*j+3}], v[{20+4*ph}:{23+4*ph}]")
        a("s_nop 7")
        for r in range(2):
            a(f"ds_write2_b32 v10, v{20+r}, v{24+r} offset0:{r*128} offset1:{r*128+4}")
        a("s_waitcnt lgkmcnt(0)")
        self.lds_inc(D_CNT_O, 28, rtn=True)
        a("s_cmp_eq_u32 s56, 7")
        a("s_cbranch_scc0 L_VPOST")
        if o["ofl"] == "cnto":
            a("s_mov_b64 exec, 1")
            a("buffer_store_dword v11, off, s[44:47], s60 sc1")
            a("s_mov_b64 exec, -1")
        a(f"v_add_u32 v28, {L_OSLOT}, v8")
        for sl in range(8):
            a(f"ds_read_b128 v[{48+4*sl}:{51+4*sl}], v28 offset:{sl*1024}")
        a("v_lshrrev_b32 v29, 5, v1")
        a("v_lshlrev_b32 v29, 2, v29")
        a(f"v_add_u32 v30, {sm(D_M)}, v29")
        a(f"v_add_u32 v31, {sm(D_L)}, v29")
        a("ds_read_b32 v44, v30")
        a("ds_read_b32 v46, v31")
        a("s_lshl_b32 s14, s2, 12")
        a(f"s_add_u32 s14, s14, {WS_O}")
        a("v_lshlrev_b32 v28, 4, v1" if o["lay"] else "v_lshlrev_b32 v28, 5, v1")
        a("v_mov_b32 v37, s43\nv_mov_b32 v39, s43\nv_mov_b32 v41, s43\nv_mov_b32 v43, s43\nv_mov_b32 v45, s43\nv_mov_b32 v47, s43")
        a(f"s_mov_b32 s15, 0x{f32bits(SCALE_LOG2E):08x}")
        a("v_lshlrev_b32 v29, 2, v29")
        a("s_mov_b32 s58, 1\ns_mov_b32 s59, 1")
        a("s_waitcnt lgkmcnt(0)")
        for c in range(4):
            R = lambda sl: 48 + 4*sl + c
            a(f"v_add_f32 v{R(0)}, v{R(0)}, v{R(1)}")
            a(f"v_add_f32 v{R(2)}, v{R(2)}, v{R(3)}")
            a(f"v_add_f32 v{R(4)}, v{R(4)}, v{R(5)}")
            a(f"v_add_f32 v{R(6)}, v{R(6)}, v{R(7)}")
            a(f"v_add_f32 v{R(0)}, v{R(0)}, v{R(2)}")
            a(f"v_add_f32 v{R(4)}, v{R(4)}, v{R(6)}")
            a(f"v_add_f32 v{36+2*c}, v{R(0)}, v{R(4)}")
            if c == 1:
                a("buffer_store_dwordx4 v[36:39], v28, s[44:47], s14 offen sc1")
        a("v_mul_f32 v44, s15, v44")
        a(f"buffer_store_dwordx4 v[40:43], v28, s[44:47], s14 offen offset:{1024 if o['lay'] else 16} sc1")
        a("s_mov_b64 exec, s[58:59]")
        a("buffer_store_dwordx4 v[44:47], v29, s[44:47], s14 offen offset:2048 sc1")
        a("s_mov_b64 exec, -1")
        self.stamp(5)
        a("s_branch L_VPOST")

    def post(self):
        a = self.a
        o = self.opt
        early = o["wd"] in ("early", "kearly")
        a("L_KPOST:")
        a(f"s_setprio {o['kpost_prio']}")
        a(f"s_cmp_lt_u32 s98, {NLIGHT}")
        a("s_cbranch_scc1 L_KPOST_LIGHT")
        a("s_cmp_ge_u32 s99, 162")
        a("s_cbranch_scc1 L_HDONE")
        self.haddr()
        a("s_mov_b32 s57, 0")
        a("s_branch L_HCHK")
        a("L_HPOLL:")
        a("s_sleep 8")
        a("buffer_load_dwordx4 v[120:123], v8, s[44:47], s14 offen sc1")
        a("buffer_load_dwordx4 v[124:127], v8, s[44:47], s15 offen sc1")
        a("L_HCHK:")
        a("s_add_u32 s57, s57, 1")
        a("s_waitcnt vmcnt(0)")
        a("v_min3_u32 v32, v121, v123, v125\nv_max3_u32 v33, v121, v123, v125")
        a("v_min_u32 v32, v32, v127\nv_max_u32 v33, v33, v127")
        a("v_cmp_ne_u32 vcc, s43, v32")
        a("v_cmp_ne_u32 s[58:59], s43, v33")
        a("s_or_b64 vcc, vcc, s[58:59]")
        a("s_cbranch_vccz L_HGOT")
        a("s_cmp_lt_u32 s57, 0x10000")
        a("s_cbranch_scc1 L_HPOLL")
        a("L_HGOT:")
        a("s_cmp_eq_u32 s10, 7")
        a("s_cbranch_scc1 L_HG2")
        self.stamp(3)
        a("L_HG2:")
        a("v_lshlrev_b32 v32, 16, v120\nv_and_b32 v33, 0xffff0000, v120\nv_lshlrev_b32 v34, 16, v122\nv_and_b32 v35, 0xffff0000, v122")
        a("v_lshlrev_b32 v36, 16, v124\nv_and_b32 v37, 0xffff0000, v124\nv_lshlrev_b32 v38, 16, v126\nv_and_b32 v39, 0xffff0000, v126")
        a("s_mov_b32 s14, 0xbfb8aa3b")
        for i in range(4):
            a(f"v_mul_f32 v{40+i}, s14, v{32+i}")
        for i in range(4):
            a(f"v_exp_f32 v{40+i}, v{40+i}")
        a("s_nop 0")
        for i in range(4):
            a(f"v_add_f32 v{40+i}, 1.0, v{40+i}")
        for i in range(4):
            a(f"v_rcp_f32 v{40+i}, v{40+i}")
        a("s_nop 0")
        for i in range(4):
            a(f"v_mul_f32 v{40+i}, v{32+i}, v{40+i}")
        a("v_cvt_pk_bf16_f32 v44, v40, v41\nv_cvt_pk_bf16_f32 v45, v42, v43")
        a("v_lshlrev_b32 v40, 16, v44\nv_and_b32 v41, 0xffff0000, v44\nv_lshlrev_b32 v42, 16, v45\nv_and_b32 v43, 0xffff0000, v45")
        for i in range(4):
            a(f"v_mul_f32 v{40+i}, v{40+i}, v{36+i}")
        a("v_cvt_pk_bf16_f32 v44, v40, v41\nv_cvt_pk_bf16_f32 v45, v42, v43")
        a(f"s_mul_i32 s14, s10, {BM_PITCH}")
        a(f"s_add_u32 s14, s14, {L_BM}")
        a("v_lshlrev_b32 v46, 3, v1")
        a("v_add_u32 v46, s14, v46")
        a("ds_write_b64 v46, v[44:45]")
        if not early:
            self.lds_wait_ge(D_CNT_VISS if o["wd"] == "late" else D_CNT_O, o["viss"] if o["wd"] == "late" else 8, 32)
            self.lds_wait_ge(D_FLAG_S1P, 1, 32)
            a("s_mov_b32 s52, s32\ns_mov_b32 s53, s33\ns_mov_b32 s54, 5308416\ns_mov_b32 s55, 0x00020000")
            a("s_mov_b32 s56, 1152")
            self.wtile_lane_offsets(56, 12, 13, 14)
            a("s_lshl_b32 s14, s12, 8")
            a("s_lshl_b32 s15, s10, 5")
            a("s_add_u32 s14, s14, s15")
            a("s_mul_i32 s14, s14, 1152")
            a("s_lshl_b32 s15, s13, 7")
            a("s_add_u32 s14, s14, s15")
            a("s_lshl_b32 s15, s10, 12")
            for u in range(4):
                a(f"s_add_u32 m0, s15, {L_W + u*1024}")
                a(f"s_add_u32 s14, s14, {8*1152}" if u > 0 else "s_nop 0")
                if not o.get("nowd"):
                    a(f"buffer_load_dwordx4 v{12 + (u & 1)}, s[52:55], s14 offen nt lds")
        a("s_waitcnt vmcnt(0) lgkmcnt(0)")
        self.lds_inc(D_CNT_W, 32)
        a("s_cmp_ge_u32 s10, 4")
        a("s_cbranch_scc1 L_HDONE")
        a("s_lshl_b32 s63, s13, 10")
        a("s_lshl_b32 s14, s12, 2")
        a("s_add_u32 s63, s63, s14")
        a(f"s_add_u32 s63, s63, {WS_F3}")
        a("s_add_u32 s12, s12, 16")
        a("s_lshl_b32 s13, s13, 6")
        a("s_mov_b32 s15, 0")
        a("s_mov_b32 s14, s10")
        if early:
            self.tile_pre(wait=12 if o["wd"] == "early" else 8, ksoff=lambda ks: (ks >> 1) * 12288 + (ks & 1) * 4096)
        else:
            self.tile_pre(wait=8)
        self.stamp(1)
        self.tile_post()
        self.stamp(7)
        self.lds_inc(D_CNT_HA, 32, rtn=True)
        a("s_cmp_eq_u32 s56, 3")
        a("s_cbranch_scc0 L_HDONE")
        a("v_mov_b32 v32, s43")
        a("v_lshlrev_b32 v33, 7, v1")
        a("s_mov_b64 exec, 0xff")
        a("buffer_store_dword v32, v33, s[44:47], s63 offen sc1")
        a("s_mov_b64 exec, -1")
        a("L_HDONE:")
        a("s_cmp_eq_u32 s10, 7")
        a("s_cbranch_scc0 L_FIN")
        a(f"s_sub_u32 s11, s98, {NLIGHT + o['red0']}")
        a("s_cmp_ge_u32 s11, 144")
        a("s_cbranch_scc1 L_FIN")
        a("s_setprio 0")
        self.reducer()
        a("s_branch L_FIN")

        a("L_KPOST_LIGHT:")
        a("s_and_b32 s12, s98, 15")
        a("s_lshr_b32 s13, s98, 4")
        self.lds_wait_ge(D_CNT_VISS if o["wo"] == "viss" else D_CNT_O, 8, 32)
        a("s_mov_b32 s52, s24\ns_mov_b32 s53, s25\ns_mov_b32 s54, 4718592\ns_mov_b32 s55, 0x00020000")
        a("s_mov_b32 s56, 1152")
        self.wtile_lane_offsets(56, 12, 13, 14)
        a("s_lshl_b32 s14, s12, 8")
        a("s_lshl_b32 s15, s10, 5")
        a("s_add_u32 s14, s14, s15")
        a("s_mul_i32 s14, s14, 1152")
        a("s_mul_i32 s15, s13, 384")
        a("s_add_u32 s14, s14, s15")
        a("s_lshl_b32 s15, s10, 12")
        for u in range(4):
            for st in range(3):
                a(f"s_add_u32 m0, s15, {L_W + st*32768 + u*1024}")
                a(f"s_add_u32 s56, s14, {st*128}")
                if not o.get("nowo"):
                    a(f"buffer_load_dwordx4 v{12 + (u & 1)}, s[52:55], s56 offen nt lds")
            a(f"s_add_u32 s14, s14, {8*1152}")
        a("s_waitcnt vmcnt(0)")
        self.lds_inc(D_CNT_W, 32)
        a("L_VPOST_LIGHT:")
        a("s_cmp_ge_u32 s3, 12")
        a("s_cbranch_scc1 L_LPRE_D")
        a("s_and_b32 s12, s98, 15")
        a("s_lshr_b32 s13, s98, 4")
        a("s_mul_i32 s13, s13, 192")
        a("s_lshr_b32 s15, s3, 2")
        a("s_lshl_b32 s14, s15, 6")
        a("s_add_u32 s13, s13, s14")
        a("s_lshl_b32 s15, s15, 15")
        a("s_and_b32 s14, s3, 3")
        self.tile_pre(wait=8)
        a("L_LPRE_D:")
        a("s_lshr_b32 s4, s3, 1")
        a("s_and_b32 s5, s3, 1")
        a("s_and_b32 s12, s98, 15")
        a("s_lshl_b32 s14, s4, 5")
        a("s_add_u32 s14, s14, s12")
        a("s_lshl_b32 s14, s14, 12")
        a(f"s_add_u32 s14, s14, {WS_O}")
        a("s_lshl_b32 s15, s5, 9" if o["lay"] else "s_lshl_b32 s15, s5, 10")
        a("s_add_u32 s6, s14, s15")
        a("s_add_u32 s7, s6, 0x10000")
        a("s_lshl_b32 s15, s5, 4")
        a("s_add_u32 s8, s14, s15")
        a("s_add_u32 s8, s8, 2048")
        a("s_add_u32 s9, s8, 0x10000")
        a("s_lshl_b32 s60, s12, 10")
        a("s_lshl_b32 s14, s4, 7")
        a("s_add_u32 s60, s60, s14")
        a(f"s_add_u32 s60, s60, {WS_FO}")
        a("s_add_u32 s66, s40, s60\ns_addc_u32 s67, s41, 0")
        a("v_lshlrev_b32 v5, 7, v1")
        a("s_lshr_b32 s63, s98, 4\ns_lshl_b32 s63, s63, 10")
        a("s_lshl_b32 s14, s12, 2")
        a("s_add_u32 s63, s63, s14")
        a(f"s_add_u32 s63, s63, {WS_F2}")
        a(f"s_mul_i32 s14, s4, {BM_PITCH}")
        a("s_lshl_b32 s15, s5, 8")
        a("s_add_u32 s14, s14, s15")
        a(f"s_add_u32 s14, s14, {L_BM}")
        if o["lay"]:
            a("v_and_b32 v4, 31, v1\nv_lshrrev_b32 v3, 5, v1")
            a("v_lshlrev_b32 v11, 3, v4\nv_lshlrev_b32 v10, 2, v3\nv_add_u32 v11, v11, v10")
            a("v_lshlrev_b32 v4, 4, v4\nv_lshlrev_b32 v3, 10, v3\nv_add_u32 v4, v4, v3")
        else:
            a("v_lshlrev_b32 v11, 2, v1")
            a("v_mov_b32 v4, v8")
        a("v_add_u32 v11, s14, v11")
        a("v_mov_b32 v10, 0")
        a("v_mov_b32 v9, s43")
        a("s_mov_b32 s68, s43\ns_mov_b32 s69, s43")
        a("s_mov_b32 s57, 0")
        a("L_OPRE:")
        a("s_load_dwordx2 s[60:61], s[66:67], 0 glc")
        a("s_add_u32 s57, s57, 1")
        a("s_waitcnt lgkmcnt(0)")
        a("s_cmp_eq_u64 s[60:61], s[68:69]")
        a("s_cbranch_scc1 L_OPRE_D")
        a("s_cmp_lt_u32 s57, 0x10000")
        a("s_cbranch_scc1 L_OPRE")
        a("L_OPRE_D:")
        self.stamp(3)
        a("s_mov_b32 s57, 0")
        def oloads(st0, st1, o0, o1):
            a(f"buffer_load_dwordx4 v[{st0}:{st0+3}], v10, s[44:47], s8 offen sc1")
            a(f"buffer_load_dwordx4 v[{st1}:{st1+3}], v10, s[44:47], s9 offen sc1")
            a(f"buffer_load_dwordx4 v[{o0}:{o0+3}], v4, s[44:47], s6 offen sc1")
            a(f"buffer_load_dwordx4 v[{o1}:{o1+3}], v4, s[44:47], s7 offen sc1")
        oloads(32, 36, 24, 28)
        if o["ab1"]:
            a(f"s_sleep {o['ab1']}")
            oloads(104, 108, 96, 100)
        a("L_OPOLL:")
        a("s_waitcnt vmcnt(6)" if o["ab1"] else "s_waitcnt vmcnt(2)")
        a("v_max_f32 v40, v32, v36")
        a("v_sub_f32 v42, v32, v40")
        a("v_sub_f32 v43, v36, v40")
        a("v_exp_f32 v42, v42")
        a("v_exp_f32 v43, v43")
        a("v_min3_u32 v44, v33, v35, v37\nv_max3_u32 v45, v33, v35, v37")
        a("v_mul_f32 v40, v42, v34")
        a("v_fma_f32 v40, v43, v38, v40")
        a("v_rcp_f32 v40, v40")
        a("v_min_u32 v44, v44, v39\nv_max_u32 v45, v45, v39")
        a("v_mul_f32 v42, v42, v40")
        a("v_mul_f32 v43, v43, v40")
        a("s_waitcnt vmcnt(4)" if o["ab1"] else "s_waitcnt vmcnt(0)")
        a("v_min3_u32 v44, v44, v25, v27\nv_max3_u32 v45, v45, v25, v27")
        a("v_min3_u32 v44, v44, v29, v31\nv_max3_u32 v45, v45, v29, v31")
        a("v_mul_f32 v24, v24, v42")
        a("v_mul_f32 v26, v26, v42")
        a("v_cmp_ne_u32 vcc, s43, v44")
        a("v_cmp_ne_u32 s[58:59], s43, v45")
        a("v_fma_f32 v24, v28, v43, v24")
        a("v_fma_f32 v26, v30, v43, v26")
        a("s_or_b64 vcc, vcc, s[58:59]")
        a("v_cvt_pk_bf16_f32 v24, v24, v26")
        a("s_cbranch_vccz L_OGOT")
        a("s_add_u32 s57, s57, 1")
        a("s_cmp_ge_u32 s57, 0x10000")
        a("s_cbranch_scc1 L_OGOT")
        if o["ab1"]:
            a("s_waitcnt vmcnt(0)")
            for r in range(8):
                a(f"v_mov_b32 v{32+r}, v{104+r}")
            for r in range(8):
                a(f"v_mov_b32 v{24+r}, v{96+r}")
            oloads(104, 108, 96, 100)
        else:
            oloads(32, 36, 24, 28)
        a("s_branch L_OPOLL")
        a("L_OGOT:")
        a("ds_write_b32 v11, v24")
        self.stamp(6)
        if self.stamps:
            a("v_writelane_b32 v2, s57, 1")
        a("s_waitcnt lgkmcnt(0)")
        a("s_barrier")
        a("s_cmp_ge_u32 s3, 12")
        a("s_cbranch_scc1 L_LFLAG")
        self.tile_post()
        self.stamp(7)
        a("s_branch L_FIN")
        a("L_LFLAG:")
        a("s_cmp_eq_u32 s3, 12")
        a("s_cbranch_scc0 L_FIN")
        a("s_mov_b64 exec, 0xff")
        a("buffer_store_dword v9, v5, s[44:47], s63 offen sc1")
        a("s_mov_b64 exec, -1")
        a("s_branch L_FIN")
        a("L_VPOST:")
        a(f"s_cmp_lt_u32 s98, {NLIGHT}")
        a("s_cbranch_scc1 L_VPOST_LIGHT")
        a("s_branch L_FIN")

    def tile_pre(self, wait=8, ksoff=lambda ks: ks * 4096):
        a = self.a
        self.tr_addr(28, base_sgpr=15)
        a("s_lshl_b32 s56, s14, 5")
        a("v_xor_b32 v28, s56, v28")
        a("v_and_b32 v12, 7, v6")
        a(f"v_mul_u32_u24 v13, {PART_PITCH}, v12")
        a(f"v_mul_u32_u24 v12, {BM_PITCH}, v12")
        a("v_lshlrev_b32 v30, 4, v7")
        a("v_add_u32 v12, v12, v30")
        a(f"v_add_u32 v12, {L_BM}, v12")
        a("v_lshlrev_b32 v30, 4, v7" if self.opt["lay"] else "v_lshlrev_b32 v30, 5, v7")
        a("v_add_u32 v13, v13, v30")
        a(f"s_mul_i32 s62, s12, {8*PART_PITCH}")
        a("s_lshl_b32 s57, s14, 4")
        a("s_add_u32 s57, s57, s13")
        a("s_lshl_b32 s57, s57, 3")
        a("s_add_u32 s62, s62, s57")
        a(f"s_add_u32 s62, s62, {WS_PART}")
        self.lds_wait_ge(D_CNT_W, wait, 30)
        for ks in range(8):
            a(f"ds_read_b64_tr_b16 v[{48+4*ks}:{49+4*ks}], v28 offset:{ksoff(ks)}")
            a(f"ds_read_b64_tr_b16 v[{50+4*ks}:{51+4*ks}], v28 offset:{ksoff(ks)+512}")
            if ks == 3: a("s_waitcnt lgkmcnt(4)")
        a("v_mov_b32 v113, s43\nv_mov_b32 v115, s43\nv_mov_b32 v117, s43\nv_mov_b32 v119, s43")
        a("s_mov_b32 s64, 0x00ff00ff\ns_mov_b32 s65, 0x00ff00ff")

    def tile_post(self):
        a = self.a
        for ks in range(8):
            if ks == 4: a("s_waitcnt vmcnt(0)")
            a(f"ds_read_b128 v[{80+4*ks}:{83+4*ks}], v12 offset:{ks*64}")
        for ks in range(8):
            a(f"s_waitcnt lgkmcnt({7-ks})")
            acc = 20 if ks % 2 == 0 else 24
            c = "0" if ks < 2 else f"v[{acc}:{acc+3}]"
            a(f"v_mfma_f32_16x16x32_bf16 v[{acc}:{acc+3}], v[{48+4*ks}:{51+4*ks}], v[{80+4*ks}:{83+4*ks}], {c}")
        a("s_mov_b64 exec, s[64:65]")
        a("s_nop 6")
        a("v_add_f32 v112, v20, v24\nv_add_f32 v114, v21, v25\nv_add_f32 v116, v22, v26\nv_add_f32 v118, v23, v27")
        a("buffer_store_dwordx4 v[112:115], v13, s[44:47], s62 offen sc1")
        a(f"buffer_store_dwordx4 v[116:119], v13, s[44:47], s62 offen offset:{64 if self.opt['lay'] else 16} sc1")
        a("s_mov_b64 exec, -1")

    def chk16(self, base, dst):
        a = self.a
        for i in range(8):
            a(f"s_xor_b64 s[{base+2*i}:{base+2*i+1}], s[{base+2*i}:{base+2*i+1}], s[70:71]")
        for i in range(4):
            a(f"s_or_b64 s[{base+4*i}:{base+4*i+1}], s[{base+4*i}:{base+4*i+1}], s[{base+4*i+2}:{base+4*i+3}]")
        a(f"s_or_b64 s[{base}:{base+1}], s[{base}:{base+1}], s[{base+4}:{base+5}]")
        a(f"s_or_b64 s[{base+8}:{base+9}], s[{base+8}:{base+9}], s[{base+12}:{base+13}]")
        a(f"s_or_b64 s[{base}:{base+1}], s[{base}:{base+1}], s[{base+8}:{base+9}]")

    def hloads(self):
        a = self.a
        for u in range(4, 8):
            a(f"buffer_load_dwordx4 v[{48+4*u}:{51+4*u}], v10, s[44:47], s{60+u} offen sc1")
        a("s_mov_b32 s58, -1\ns_mov_b32 s59, 0")
        a("s_mov_b64 exec, s[58:59]")
        a("buffer_load_dwordx4 v[80:83], v10, s[44:47], s68 offen sc1")
        a("s_mov_b64 exec, -1")

    def reducer(self):
        a = self.a
        o = self.opt
        a("s_mul_i32 s12, s11, 3641")
        a("s_lshr_b32 s12, s12, 16")
        a("s_mul_i32 s13, s12, 18")
        a("s_sub_u32 s13, s11, s13")
        a("v_lshlrev_b32 v10, 1, v1")
        a("s_mul_i32 s14, s12, 1152")
        a("v_add_u32 v11, s14, v10")
        for i in range(9):
            a(f"global_load_ushort v{24+i}, v11, s[16:17] offset:{128*i}")
            a(f"global_load_ushort v{36+i}, v10, s[34:35] offset:{128*i}")
        a("s_lshr_b32 s14, s13, 1")
        a("s_lshl_b32 s14, s14, 10")
        a("s_lshl_b32 s15, s12, 7")
        a("s_add_u32 s14, s14, s15")
        a(f"s_add_u32 s14, s14, {WS_F3}")
        a("s_add_u32 s90, s40, s14\ns_addc_u32 s91, s41, 0")
        a("s_mul_i32 s14, s13, 43")
        a("s_lshr_b32 s14, s14, 8")
        a("s_lshl_b32 s14, s14, 10")
        a("s_add_u32 s14, s14, s15")
        a(f"s_add_u32 s14, s14, {WS_F2}")
        a("s_add_u32 s92, s40, s14\ns_addc_u32 s93, s41, 0")
        a("s_mov_b32 s70, s43\ns_mov_b32 s71, s43")
        a("s_waitcnt vmcnt(0)")
        for i in range(9):
            a(f"v_lshlrev_b32 v{24+i}, 16, v{24+i}")
            a(f"v_lshlrev_b32 v{36+i}, 16, v{36+i}")
        for i in range(9):
            a(f"v_mul_f32 v{24+i}, v{24+i}, v{36+i}")
        for i in range(0, 8, 2):
            a(f"v_cvt_pk_bf16_f32 v{36+i}, v{24+i}, v{25+i}")
        a("v_cvt_pk_bf16_f32 v44, v32, v32")
        a("v_mov_b32 v46, 0")
        for i in range(0, 8, 2):
            a(f"v_lshlrev_b32 v24, 16, v{36+i}\nv_and_b32 v25, 0xffff0000, v{36+i}")
            a("v_add_f32 v46, v46, v24\nv_add_f32 v46, v46, v25")
        a("v_lshlrev_b32 v24, 16, v44\nv_add_f32 v46, v46, v24")
        self.row_reduce("v_add_f32", 46)
        a("s_nop 1")
        a("v_readlane_b32 s14, v46, 0\nv_readlane_b32 s15, v46, 16\nv_readlane_b32 s56, v46, 32\nv_readlane_b32 s57, v46, 48")
        a("s_nop 1")
        a("v_mov_b32 v46, s14\nv_add_f32 v46, s15, v46\nv_add_f32 v46, s56, v46\nv_add_f32 v46, s57, v46")
        a("v_cvt_pk_bf16_f32 v46, v46, v46")
        a("v_lshlrev_b32 v46, 16, v46")
        a("v_mul_f32 v46, 0xbfb8aa3b, v46")
        a("v_exp_f32 v46, v46")
        a("s_nop 0")
        a("v_add_f32 v46, 1.0, v46")
        a("v_rcp_f32 v46, v46")
        a("s_nop 0")
        a("v_cvt_pk_bf16_f32 v46, v46, v46")
        a("v_lshlrev_b32 v46, 16, v46")
        a("v_sub_f32 v47, 1.0, v46")
        a("v_cvt_pk_bf16_f32 v47, v47, v47")
        a("v_lshlrev_b32 v47, 16, v47")
        a(f"v_mul_u32_u24 v10, {8*PART_PITCH}, v7")
        a("v_lshlrev_b32 v11, 4, v6")
        a("v_add_u32 v10, v10, v11")
        a(f"s_mul_i32 s14, s12, {PART_PITCH}")
        a("s_lshl_b32 s15, s13, 8")
        a("s_add_u32 s14, s14, s15")
        a(f"s_add_u32 s14, s14, {WS_PART}")
        for u in range(9):
            a(f"s_add_u32 s{60+u}, s14, {u*4*8*PART_PITCH}")
        a("v_mov_b32 v80, 0\nv_mov_b32 v81, s43\nv_mov_b32 v82, 0\nv_mov_b32 v83, s43")
        a("s_mul_i32 s14, s12, 1152")
        a("s_lshl_b32 s15, s13, 6")
        a("s_add_u32 s14, s14, s15")
        if o["lay"]:
            a("v_lshrrev_b32 v11, 3, v6\nv_lshlrev_b32 v11, 5, v11")
            a("v_and_b32 v24, 3, v6\nv_lshlrev_b32 v24, 3, v24\nv_add_u32 v11, v11, v24")
            a("v_bfe_u32 v24, v6, 2, 1\nv_lshlrev_b32 v24, 2, v24\nv_add_u32 v11, v11, v24")
        else:
            a("v_lshlrev_b32 v11, 2, v6")
        a("v_add_u32 v11, s14, v11")
        a("s_mov_b32 s52, s36\ns_mov_b32 s53, s37\ns_mov_b32 s54, 9216\ns_mov_b32 s55, 0x00020000")
        a("s_setprio 3")
        a("s_mov_b32 s57, 0\ns_mov_b32 s15, 0")
        a("L_RF:")
        a("s_load_dwordx16 s[16:31], s[92:93], 0 glc")
        a("s_cmp_lg_u32 s15, 0")
        a("s_cbranch_scc1 L_RF_W")
        a("s_load_dwordx16 s[72:87], s[90:91], 0 glc")
        a("s_load_dwordx2 s[88:89], s[90:91], 64 glc")
        a("s_waitcnt lgkmcnt(0)")
        a("s_xor_b64 s[88:89], s[88:89], s[70:71]")
        self.chk16(72, None)
        a("s_or_b64 s[72:73], s[72:73], s[88:89]")
        a("s_cbranch_scc1 L_RF_N")
        self.hloads()
        a("s_mov_b32 s15, 1")
        self.stamp(3)
        a("L_RF_W:")
        a("s_waitcnt lgkmcnt(0)")
        self.chk16(16, None)
        a("s_cbranch_scc0 L_RF_D")
        a("L_RF_N:")
        a("s_add_u32 s57, s57, 1")
        a("s_cmp_lt_u32 s57, 0x10000")
        a("s_cbranch_scc1 L_RF")
        a("L_RF_D:")
        self.stamp(5)
        a("s_setprio 3")
        a("s_mov_b32 s57, 0")
        a("s_cmp_lg_u32 s15, 0")
        a("s_cbranch_scc1 L_RP2")
        a("L_RPOLL:")
        self.hloads()
        a("L_RP2:")
        for u in range(4):
            a(f"buffer_load_dwordx4 v[{48+4*u}:{51+4*u}], v10, s[44:47], s{60+u} offen sc1")
        if o["ab"]:
            a(f"s_sleep {o['ab']}")
            for u in range(4):
                a(f"buffer_load_dwordx4 v[{84+4*u}:{87+4*u}], v10, s[44:47], s{60+u} offen sc1")
            a("s_waitcnt vmcnt(8)")
        else:
            a("s_waitcnt vmcnt(4)")
        a("v_min3_u32 v24, v65, v67, v69\nv_max3_u32 v25, v65, v67, v69")
        a("v_min3_u32 v24, v24, v71, v73\nv_max3_u32 v25, v25, v71, v73")
        a("v_min3_u32 v24, v24, v75, v77\nv_max3_u32 v25, v25, v75, v77")
        a("v_min3_u32 v24, v24, v79, v81\nv_max3_u32 v25, v25, v79, v81")
        a("v_min_u32 v24, v24, v83\nv_max_u32 v25, v25, v83")
        a("v_add_f32 v28, v64, v68\nv_add_f32 v29, v66, v70")
        a("v_cmp_ne_u32 vcc, s43, v24")
        a("v_cmp_ne_u32 s[58:59], s43, v25")
        a("v_add_f32 v32, v72, v76\nv_add_f32 v33, v74, v78")
        a("s_or_b64 vcc, vcc, s[58:59]")
        a("v_add_f32 v28, v28, v32\nv_add_f32 v29, v29, v33")
        a("s_cbranch_vccz L_RHOK")
        a("s_add_u32 s57, s57, 1")
        a("s_waitcnt vmcnt(0)")
        a("s_cmp_lt_u32 s57, 0x10000")
        a("s_cbranch_scc1 L_RPOLL")
        a("L_RHOK:")
        a("v_add_f32 v28, v28, v80\nv_add_f32 v29, v29, v82")
        for swap in ("v_permlane32_swap_b32", "v_permlane16_swap_b32"):
            a("v_mov_b32 v30, v28\nv_mov_b32 v31, v29")
            a("s_nop 1")
            a(f"{swap} v28, v30\n{swap} v29, v31")
            a("s_nop 1")
            a("v_add_f32 v28, v28, v30\nv_add_f32 v29, v29, v31")
        a("v_cvt_pk_bf16_f32 v31, v28, v29")
        a("v_lshlrev_b32 v28, 16, v31\nv_and_b32 v29, 0xffff0000, v31")
        a("v_mul_f32 v28, v47, v28\nv_mul_f32 v29, v47, v29")
        a("v_cvt_pk_bf16_f32 v31, v28, v29")
        a("v_lshlrev_b32 v28, 16, v31\nv_and_b32 v29, 0xffff0000, v31")
        a("L_RCHK:")
        a("s_waitcnt vmcnt(4)" if o["ab"] else "s_waitcnt vmcnt(0)")
        a("v_min3_u32 v24, v49, v51, v53\nv_max3_u32 v25, v49, v51, v53")
        a("v_min3_u32 v24, v24, v55, v57\nv_max3_u32 v25, v25, v55, v57")
        a("v_min3_u32 v24, v24, v59, v61\nv_max3_u32 v25, v25, v59, v61")
        a("v_min_u32 v24, v24, v63\nv_max_u32 v25, v25, v63")
        a("v_add_f32 v26, v48, v52\nv_add_f32 v27, v50, v54")
        a("v_cmp_ne_u32 vcc, s43, v24")
        a("v_cmp_ne_u32 s[58:59], s43, v25")
        a("v_add_f32 v30, v56, v60\nv_add_f32 v31, v58, v62")
        a("s_or_b64 vcc, vcc, s[58:59]")
        a("v_add_f32 v26, v26, v30\nv_add_f32 v27, v27, v31")
        a("s_cbranch_vccz L_RGOT")
        a("s_add_u32 s57, s57, 1")
        a("s_cmp_ge_u32 s57, 0x10000")
        a("s_cbranch_scc1 L_RGOT")
        if o["ab"]:
            a("s_waitcnt vmcnt(0)")
            for r in range(16):
                a(f"v_mov_b32 v{48+r}, v{84+r}")
            for u in range(4):
                a(f"buffer_load_dwordx4 v[{84+4*u}:{87+4*u}], v10, s[44:47], s{60+u} offen sc1")
        else:
            for u in range(4):
                a(f"buffer_load_dwordx4 v[{48+4*u}:{51+4*u}], v10, s[44:47], s{60+u} offen sc1")
        a("s_branch L_RCHK")
        a("L_RGOT:")
        self.stamp(6)
        if self.stamps:
            a("v_writelane_b32 v2, s57, 1")
        for swap in ("v_permlane32_swap_b32", "v_permlane16_swap_b32"):
            a("v_mov_b32 v30, v26\nv_mov_b32 v31, v27")
            a("s_nop 1")
            a(f"{swap} v26, v30\n{swap} v27, v31")
            a("s_nop 1")
            a("v_add_f32 v26, v26, v30\nv_add_f32 v27, v27, v31")
        a("v_cvt_pk_bf16_f32 v30, v26, v27")
        a("v_lshlrev_b32 v26, 16, v30\nv_and_b32 v27, 0xffff0000, v30")
        a("v_mul_f32 v26, v46, v26\nv_mul_f32 v27, v46, v27")
        a("v_cvt_pk_bf16_f32 v30, v26, v27")
        a("v_lshlrev_b32 v26, 16, v30\nv_and_b32 v27, 0xffff0000, v30")
        a("v_add_f32 v26, v26, v28\nv_add_f32 v27, v27, v29")
        a("v_cvt_pk_bf16_f32 v30, v26, v27")
        a("s_mov_b64 exec, 0xffff")
        a("buffer_store_dword v30, v11, s[52:55], 0 offen")
        a("s_cmp_eq_u32 s11, 0")
        a("s_cbranch_scc0 L_RDONE")
        a("s_mov_b64 exec, 1")
        a("v_mov_b32 v11, s43")
        a("buffer_store_dword v11, off, s[44:47], 0 sc1")
        a("L_RDONE:")
        a("s_mov_b64 exec, -1")
        self.stamp(7)

    def epilogue(self):
        a = self.a
        a("L_FIN:")
        if self.stamps:
            a("s_lshl_b32 s14, s2, 4")
            a("s_add_u32 s14, s14, s3")
            a("s_lshl_b32 s14, s14, 6")
            a(f"s_add_u32 s14, s14, {STAMP_OFF}")
            a("s_add_u32 s40, s40, s14\ns_addc_u32 s41, s41, 0")
            a("v_mov_b32 v3, 0")
            a("v_and_b32 v4, 63, v0")
            a("v_lshlrev_b32 v4, 3, v4")
            a("s_mov_b64 exec, 0xff")
            a("global_store_dwordx2 v4, v[2:3], s[40:41]")
        a("L_END:")
        a("s_endpgm")

    def build(self):
        self.prologue()
        self.vwave_first = True
        self.vwave()
        self.kwave()
        self.post()
        self.epilogue()
        return wrap(self.a.text(), NWG, 1024, LDS_ALLOC, self.opt["vgpr"], sgpr=102)

if __name__ == "__main__":
    stamps = "--stamps" in sys.argv
    opt = {}
    outs = []
    for x in sys.argv[1:]:
        if x.startswith("--"):
            if "=" in x:
                k, v = x[2:].split("=")
                if v in ("True", "False"): v = (v == "True")
                elif v.lstrip("-").isdigit(): v = int(v)
                opt[k] = v
        else:
            outs.append(x)
    txt = Gen(stamps=stamps, **opt).build()
    open(outs[0] if outs else "k.s", "w").write(txt)
```

```python
PLANS = {
    "A": dict(nL=[0, 2, 0, 14, 2, 13, 4, 13], sorder=[0, 2, 1, 3, 4, 5, 6, 7], nD=[32, 30, 32, 4, 30, 3, 28, 3]),
    "B": dict(nL=[0, 0, 0, 16, 0, 16, 0, 16], sorder=[0, 2, 1, 3, 4, 5, 6, 7], nD=[32, 32, 32, 1, 32, 1, 32, 0]),
    "U": dict(nL=[6]*8, sorder=[0, 2, 1, 3, 4, 5, 6, 7], nD=[21, 20, 20, 20, 21, 20, 20, 20]),
    "P": dict(nL=[0, 12, 0, 12, 0, 12, 0, 12], sorder=[0, 2, 1, 3, 4, 5, 6, 7], nD=[32, 9, 32, 8, 32, 9, 32, 8]),
    "Q": dict(nL=[0, 12, 0, 12, 0, 12, 0, 12], sorder=[0, 2, 1, 3, 4, 5, 6, 7], nD=[32, 9, 32, 8, 32, 9, 32, 8], n3=[13, 0, 13, 0, 0, 0, 0, 0]),
    "R": dict(nL=[0, 10, 0, 12, 0, 13, 0, 13], sorder=[0, 2, 1, 3, 4, 5, 6, 7], nD=[32, 10, 32, 8, 32, 8, 32, 8], n3=[14, 0, 12, 0, 0, 0, 0, 0]),
    "S": dict(nL=[0, 12, 0, 12, 0, 12, 0, 12], sorder=[0, 2, 1, 3, 4, 5, 6, 7], nD=[32, 9, 32, 8, 32, 9, 32, 8], n3=[9, 0, 9, 0, 4, 0, 4, 0]),
    "V": dict(nL=[2, 6, 2, 6, 8, 8, 8, 8], sorder=[0, 2, 1, 3, 4, 5, 6, 7], nD=[30, 20, 30, 20, 16, 15, 16, 15], n3=[7, 6, 7, 6, 0, 0, 0, 0]),
    "W": dict(nL=[0, 6, 0, 6, 8, 10, 8, 10], sorder=[0, 2, 1, 3, 4, 5, 6, 7], nD=[32, 20, 32, 20, 16, 13, 16, 13], n3=[8, 5, 8, 5, 0, 0, 0, 0]),
    "X": dict(nL=[2, 8, 2, 8, 4, 10, 4, 10], sorder=[0, 2, 1, 3, 4, 5, 6, 7], nD=[30, 14, 30, 14, 28, 9, 28, 9], n3=[6, 3, 6, 3, 4, 0, 4, 0]),
    "Y": dict(nL=[0, 12, 0, 12, 0, 12, 0, 12], sorder=[0, 2, 1, 3, 4, 5, 6, 7], nD=[23, 15, 23, 15, 28, 15, 28, 15], n3=[9, 0, 9, 0, 4, 0, 4, 0], skip3=True),
    "Z": dict(nL=[0, 12, 0, 12, 0, 12, 0, 12], sorder=[0, 2, 1, 3, 4, 5, 6, 7], nD=[32, 9, 32, 8, 32, 9, 32, 8], n3=[7, 6, 7, 6, 0, 0, 0, 0]),
    "D": dict(nL=[0, 10, 0, 10, 4, 12, 2, 10], sorder=[0, 2, 1, 3, 4, 5, 6, 7], nD=[32, 11, 32, 11, 28, 9, 30, 9], n3=[7, 6, 7, 6, 0, 0, 0, 0]),
    "F": dict(nL=[0, 8, 0, 8, 6, 12, 4, 10], sorder=[0, 2, 1, 3, 4, 5, 6, 7], nD=[32, 14, 32, 14, 26, 8, 28, 8], n3=[8, 5, 8, 5, 0, 0, 0, 0]),
    "G": dict(nL=[0, 12, 0, 12, 0, 12, 0, 12], sorder=[0, 2, 1, 3, 4, 5, 6, 7], nD=[32, 9, 32, 8, 32, 9, 32, 8], n3=[4, 4, 3, 3, 3, 3, 3, 3]),
    "H": dict(nL=[6]*8, sorder=[0, 2, 1, 3, 4, 5, 6, 7], nD=[21, 20, 20, 20, 21, 20, 20, 20], n3=[4, 4, 3, 3, 3, 3, 3, 3]),
    "I": dict(nL=[6]*8, sorder=[0, 2, 1, 3, 4, 5, 6, 7], nD=[24, 22, 24, 22, 18, 17, 18, 17], n3=[7, 6, 7, 6, 0, 0, 0, 0]),
    "J": dict(nL=[6]*8, sorder=[0, 2, 1, 3, 4, 5, 6, 7], nD=[22, 20, 22, 20, 20, 19, 20, 19], n3=[5, 4, 5, 4, 2, 2, 2, 2]),
    "T": dict(nL=[0, 6, 0, 10, 4, 12, 4, 12], sorder=[0, 2, 1, 3, 4, 5, 6, 7], nD=[32, 16, 32, 10, 28, 8, 28, 8], n3=[13, 0, 13, 0, 0, 0, 0, 0]),
}
def tables(plan):
    p = PLANS[plan]
    nL, nD = p["nL"], p["nD"]
    n3 = p.get("n3", [0]*8)
    use3 = "n3" in p
    assert sum(nL) == 48 and sum(nD) == 162, (sum(nL), sum(nD))
    assert (not use3) or sum(n3) == 26
    Lbase = [sum(nL[:x]) for x in range(8)]
    nS = [32 - n for n in nL]
    Sbase = [0]*8
    K3base = [sum(n3[:x]) for x in range(8)]
    acc = 0
    for x in p["sorder"]:
        Sbase[x] = acc; acc += nS[x] - n3[x]
    assert acc == (182 if use3 else 208)
    Dbase = [sum(nD[:x]) for x in range(8)]
    skip3 = p.get("skip3", False)
    for x in range(8): assert nD[x] <= nS[x] - (n3[x] if skip3 else 0)
    return dict(skip3=skip3, nL=nL, Lbase=Lbase, Sbase=Sbase, nD=nD, Dbase=Dbase, n3=n3, K3base=K3base, use3=use3)
def roles(plan, lal=False):
    t = tables(plan)
    role, td = [], []
    for w in range(256):
        x, i = w & 7, w >> 3
        if i < t["nL"][x]:
            role.append((x + 8 * (i & 1) + 16 * (i >> 1)) if lal else t["Lbase"][x] + i); td.append(255)
        else:
            ih = i - t["nL"][x]
            if not t["use3"]:
                hs = t["Sbase"][x] + ih
            elif ih < t["n3"][x]:
                hs = (t["K3base"][x] + ih) * 8 + 3
            else:
                n = t["Sbase"][x] + ih - t["n3"][x]
                d = (n * 9363) >> 16
                r = n - 7 * d
                hs = 8 * d + r + (1 if r >= 3 else 0)
            role.append(48 + hs)
            idd = ih - (t["n3"][x] if t["skip3"] else 0)
            td.append(t["Dbase"][x] + idd if 0 <= idd < t["nD"][x] else 255)
    assert sorted(role) == list(range(256)), sorted(role)
    assert sorted(t_ for t_ in td if t_ != 255) == list(range(162))
    return role, td
def pack(bs):
    v = 0
    for i, b in enumerate(bs): v |= (b & 0xff) << (8 * i)
    return v & 0xffffffff, v >> 32
if __name__ == "__main__":
    for k in PLANS:
        r, t = roles(k); print(k, tables(k))
```

```python
import sys
from asmlib import *
import rolemap

NWG = 256
NLIGHT = 48
WD0 = 46
L_W = 0
L_KSCR = 98304
L_SMALL = 131072
L_S1SLOT = 73728
L_OSLOT = L_KSCR
L_Q = L_SMALL + 4096
L_P = L_Q + 512
L_BM = L_P + 2048
BM_PITCH = 528
LDS_BYTES = L_BM + 8 * BM_PITCH
LDS_ALLOC = 143360
D_L = 768
D_CNT_S1 = 776
D_FLAG_Q = 777
D_CNT_M = 778
D_CNT_O = 779
D_CNT_W = 780
D_CNT_HA = 781
D_CNT_VISS = 782
D_FLAG_S1P = 783
D_FLAG_P = 784
D_CNT_KISS = 792
D_CNT_VL = 793
D_ZERO = 800
D_M = 1022
def sm(d): return L_SMALL + 4 * d
WS_EPOCH = 0
WS_FO = 0x4000
WS_F2 = 0x8000
WS_F3 = 0x9000
WS_S1 = 0x10000
WS_FO3 = 0x80000
WS_F2R = 0x90000
S1_PITCH = 3328 * 16
WS_O = 0x100000
WS_PART = 0x200000
PART_PITCH = 576 * 8
WS_BYTES = 0x400000
STAMP_OFF = 0x10000000
SCALE_LOG2E = 0.08838834764831845 * 1.4426950408889634

import struct
def f32bits(x): return struct.unpack("<I", struct.pack("<f", x))[0]

class Gen:
    def __init__(self, stamps=False, **opt):
        self.a = Asm()
        self.stamps = stamps
        self.opt = dict(wd="late", gate="all", kiss=True, vgpr=128, red0=0, ofl="cnto", kpost_prio=3, plan="S", viss=8, wo="viss", ngate=6, qf="after", win=12, win3=4, swap=1, cpf=0, ab=0, ab1=0, lay=1, c3u=0, c3w=0, lal=0, bmask=0, numa=0, npol=0, pp=0, pp2=0, fo3=0, f2r=0)
        self.opt.update(opt)

    def stamp(self, idx):
        if self.stamps:
            self.a("s_memrealtime s[96:97]")
            self.a("s_waitcnt lgkmcnt(0)")
            self.a(f"v_writelane_b32 v2, s96, {idx}")

    def lds_wait_ge(self, dword, value, vt, sleep=1):
        a = self.a
        lab = a.label("L_lw"); done = a.label("L_lwd")
        a(f"v_mov_b32 v{vt+1}, {sm(dword)}")
        a("s_mov_b32 s57, 0")
        a(f"{lab}:")
        a(f"ds_read_b32 v{vt}, v{vt+1}")
        a("s_waitcnt lgkmcnt(0)")
        a(f"v_readfirstlane_b32 s56, v{vt}")
        a("s_add_u32 s57, s57, 1")
        a(f"s_cmp_ge_u32 s56, {value}")
        a(f"s_cbranch_scc1 {done}")
        a(f"s_sleep {sleep}")
        a("s_cmp_lt_u32 s57, 0x40000")
        a(f"s_cbranch_scc1 {lab}")
        a(f"{done}:")

    def lds_inc(self, dword, vt, rtn=False):
        a = self.a
        a("s_mov_b64 s[58:59], exec")
        a("s_mov_b64 exec, 1")
        a(f"v_mov_b32 v{vt}, {sm(dword)}")
        a(f"v_mov_b32 v{vt+1}, 1")
        if rtn:
            a(f"ds_add_rtn_u32 v{vt+2}, v{vt}, v{vt+1}")
            a("s_waitcnt lgkmcnt(0)")
            a(f"v_readfirstlane_b32 s56, v{vt+2}")
        else:
            a(f"ds_add_u32 v{vt}, v{vt+1}")
        a("s_mov_b64 exec, s[58:59]")

    def flag_store(self, soff, vt):
        a = self.a
        a(f"v_mov_b32 v{vt}, s43")
        a("s_mov_b64 exec, 1")
        a(f"buffer_store_dword v{vt}, off, s[44:47], s{soff} sc1")
        a("s_mov_b64 exec, -1")

    def row_reduce(self, op, v):
        a = self.a
        for ctl in ("quad_perm:[1,0,3,2]", "quad_perm:[2,3,0,1]", "row_half_mirror", "row_mirror"):
            a("s_nop 1")
            a(f"{op}_dpp v{v}, v{v}, v{v} {ctl} row_mask:0xf bank_mask:0xf")

    def qfetch(self):
        a = self.a
        lab = a.label("L_qf")
        a(f"s_mul_i32 s14, s4, {S1_PITCH}")
        a("s_lshl_b32 s12, s5, 10")
        a("s_add_u32 s14, s14, s12")
        a("s_lshl_b32 s12, s15, 8")
        a("s_add_u32 s14, s14, s12")
        a(f"s_add_u32 s14, s14, {WS_S1}")
        a("s_add_u32 s12, s40, s14\ns_addc_u32 s13, s41, 0")
        a("s_mov_b32 s11, 0")
        a(f"{lab}:")
        a("s_load_dwordx16 s[16:31], s[12:13], 0 glc")
        a("s_load_dwordx16 s[56:71], s[12:13], 64 glc")
        a("s_load_dwordx16 s[72:87], s[12:13], 128 glc")
        a("s_load_dwordx8 s[32:39], s[12:13], 192 glc")
        a("s_load_dwordx8 s[88:95], s[12:13], 224 glc")
        a("s_add_u32 s11, s11, 1")
        a("s_cmp_ge_u32 s11, 0x8000")
        a(f"s_cbranch_scc1 {lab}_go")
        a("s_waitcnt lgkmcnt(0)")
        a("s_xor_b32 s14, s31, s43\ns_xor_b32 s100, s71, s43\ns_or_b32 s14, s14, s100")
        a("s_xor_b32 s100, s87, s43\ns_or_b32 s14, s14, s100")
        a("s_xor_b32 s100, s39, s43\ns_or_b32 s14, s14, s100")
        a("s_xor_b32 s100, s95, s43\ns_or_b32 s14, s14, s100")
        a(f"s_cbranch_scc1 {lab}")
        regs = list(range(16, 32)) + list(range(56, 72)) + list(range(72, 88)) + list(range(32, 40)) + list(range(88, 96))
        for lane, r in enumerate(regs):
            a(f"v_writelane_b32 v24, s{r}, {lane}")
        a("s_mov_b32 s100, 0xaaaaaaaa\ns_mov_b32 s101, 0xaaaaaaaa")
        a("s_nop 0")
        a("v_cmp_ne_u32 vcc, s43, v24")
        a("s_and_b64 vcc, vcc, s[100:101]")
        a(f"s_cbranch_vccnz {lab}")
        a(f"{lab}_go:")
        a("s_waitcnt lgkmcnt(0)")
        a("v_lshrrev_b32 v25, 1, v1")
        a("v_lshlrev_b32 v25, 2, v25")
        a("s_lshl_b32 s14, s15, 7")
        a(f"s_add_u32 s14, s14, {L_Q}")
        a("v_add_u32 v25, s14, v25")
        a("s_mov_b32 s100, 0x55555555\ns_mov_b32 s101, 0x55555555")
        a("s_mov_b64 exec, s[100:101]")
        a("ds_write_b32 v25, v24")
        a("s_mov_b64 exec, -1")
        a("s_load_dwordx16 s[16:31], s[0:1], 0")
        a("s_load_dwordx8 s[32:39], s[0:1], 64")
        a("s_waitcnt lgkmcnt(0)")
        self.lds_inc(D_FLAG_Q, 25)

    def prologue(self):
        a = self.a
        if self.stamps:
            a("s_memrealtime s[96:97]")
        a(f"s_cmp_ge_u32 s2, {NWG}")
        a("s_cbranch_scc1 L_END")
        a("s_load_dwordx16 s[16:31], s[0:1], 0")
        a("s_load_dwordx8 s[32:39], s[0:1], 64")
        a("s_load_dwordx2 s[40:41], s[0:1], 96")
        T = rolemap.tables(self.opt["plan"])
        a("s_and_b32 s99, s2, 7")
        a("s_lshl_b32 s99, s99, 3")
        def look(tab, dst):
            lo, hi = rolemap.pack(tab)
            a(f"s_mov_b32 s56, 0x{lo:08x}\ns_mov_b32 s57, 0x{hi:08x}")
            a("s_lshr_b64 s[56:57], s[56:57], s99")
            a(f"s_and_b32 s{dst}, s56, 0xff")
        look(T["nL"], 60); look(T["Lbase"], 61); look(T["Sbase"], 62); look(T["nD"], 63); look(T["Dbase"], 64)
        if T["use3"]:
            look(T["n3"], 66); look(T["K3base"], 67)
        a("s_lshr_b32 s65, s2, 3")
        if self.opt["lal"]:
            assert all(n == 6 for n in T["nL"])
            a("s_and_b32 s98, s2, 7")
            a("s_and_b32 s68, s65, 1\ns_lshl_b32 s68, s68, 3\ns_add_u32 s98, s98, s68")
            a("s_lshr_b32 s68, s65, 1\ns_lshl_b32 s68, s68, 4\ns_add_u32 s98, s98, s68")
        else:
            a("s_add_u32 s98, s61, s65")
        a("s_mov_b32 s99, 255")
        a("s_cmp_lt_u32 s65, s60")
        a("s_cbranch_scc1 L_ROLE")
        a("s_sub_u32 s65, s65, s60")
        if T["skip3"]:
            a("s_sub_u32 s69, s65, s66")
            a("s_add_u32 s68, s64, s69")
            a("s_cmp_lt_u32 s69, s63")
        else:
            a("s_add_u32 s68, s64, s65")
            a("s_cmp_lt_u32 s65, s63")
        a("s_cselect_b32 s99, s68, 255")
        if T["use3"]:
            a("s_add_u32 s98, s67, s65\ns_lshl_b32 s98, s98, 3")
            a(f"s_add_u32 s98, s98, {NLIGHT + 3}")
            a("s_cmp_lt_u32 s65, s66")
            a("s_cbranch_scc1 L_ROLE")
            a("s_add_u32 s68, s62, s65\ns_sub_u32 s68, s68, s66")
            a("s_mul_i32 s69, s68, 9363\ns_lshr_b32 s69, s69, 16")
            a("s_mul_i32 s70, s69, 7\ns_sub_u32 s68, s68, s70")
            a("s_lshl_b32 s98, s69, 3\ns_add_u32 s98, s98, s68")
            a("s_cmp_ge_u32 s68, 3")
            a(f"s_addc_u32 s98, s98, {NLIGHT}")
        else:
            a("s_add_u32 s98, s62, s65")
            a(f"s_add_u32 s98, s98, {NLIGHT}")
        a("L_ROLE:")
        a("v_and_b32 v1, 63, v0")
        a("v_lshrrev_b32 v9, 6, v0")
        a("v_lshlrev_b32 v3, 2, v0")
        a(f"v_add_u32 v3, {L_SMALL}, v3")
        a("v_mov_b32 v4, 0")
        a("v_mov_b32 v5, 0xff800000")
        a(f"v_cmp_le_u32 vcc, {D_M}, v0")
        a("v_readfirstlane_b32 s3, v9")
        a("s_nop 0")
        a("v_cndmask_b32 v4, v4, v5, vcc")
        if self.opt["swap"]:
            a("s_xor_b32 s3, s3, 8")
        a("ds_write_b32 v3, v4")
        if self.opt["cpf"]:
            a("s_cmp_eq_u32 s3, 7")
            a("s_cbranch_scc0 L_NOCPF")
            a("s_getpc_b64 s[12:13]")
            a("L_CPFPC:")
            a(f"s_sub_u32 s12, s12, L_CPFPC-{NAME}_kernel")
            a("s_subb_u32 s13, s13, 0")
            a("v_lshlrev_b32 v10, 7, v1")
            a("global_load_dword v48, v10, s[12:13]")
            a("v_add_u32 v10, 0x2000, v10")
            a(f"v_cmp_gt_u32 vcc, L_END-{NAME}_kernel, v10")
            a("s_and_b64 exec, exec, vcc")
            a("global_load_dword v49, v10, s[12:13]")
            a("s_mov_b64 exec, -1")
            a("L_NOCPF:")
        a("v_and_b32 v6, 15, v1")
        a("v_lshrrev_b32 v7, 4, v1")
        a("v_lshlrev_b32 v8, 4, v1")
        if self.opt["numa"]:
            a("s_lshr_b32 s6, s2, 3\ns_lshl_b32 s6, s6, 2\ns_and_b32 s7, s2, 3\ns_or_b32 s6, s6, s7")
            a("s_lshr_b32 s4, s6, 4")
            a("s_and_b32 s5, s6, 15")
            a("s_lshr_b32 s7, s2, 2\ns_lshr_b32 s8, s6, 1\ns_xor_b32 s7, s7, s8")
            a(f"s_xor_b32 s7, s7, {self.opt['npol']}")
            a("s_and_b32 s7, s7, 1")
            a("s_lshl_b32 s6, s6, 20")
            a("s_lshl_b32 s7, s7, 13")
            a("s_add_u32 s6, s6, s7")
            a("s_add_u32 s6, s6, 0xC0000")
            a("s_add_u32 s7, s3, s2")
            a("s_and_b32 s7, s7, 7")
            a("s_lshl_b32 s7, s7, 15")
            a("s_add_u32 s6, s6, s7")
            a("s_add_u32 s7, s6, 4096")
            a("s_add_u32 s8, s6, 16384")
            a("s_add_u32 s9, s6, 20480")
        else:
            a("s_lshr_b32 s4, s2, 5")
            a("s_and_b32 s5, s2, 15")
            a("s_lshl_b32 s6, s4, 4")
            a("s_add_u32 s6, s6, s5")
            a("s_lshl_b32 s6, s6, 20")
            a("s_lshr_b32 s7, s2, 4")
            a("s_and_b32 s7, s7, 1")
            a("s_lshl_b32 s7, s7, 17")
            a("s_add_u32 s6, s6, s7")
            a("s_add_u32 s6, s6, 0xC0000")
            a("s_add_u32 s7, s3, s2")
            a("s_and_b32 s7, s7, 7")
            a("s_lshl_b32 s7, s7, 14")
            a("s_add_u32 s6, s6, s7")
            a("s_add_u32 s7, s6, 4096")
            a("s_add_u32 s8, s6, 8192")
            a("s_add_u32 s9, s6, 12288")
        a("s_and_b32 s10, s3, 7")
        a(f"s_sub_u32 s11, s98, {NLIGHT}")
        a("s_cmp_ge_u32 s3, 8")
        a("s_cbranch_scc1 L_VPRO")
        a("s_waitcnt lgkmcnt(0)")
        self.common_after_args()
        a("s_branch L_KWAVE")
        a("L_VPRO:")
        a("v_and_b32 v10, 7, v6")
        a("v_mul_u32_u24 v10, 1152, v10")
        a("v_lshlrev_b32 v11, 4, v7")
        a("v_add_u32 v10, v10, v11")
        a("s_mul_i32 s14, s10, 192")
        a("v_add_u32 v10, s14, v10")
        a("s_mov_b32 s12, 8192\ns_mov_b32 s13, s11\ns_mov_b32 s54, 4718592")
        a("s_cmp_lt_i32 s11, 64\ns_cbranch_scc1 L_S1SEL0")
        a("s_mov_b32 s54, 5308416\ns_mov_b32 s12, 9216\ns_sub_u32 s13, s11, 64")
        a("s_cmp_lt_u32 s11, 136\ns_cbranch_scc1 L_S1SEL0")
        a("s_sub_u32 s13, s11, 136")
        a("L_S1SEL0:")
        a("s_mov_b32 s55, 0x00020000")
        a("s_lshl_b32 s13, s13, 7")
        self.wtile_lane_offsets(12, 12, 13, 14)
        a("s_mul_i32 s14, s10, 96")
        a("s_mul_i32 s14, s14, s12")
        a("s_add_u32 s14, s14, s13")
        a("s_lshl_b32 s15, s12, 3")
        a("s_mul_i32 s56, s10, 12288")
        a("s_waitcnt lgkmcnt(0)")
        self.common_after_args()

    def common_after_args(self):
        a = self.a
        if self.stamps:
            a("v_mov_b32 v2, 0")
            a("v_writelane_b32 v2, s96, 0")
        a("s_load_dword s42, s[40:41], 0")
        a("s_mov_b32 s44, s40\ns_mov_b32 s45, s41")
        a(f"s_mov_b32 s46, {WS_BYTES}\ns_mov_b32 s47, 0x00020000")

    def setidx(self, d):
        a = self.a
        if self.opt["numa"]:
            a(f"s_lshr_b32 s{d}, s5, 1\ns_lshl_b32 s{d}, s{d}, 2\ns_xor_b32 s{d}, s{d}, s2\ns_lshr_b32 s{d}, s{d}, 2")
            a(f"s_xor_b32 s{d}, s{d}, {self.opt['npol']}\ns_and_b32 s{d}, s{d}, 1")
        else:
            a(f"s_lshr_b32 s{d}, s2, 4\ns_and_b32 s{d}, s{d}, 1")

    def tag_ready(self):
        a = self.a
        a("s_waitcnt lgkmcnt(0)")
        a("s_mul_i32 s43, s42, 0x9E3779B1")
        a("s_add_u32 s43, s43, 0x7F4A7C15")

    def wtile_lane_offsets(self, pitch_sgpr, ve, vo, vt):
        a = self.a
        a(f"v_lshrrev_b32 v{vt}, 3, v1")
        a(f"v_mul_lo_u32 v{ve}, v{vt}, s{pitch_sgpr}")
        a(f"v_and_b32 v{vt}, 1, v7")
        a(f"v_lshlrev_b32 v{vt}, 1, v{vt}")
        a(f"v_and_b32 v{vo}, 7, v1")
        a(f"v_xor_b32 v{vt}, v{vt}, v{vo}")
        a(f"v_lshlrev_b32 v{vo}, 4, v{vt}")
        a(f"v_add_u32 v{ve}, v{ve}, v{vo}")
        a(f"v_xor_b32 v{vo}, 64, v{ve}")

    def tr_addr(self, v0, base_const=None, base_sgpr=None):
        a = self.a
        t = v0 + 3
        a(f"v_lshrrev_b32 v{v0}, 2, v6")
        a(f"v_lshlrev_b32 v{t}, 3, v7")
        a(f"v_add_u32 v{t}, v{t}, v{v0}")
        a(f"v_lshlrev_b32 v{t}, 7, v{t}")
        a(f"v_lshrrev_b32 v{v0}, 1, v{v0}")
        a(f"v_and_b32 v{v0+1}, 1, v7")
        a(f"v_lshlrev_b32 v{v0+1}, 1, v{v0+1}")
        a(f"v_or_b32 v{v0}, v{v0}, v{v0+1}")
        a(f"v_lshlrev_b32 v{v0}, 5, v{v0}")
        a(f"v_add_u32 v{t}, v{t}, v{v0}")
        a(f"v_and_b32 v{v0}, 3, v6")
        a(f"v_lshlrev_b32 v{v0}, 3, v{v0}")
        a(f"v_add_u32 v{v0}, v{t}, v{v0}")
        if base_sgpr is not None:
            a(f"v_add_u32 v{v0}, s{base_sgpr}, v{v0}")
        elif base_const:
            a(f"v_add_u32 v{v0}, {base_const}, v{v0}")
        a(f"v_xor_b32 v{v0+1}, 32, v{v0}")
        a(f"v_xor_b32 v{v0+2}, 64, v{v0}")
        a(f"v_xor_b32 v{v0+3}, 0x60, v{v0}")

    def s1job(self):
        a = self.a
        a("s_setprio 3")
        a("s_mov_b32 s52, s22\ns_mov_b32 s53, s23")
        a("s_cmp_lt_u32 s11, 64\ns_cbranch_scc1 L_S1SEL")
        a("s_mov_b32 s52, s28\ns_mov_b32 s53, s29")
        a("s_cmp_lt_u32 s11, 136\ns_cbranch_scc1 L_S1SEL")
        a("s_mov_b32 s52, s30\ns_mov_b32 s53, s31")
        a("L_S1SEL:")
        def dma(u):
            a(f"s_add_u32 m0, s56, {L_W + u*1024}")
            a("s_add_u32 s14, s14, s15" if u > 0 else "s_nop 0")
            a(f"buffer_load_dwordx4 v{12 + (u & 1)}, s[52:55], s14 offen nt lds")
        def xl():
            for ks in range(3):
                a(f"global_load_dwordx4 v[{16+4*ks}:{19+4*ks}], v10, s[16:17] offset:{64*ks}")
        W, W3 = self.opt["win"], self.opt["win3"]
        if W >= 12 and not self.opt["c3w"]:
            for u in range(12): dma(u)
            xl()
            a("s_barrier")
            self.stamp(1)
        else:
            xl()
            a("s_and_b32 s57, s11, 7")
            a("s_cmp_eq_u32 s57, 3")
            a("s_cbranch_scc0 L_S1WN")
            if self.opt["c3w"] == 1:
                a("s_cmp_ge_u32 s11, 64")
                a("s_cbranch_scc0 L_S1WN")
            for u in range(W3): dma(u)
            a("s_barrier")
            self.stamp(1)
            for u in range(W3, 12):
                a(f"s_waitcnt vmcnt({W3-1})")
                dma(u)
            a("s_branch L_S1WD")
            a("L_S1WN:")
            for u in range(min(W, 12)): dma(u)
            a("s_barrier")
            self.stamp(1)
            for u in range(W, 12):
                a(f"s_waitcnt vmcnt({W-1})")
                dma(u)
            a("L_S1WD:")
        self.tr_addr(28, base_sgpr=56)
        a("s_waitcnt vmcnt(0)")
        def rd(ks):
            for t in range(4):
                for hf in range(2):
                    r = 48 + (ks*4+t)*4 + hf*2
                    a(f"ds_read_b64_tr_b16 v[{r}:{r+1}], v{28+t} offset:{ks*4096 + hf*512}")
        def mm(ks):
            for t in range(4):
                r = 48 + (ks*4+t)*4
                c = "0" if ks == 0 else f"v[{32+4*t}:{35+4*t}]"
                a(f"v_mfma_f32_16x16x32_bf16 v[{32+4*t}:{35+4*t}], v[{r}:{r+3}], v[{16+4*ks}:{19+4*ks}], {c}")
        rd(0)
        a("s_waitcnt lgkmcnt(7)")
        rd(1)
        a("s_waitcnt lgkmcnt(8)")
        mm(0)
        rd(2)
        a("s_waitcnt lgkmcnt(8)")
        mm(1)
        a("s_waitcnt lgkmcnt(0)")
        mm(2)
        a("v_lshlrev_b32 v10, 3, v7")
        a("v_add_u32 v10, v10, v6")
        a("v_lshlrev_b32 v10, 4, v10")
        a("s_lshl_b32 s14, s10, 11")
        a(f"s_add_u32 s14, s14, {L_S1SLOT}")
        a("v_add_u32 v10, s14, v10")
        a("s_mov_b32 s58, 0x00ff00ff\ns_mov_b32 s59, 0x00ff00ff")
        a("s_nop 1")
        a("s_mov_b64 exec, s[58:59]")
        for t in range(4):
            a(f"ds_write_b128 v10, v[{32+4*t}:{35+4*t}] offset:{t*512}")
        a("s_mov_b64 exec, -1")
        a("s_waitcnt lgkmcnt(0)")
        self.lds_inc(D_CNT_S1, 10, rtn=True)
        a("s_cmp_eq_u32 s56, 5")
        a("s_cbranch_scc0 L_S1DONE")
        a("v_and_b32 v10, 31, v1")
        a("v_lshlrev_b32 v10, 4, v10")
        a("v_lshrrev_b32 v11, 5, v1")
        a("v_lshlrev_b32 v12, 9, v11")
        a("v_add_u32 v10, v10, v12")
        a(f"v_add_u32 v10, {L_S1SLOT}, v10")
        for sl in range(6):
            for i in range(2):
                r = 48 + (sl*2+i)*4
                a(f"ds_read_b128 v[{r}:{r+3}], v10 offset:{sl*2048 + i*1024}")
        a("v_and_b32 v12, 7, v1")
        a(f"s_mov_b32 s14, {S1_PITCH}")
        a("v_mul_lo_u32 v12, v12, s14")
        a("v_bfe_u32 v13, v1, 3, 2")
        a("v_lshlrev_b32 v14, 2, v11")
        a("v_add_u32 v13, v13, v14")
        a("v_lshlrev_b32 v13, 4, v13")
        a("v_add_u32 v12, v12, v13")
        a("s_lshl_b32 s14, s11, 8")
        a(f"s_add_u32 s14, s14, {WS_S1}")
        self.tag_ready()
        for i in range(2):
            for c in range(4):
                R = lambda sl: 48 + (sl*2+i)*4 + c
                d = 16 + 4*i + c
                a(f"v_add_f32 v{d}, v{R(0)}, v{R(1)}")
                a(f"v_add_f32 v{R(2)}, v{R(2)}, v{R(3)}")
                a(f"v_add_f32 v{R(4)}, v{R(4)}, v{R(5)}")
                a(f"v_add_f32 v{d}, v{d}, v{R(2)}")
                a(f"v_add_f32 v{d}, v{d}, v{R(4)}")
        a("v_mov_b32 v25, s43\nv_mov_b32 v27, s43\nv_mov_b32 v29, s43\nv_mov_b32 v31, s43")
        a("v_cvt_pk_bf16_f32 v24, v16, v17")
        a("v_cvt_pk_bf16_f32 v26, v18, v19")
        a("v_cvt_pk_bf16_f32 v28, v20, v21")
        a("v_cvt_pk_bf16_f32 v30, v22, v23")
        a("buffer_store_dwordx4 v[24:27], v12, s[44:47], s14 offen sc1")
        a("buffer_store_dwordx4 v[28:31], v12, s[44:47], s14 offen offset:128 sc1")
        self.lds_inc(D_FLAG_S1P, 10)
        a("L_S1DONE:")
        self.stamp(6)

    def kwave(self):
        a = self.a
        o = self.opt
        a("L_KWAVE:")
        a("s_mov_b32 s48, s18\ns_mov_b32 s49, s19\ns_mov_b32 s50, 0x8000000\ns_mov_b32 s51, 0x00020000")
        a("s_setprio 2")
        a("s_barrier")
        self.stamp(1)
        if o["qf"] == "first":
            a("s_cmp_lt_u32 s10, 6")
            a("s_cbranch_scc1 L_KGATE")
            self.tag_ready()
            a("s_sub_u32 s15, s10, 6")
            self.qfetch()
            a("s_branch L_KLOAD")
            a("L_KGATE:")
        if o["gate"] != "none":
            a(f"s_cmp_ge_u32 s10, {o['ngate']}")
            a("s_cbranch_scc1 L_KLOAD")
            lim = 64 if o["gate"] == "q" else 208
            a(f"s_cmp_ge_u32 s11, {lim}")
            a("s_cbranch_scc1 L_KLOAD")
            if o["c3u"]:
                if o["c3u"] == 1:
                    a("s_cmp_lt_u32 s11, 64")
                    a("s_cbranch_scc1 L_KG2")
                a("s_and_b32 s56, s11, 7")
                a("s_cmp_eq_u32 s56, 3")
                a("s_cbranch_scc1 L_KLOAD")
                a("L_KG2:")
            self.lds_wait_ge(D_FLAG_S1P, 1, 10)
        a("L_KLOAD:")
        KB = 48
        for u in range(16):
            a(f"buffer_load_dwordx4 v[{KB+4*u}:{KB+4*u+3}], v8, s[48:51], s{6 + u//4} offen offset:{(u%4)*1024} nt")
        self.lds_inc(D_CNT_KISS, 10)
        self.stamp(2)
        a("s_mov_b32 s61, 0")
        a("s_cmp_ge_u32 s99, 162")
        a("s_cbranch_scc1 L_NOHP")
        if o["qf"] != "first":
            a("s_cmp_ge_u32 s10, 6")
            a("s_cbranch_scc1 L_NOHP")
        self.haddr()
        a("buffer_load_dwordx4 v[120:123], v8, s[44:47], s14 offen sc1")
        a("buffer_load_dwordx4 v[124:127], v8, s[44:47], s15 offen sc1")
        a("s_mov_b32 s61, 2")
        if o["wd"] == "kearly":
            self.wd_dma_early(waitflag=True)
        a("L_NOHP:")
        a(f"s_lshl_b32 s56, s10, 12")
        a(f"s_add_u32 s56, s56, {L_KSCR}")
        a("v_xor_b32 v10, v6, v7")
        a("v_lshlrev_b32 v10, 4, v10")
        a("v_lshlrev_b32 v11, 8, v7")
        a("v_add_u32 v12, v10, v11")
        a("v_add_u32 v12, s56, v12")
        a("v_xor_b32 v13, 64, v12\nv_xor_b32 v14, 0x80, v12\nv_xor_b32 v15, 0xc0, v12")
        a("v_lshlrev_b32 v11, 8, v6")
        a("v_add_u32 v16, v10, v11")
        a("v_add_u32 v16, s56, v16")
        a("v_xor_b32 v17, 64, v16\nv_xor_b32 v18, 0x80, v16\nv_xor_b32 v19, 0xc0, v16")
        a("v_bfe_u32 v20, v6, 2, 1")
        a("v_lshlrev_b32 v20, 8, v20")
        a("v_lshlrev_b32 v21, 4, v7")
        a("v_add_u32 v20, v20, v21")
        a(f"v_add_u32 v20, {L_Q}, v20")
        self.tag_ready()
        if o["qf"] != "first":
            a("s_cmp_lt_u32 s10, 6")
            a("s_cbranch_scc1 L_QWAIT")
            a("s_sub_u32 s15, s10, 6")
            self.qfetch()
            a("s_mov_b32 s61, 0")
            a("s_cmp_ge_u32 s99, 162")
            a("s_cbranch_scc1 L_QWAIT")
            self.haddr()
            a("buffer_load_dwordx4 v[120:123], v8, s[44:47], s14 offen sc1")
            a("buffer_load_dwordx4 v[124:127], v8, s[44:47], s15 offen sc1")
            a("s_mov_b32 s61, 2")
        a("L_QWAIT:")
        self.lds_wait_ge(D_FLAG_Q, 4, 22)
        self.stamp(4)
        for j in range(4):
            a(f"ds_read_b128 v[{32+4*j}:{35+4*j}], v20 offset:{64*j}")
        a("s_cmp_eq_u32 s61, 0")
        a("s_cbranch_scc1 L_KW0")
        if o["wd"] == "kearly":
            a("s_cmp_eq_u32 s61, 2")
            a("s_cbranch_scc1 L_KW2")
            a("s_waitcnt vmcnt(10)")
            a("s_branch L_KW1")
            a("L_KW2:")
        a("s_waitcnt vmcnt(2)")
        a("s_branch L_KW1")
        a("L_KW0:")
        a("s_waitcnt vmcnt(0)")
        a("L_KW1:")
        self.stamp(5)
        ACC = [112, 116, 24, 28]
        def tile_ops(t):
            Gk, tp = t >> 1, t & 1
            for aa in range(4):
                u = 8*Gk + 2*aa + tp
                a(f"ds_write_b128 v{12+aa}, v[{KB+4*u}:{KB+4*u+3}] offset:{aa*1024}")
            for j in range(4):
                u = 8*Gk + 2*j + tp
                a(f"ds_read_b128 v[{KB+4*u}:{KB+4*u+3}], v{16+j}")
        def tile_mm(t):
            Gk, tp = t >> 1, t & 1
            for j in range(4):
                u = 8*Gk + 2*j + tp
                c = "0" if j == 0 else f"v[{ACC[t]}:{ACC[t]+3}]"
                a(f"v_mfma_f32_16x16x32_bf16 v[{ACC[t]}:{ACC[t]+3}], v[{32+4*j}:{35+4*j}], v[{KB+4*u}:{KB+4*u+3}], {c}")
        tile_ops(0)
        a("s_waitcnt lgkmcnt(6)")
        tile_ops(1)
        a("s_waitcnt lgkmcnt(8)")
        tile_mm(0)
        tile_ops(2)
        a("s_waitcnt lgkmcnt(8)")
        tile_mm(1)
        tile_ops(3)
        a("s_waitcnt lgkmcnt(8)")
        tile_mm(2)
        a("s_waitcnt lgkmcnt(0)")
        tile_mm(3)
        a("v_and_b32 v22, 1, v7")
        a("v_lshlrev_b32 v22, 2, v22")
        a(f"v_add_u32 v23, {sm(D_L)}, v22")
        a(f"v_add_u32 v22, {sm(D_M)}, v22")
        a("s_mov_b32 s58, 0x00010001\ns_mov_b32 s59, 0")
        a("v_max_f32 v21, v112, v116")
        a("s_nop 3")
        a("v_max3_f32 v21, v21, v24, v28")
        self.row_reduce("v_max_f32", 21)
        a("s_mov_b64 exec, s[58:59]")
        a("ds_max_f32 v22, v21")
        a("s_mov_b64 exec, -1")
        a("s_waitcnt lgkmcnt(0)")
        self.lds_inc(D_CNT_M, 26)
        a("v_and_b32 v30, 3, v6")
        a("v_lshlrev_b32 v30, 2, v30")
        a("v_lshrrev_b32 v31, 2, v6")
        a("v_add_u32 v30, v30, v31")
        a("v_lshlrev_b32 v30, 2, v30")
        a("v_lshlrev_b32 v31, 7, v7")
        a("v_add_u32 v30, v30, v31")
        a("s_lshl_b32 s14, s10, 8")
        a(f"s_add_u32 s14, s14, {L_P}")
        a("v_add_u32 v30, s14, v30")
        a("s_lshl_b32 s15, s10, 2")
        a(f"s_add_u32 s15, s15, {sm(D_FLAG_P)}")
        a(f"s_mov_b32 s14, 0x{f32bits(SCALE_LOG2E):08x}")
        self.lds_wait_ge(D_CNT_M, 8, 26, sleep=0)
        a("ds_read_b32 v21, v22")
        a("s_waitcnt lgkmcnt(0)")
        a("v_mul_f32 v21, s14, v21")
        E = [112, 116, 24, 28]
        for t in range(4):
            a(f"v_fma_f32 v{E[t]}, v{E[t]}, s14, -v21")
        for t in range(4):
            a(f"v_exp_f32 v{E[t]}, v{E[t]}")
        a("s_nop 0")
        a("v_add_f32 v26, v112, v116")
        a("v_add_f32 v27, v24, v28")
        a("v_cvt_pk_bf16_f32 v25, v112, v116")
        a("v_cvt_pk_bf16_f32 v29, v24, v28")
        a("v_add_f32 v26, v26, v27")
        a("s_mov_b32 s58, -1\ns_mov_b32 s59, 0")
        a("s_mov_b64 exec, s[58:59]")
        a("ds_write_b32 v30, v25")
        a("ds_write_b32 v30, v29 offset:64")
        a("s_mov_b64 exec, -1")
        self.row_reduce("v_add_f32", 26)
        a("s_mov_b32 s58, 0x00010001\ns_mov_b32 s59, 0")
        a("s_mov_b64 exec, s[58:59]")
        a("ds_add_f32 v23, v26")
        a("s_mov_b64 exec, -1")
        a("v_mov_b32 v30, s15\nv_mov_b32 v31, 1")
        a("s_waitcnt lgkmcnt(0)")
        a("s_mov_b64 exec, 1")
        a("ds_write_b32 v30, v31")
        a("s_mov_b64 exec, -1")
        self.stamp(6)
        a("s_branch L_KPOST")

    def haddr(self):
        a = self.a
        a("s_mov_b32 s11, s99")
        a("s_mul_i32 s12, s11, 7282")
        a("s_lshr_b32 s12, s12, 16")
        a("s_mul_i32 s13, s12, 9")
        a("s_sub_u32 s13, s11, s13")
        a(f"s_mul_i32 s14, s10, {S1_PITCH}")
        a("s_lshl_b32 s15, s12, 10")
        a("s_add_u32 s14, s14, s15")
        a(f"s_add_u32 s14, s14, {WS_S1 + 1024*16}")
        a(f"s_add_u32 s15, s14, {1152*16}")

    def wd_dma_early(self, waitflag=False):
        a = self.a
        a("s_cmp_ge_u32 s99, 162")
        a("s_cbranch_scc1 L_NOWD")
        a("s_cmp_ge_u32 s10, 4")
        a("s_cbranch_scc1 L_NOWD")
        if waitflag:
            self.lds_wait_ge(D_FLAG_S1P, 1, 10)
        a("s_mov_b32 s11, s99")
        a("s_mul_i32 s12, s11, 7282")
        a("s_lshr_b32 s12, s12, 16")
        a("s_mul_i32 s13, s12, 9")
        a("s_sub_u32 s13, s11, s13")
        a("s_mov_b32 s52, s32\ns_mov_b32 s53, s33\ns_mov_b32 s54, 5308416\ns_mov_b32 s55, 0x00020000")
        a("s_mov_b32 s56, 1152")
        self.wtile_lane_offsets(56, 12, 13, 14)
        a("s_lshl_b32 s14, s12, 8")
        a("s_lshl_b32 s15, s10, 6")
        a("s_add_u32 s14, s14, s15")
        a("s_mul_i32 s14, s14, 1152")
        a("s_lshl_b32 s15, s13, 7")
        a("s_add_u32 s14, s14, s15")
        a("s_mul_i32 s15, s10, 12288")
        for u in range(8):
            a(f"s_add_u32 m0, s15, {L_W + u*1024}")
            a(f"s_add_u32 s14, s14, {8*1152}" if u > 0 else "s_nop 0")
            a(f"buffer_load_dwordx4 v{12 + (u & 1)}, s[52:55], s14 offen nt lds")
        a("s_mov_b32 s61, 10" if waitflag else "s_mov_b32 s61, 1")
        a("L_NOWD:")

    def vwave(self):
        a = self.a
        o = self.opt
        a("L_VWAVE:")
        a("s_mov_b32 s48, s20\ns_mov_b32 s49, s21\ns_mov_b32 s50, 0x8000000\ns_mov_b32 s51, 0x00020000")
        a(f"s_cmp_lt_u32 s98, {NLIGHT}")
        a("s_cbranch_scc1 L_VBAR")
        a("s_cmp_ge_u32 s10, 6")
        a("s_cbranch_scc1 L_VBAR")
        self.s1job()
        a("s_setprio 1")
        a("s_branch L_VGATE")
        a("L_VBAR:")
        a("s_setprio 1")
        a("s_barrier")
        self.stamp(1)
        VB = 48
        a("s_cmp_lt_u32 s3, 14")
        a("s_cbranch_scc1 L_VGATE")
        self.tag_ready()
        a("s_sub_u32 s15, s3, 12")
        self.qfetch()
        self.stamp(7)
        a("L_VGATE:")
        if o["kiss"]:
            self.lds_wait_ge(D_CNT_KISS, 8, 22)
        a("s_mov_b32 s61, 0")
        if o["wd"] == "early":
            self.wd_dma_early()
        for u in range(16):
            a(f"buffer_load_dwordx4 v[{VB+4*u}:{VB+4*u+3}], v8, s[48:51], s{6 + u//4} offen offset:{(u%4)*1024} nt")
        self.lds_inc(D_CNT_VISS, 22)
        self.stamp(2)
        a("s_lshl_b32 s14, s10, 8")
        a(f"s_add_u32 s14, s14, {L_P}")
        a("v_and_b32 v10, 1, v6")
        a("v_lshlrev_b32 v10, 7, v10")
        a("v_lshlrev_b32 v11, 4, v7")
        a("v_add_u32 v10, v10, v11")
        a("v_add_u32 v10, s14, v10")
        a(f"v_mov_b32 v11, {sm(D_ZERO)}")
        a("v_and_b32 v16, 14, v6")
        for gp in range(4):
            a(f"v_cmp_eq_u32 vcc, {4*gp}, v16")
            a("s_nop 1")
            a(f"v_cndmask_b32 v{12+gp}, v11, v10, vcc")
        a("v_lshlrev_b32 v10, 3, v6")
        a("v_add_u32 v10, v10, v7")
        a("v_lshlrev_b32 v10, 2, v10")
        a("s_lshl_b32 s14, s10, 10")
        a(f"s_add_u32 s14, s14, {L_OSLOT}")
        a("v_add_u32 v10, s14, v10")
        a("s_mov_b32 s12, 0x05040100\ns_mov_b32 s13, 0x07060302")
        a("s_lshl_b32 s60, s5, 10")
        a("s_lshl_b32 s14, s4, 7")
        a("s_add_u32 s60, s60, s14")
        self.setidx(14)
        a("s_lshl_b32 s14, s14, 2")
        a("s_add_u32 s60, s60, s14")
        a(f"s_add_u32 s60, s60, {WS_FO3 if o['fo3'] else WS_FO}")
        self.tag_ready()
        a("v_mov_b32 v11, s43")
        if o["fo3"]:
            a("v_lshlrev_b32 v9, 14, v1")
        lab = a.label("L_pw")
        a("s_lshl_b32 s14, s10, 2")
        a(f"s_add_u32 s14, s14, {sm(D_FLAG_P)}")
        a("v_mov_b32 v18, s14")
        a("s_mov_b32 s57, 0")
        a(f"{lab}:")
        a("ds_read_b32 v17, v18")
        a("s_waitcnt lgkmcnt(0)")
        a("v_readfirstlane_b32 s56, v17")
        a("s_add_u32 s57, s57, 1")
        a("s_cmp_ge_u32 s56, 1")
        a(f"s_cbranch_scc1 {lab}_d")
        a("s_sleep 2")
        a("s_cmp_lt_u32 s57, 0x40000")
        a(f"s_cbranch_scc1 {lab}")
        a(f"{lab}_d:")
        self.stamp(3)
        for gp in range(4):
            a(f"ds_read_b128 v[{28+4*gp}:{31+4*gp}], v{12+gp}")
        a("s_waitcnt vmcnt(8)")
        if o["wd"] == "early":
            a("s_cmp_eq_u32 s61, 0")
            a("s_cbranch_scc1 L_NOWINC")
            self.lds_inc(D_CNT_W, 16)
            a("L_NOWINC:")
        T = [112, 116, 44, 16]
        def L(G, i, d): return VB + 32*G + 4*i + d
        for ph in range(2):
            for dd in range(2):
                d = 2*ph + dd
                for e in range(2):
                    for rp in range(4):
                        a(f"v_perm_b32 v{T[2*dd+e]+rp}, v{L(0,2*rp+1,d)}, v{L(0,2*rp,d)}, s{12+e}")
            if ph == 0:
                a("s_waitcnt lgkmcnt(0)")
            else:
                a("s_nop 1")
            for jj in range(4):
                c = "0" if jj == 0 else f"v[{20+4*ph}:{23+4*ph}]"
                a(f"v_mfma_f32_16x16x32_bf16 v[{20+4*ph}:{23+4*ph}], v[{28+4*jj}:{31+4*jj}], v[{T[jj]}:{T[jj]+3}], {c}")
        a("s_nop 7")
        for gp in range(4):
            a(f"ds_read_b128 v[{28+4*gp}:{31+4*gp}], v{12+gp} offset:64")
        for rp in range(4):
            a(f"s_waitcnt vmcnt({6 - 2*rp})")
            if rp == 3 and o["ofl"] == "land":
                a("s_mov_b64 exec, 1")
                a(f"v_mov_b32 v16, {sm(D_CNT_VL)}\nv_mov_b32 v17, 1")
                a("ds_add_rtn_u32 v18, v16, v17")
                a("s_mov_b64 exec, -1")
            for d in range(4):
                for e in range(2):
                    a(f"v_perm_b32 v{VB+4*(2*d+e)+rp}, v{L(1,2*rp+1,d)}, v{L(1,2*rp,d)}, s{12+e}")
        self.stamp(4)
        a("s_waitcnt lgkmcnt(0)")
        if o["ofl"] == "land":
            a("v_readfirstlane_b32 s56, v18")
            a("s_cmp_eq_u32 s56, 7")
            a("s_cbranch_scc0 L_NOFL")
            a("s_mov_b64 exec, 1")
            a("buffer_store_dword v11, off, s[44:47], s60 sc1")
            a("s_mov_b64 exec, -1")
            a("L_NOFL:")
        for jj in range(4):
            for ph in range(2):
                j = 4*ph + jj
                a(f"v_mfma_f32_16x16x32_bf16 v[{20+4*ph}:{23+4*ph}], v[{28+4*jj}:{31+4*jj}], v[{VB+4*j}:{VB+4*j+3}], v[{20+4*ph}:{23+4*ph}]")
        a("s_nop 7")
        for r in range(2):
            a(f"ds_write2_b32 v10, v{20+r}, v{24+r} offset0:{r*128} offset1:{r*128+4}")
        a("s_waitcnt lgkmcnt(0)")
        self.lds_inc(D_CNT_O, 28, rtn=True)
        a("s_cmp_eq_u32 s56, 7")
        a("s_cbranch_scc0 L_VPOST")
        if o["ofl"] == "cnto":
            if o["fo3"]:
                a("s_mov_b64 exec, 7")
                a("buffer_store_dword v11, v9, s[44:47], s60 offen sc1")
            else:
                a("s_mov_b64 exec, 1")
                a("buffer_store_dword v11, off, s[44:47], s60 sc1")
            a("s_mov_b64 exec, -1")
        a(f"v_add_u32 v28, {L_OSLOT}, v8")
        for sl in range(8):
            a(f"ds_read_b128 v[{48+4*sl}:{51+4*sl}], v28 offset:{sl*1024}")
        a("v_lshrrev_b32 v29, 5, v1")
        a("v_lshlrev_b32 v29, 2, v29")
        a(f"v_add_u32 v30, {sm(D_M)}, v29")
        a(f"v_add_u32 v31, {sm(D_L)}, v29")
        a("ds_read_b32 v44, v30")
        a("ds_read_b32 v46, v31")
        self.setidx(15)
        a("s_lshl_b32 s14, s4, 5\ns_lshl_b32 s15, s15, 4\ns_or_b32 s14, s14, s15\ns_or_b32 s14, s14, s5")
        a("s_lshl_b32 s14, s14, 12")
        a(f"s_add_u32 s14, s14, {WS_O}")
        a("v_lshlrev_b32 v28, 4, v1" if o["lay"] else "v_lshlrev_b32 v28, 5, v1")
        a("v_mov_b32 v37, s43\nv_mov_b32 v39, s43\nv_mov_b32 v41, s43\nv_mov_b32 v43, s43\nv_mov_b32 v45, s43\nv_mov_b32 v47, s43")
        a(f"s_mov_b32 s15, 0x{f32bits(SCALE_LOG2E):08x}")
        a("v_lshlrev_b32 v29, 2, v29")
        a("s_mov_b32 s58, 1\ns_mov_b32 s59, 1")
        a("s_waitcnt lgkmcnt(0)")
        for c in range(4):
            R = lambda sl: 48 + 4*sl + c
            a(f"v_add_f32 v{R(0)}, v{R(0)}, v{R(1)}")
            a(f"v_add_f32 v{R(2)}, v{R(2)}, v{R(3)}")
            a(f"v_add_f32 v{R(4)}, v{R(4)}, v{R(5)}")
            a(f"v_add_f32 v{R(6)}, v{R(6)}, v{R(7)}")
            a(f"v_add_f32 v{R(0)}, v{R(0)}, v{R(2)}")
            a(f"v_add_f32 v{R(4)}, v{R(4)}, v{R(6)}")
            a(f"v_add_f32 v{36+2*c}, v{R(0)}, v{R(4)}")
            if c == 1:
                a("buffer_store_dwordx4 v[36:39], v28, s[44:47], s14 offen sc1")
        a("v_mul_f32 v44, s15, v44")
        a(f"buffer_store_dwordx4 v[40:43], v28, s[44:47], s14 offen offset:{1024 if o['lay'] else 16} sc1")
        a("s_mov_b64 exec, s[58:59]")
        a("buffer_store_dwordx4 v[44:47], v29, s[44:47], s14 offen offset:2048 sc1")
        a("s_mov_b64 exec, -1")
        self.stamp(5)
        a("s_branch L_VPOST")

    def post(self):
        a = self.a
        o = self.opt
        early = o["wd"] in ("early", "kearly")
        a("L_KPOST:")
        a(f"s_setprio {o['kpost_prio']}")
        a(f"s_cmp_lt_u32 s98, {NLIGHT}")
        a("s_cbranch_scc1 L_KPOST_LIGHT")
        a("s_cmp_ge_u32 s99, 162")
        a("s_cbranch_scc1 L_HDONE")
        self.haddr()
        a("s_mov_b32 s57, 0")
        a("s_branch L_HCHK")
        a("L_HPOLL:")
        a("s_sleep 8")
        a("buffer_load_dwordx4 v[120:123], v8, s[44:47], s14 offen sc1")
        a("buffer_load_dwordx4 v[124:127], v8, s[44:47], s15 offen sc1")
        a("L_HCHK:")
        a("s_add_u32 s57, s57, 1")
        a("s_waitcnt vmcnt(0)")
        a("v_min3_u32 v32, v121, v123, v125\nv_max3_u32 v33, v121, v123, v125")
        a("v_min_u32 v32, v32, v127\nv_max_u32 v33, v33, v127")
        a("v_cmp_ne_u32 vcc, s43, v32")
        a("v_cmp_ne_u32 s[58:59], s43, v33")
        a("s_or_b64 vcc, vcc, s[58:59]")
        a("s_cbranch_vccz L_HGOT")
        a("s_cmp_lt_u32 s57, 0x10000")
        a("s_cbranch_scc1 L_HPOLL")
        a("L_HGOT:")
        a("s_cmp_eq_u32 s10, 7")
        a("s_cbranch_scc1 L_HG2")
        self.stamp(3)
        a("L_HG2:")
        a("v_lshlrev_b32 v32, 16, v120\nv_and_b32 v33, 0xffff0000, v120\nv_lshlrev_b32 v34, 16, v122\nv_and_b32 v35, 0xffff0000, v122")
        a("v_lshlrev_b32 v36, 16, v124\nv_and_b32 v37, 0xffff0000, v124\nv_lshlrev_b32 v38, 16, v126\nv_and_b32 v39, 0xffff0000, v126")
        a("s_mov_b32 s14, 0xbfb8aa3b")
        for i in range(4):
            a(f"v_mul_f32 v{40+i}, s14, v{32+i}")
        for i in range(4):
            a(f"v_exp_f32 v{40+i}, v{40+i}")
        a("s_nop 0")
        for i in range(4):
            a(f"v_add_f32 v{40+i}, 1.0, v{40+i}")
        for i in range(4):
            a(f"v_rcp_f32 v{40+i}, v{40+i}")
        a("s_nop 0")
        for i in range(4):
            a(f"v_mul_f32 v{40+i}, v{32+i}, v{40+i}")
        a("v_cvt_pk_bf16_f32 v44, v40, v41\nv_cvt_pk_bf16_f32 v45, v42, v43")
        a("v_lshlrev_b32 v40, 16, v44\nv_and_b32 v41, 0xffff0000, v44\nv_lshlrev_b32 v42, 16, v45\nv_and_b32 v43, 0xffff0000, v45")
        for i in range(4):
            a(f"v_mul_f32 v{40+i}, v{40+i}, v{36+i}")
        a("v_cvt_pk_bf16_f32 v44, v40, v41\nv_cvt_pk_bf16_f32 v45, v42, v43")
        a(f"s_mul_i32 s14, s10, {BM_PITCH}")
        a(f"s_add_u32 s14, s14, {L_BM}")
        a("v_lshlrev_b32 v46, 3, v1")
        a("v_add_u32 v46, s14, v46")
        a("ds_write_b64 v46, v[44:45]")
        if not early:
            self.lds_wait_ge(D_CNT_VISS if o["wd"] == "late" else D_CNT_O, o["viss"] if o["wd"] == "late" else 8, 32)
            self.lds_wait_ge(D_FLAG_S1P, 1, 32)
            a("s_mov_b32 s52, s32\ns_mov_b32 s53, s33\ns_mov_b32 s54, 5308416\ns_mov_b32 s55, 0x00020000")
            a("s_mov_b32 s56, 1152")
            self.wtile_lane_offsets(56, 12, 13, 14)
            a("s_lshl_b32 s14, s12, 8")
            a("s_lshl_b32 s15, s10, 5")
            a("s_add_u32 s14, s14, s15")
            a("s_mul_i32 s14, s14, 1152")
            a("s_lshl_b32 s15, s13, 7")
            a("s_add_u32 s14, s14, s15")
            a("s_lshl_b32 s15, s10, 12")
            for u in range(4):
                a(f"s_add_u32 m0, s15, {L_W + u*1024}")
                a(f"s_add_u32 s14, s14, {8*1152}" if u > 0 else "s_nop 0")
                if not o.get("nowd"):
                    a(f"buffer_load_dwordx4 v{12 + (u & 1)}, s[52:55], s14 offen nt lds")
        a("s_waitcnt vmcnt(0) lgkmcnt(0)")
        self.lds_inc(D_CNT_W, 32)
        a("s_cmp_ge_u32 s10, 4")
        a("s_cbranch_scc1 L_HDONE")
        a("s_lshl_b32 s63, s13, 10")
        a("s_lshl_b32 s14, s12, 2")
        a("s_add_u32 s63, s63, s14")
        a(f"s_add_u32 s63, s63, {WS_F3}")
        a("s_add_u32 s12, s12, 16")
        a("s_lshl_b32 s13, s13, 6")
        a("s_mov_b32 s15, 0")
        a("s_mov_b32 s14, s10")
        if early:
            self.tile_pre(wait=12 if o["wd"] == "early" else 8, ksoff=lambda ks: (ks >> 1) * 12288 + (ks & 1) * 4096)
        else:
            self.tile_pre(wait=8)
        self.stamp(1)
        self.tile_post()
        self.stamp(7)
        self.lds_inc(D_CNT_HA, 32, rtn=True)
        a("s_cmp_eq_u32 s56, 3")
        a("s_cbranch_scc0 L_HDONE")
        a("v_mov_b32 v32, s43")
        a("v_lshlrev_b32 v33, 7, v1")
        a("s_mov_b64 exec, 0xff")
        a("buffer_store_dword v32, v33, s[44:47], s63 offen sc1")
        a("s_mov_b64 exec, -1")
        a("L_HDONE:")
        a("s_cmp_eq_u32 s10, 7")
        a("s_cbranch_scc0 L_FIN")
        a(f"s_sub_u32 s11, s98, {NLIGHT + o['red0']}")
        a("s_cmp_ge_u32 s11, 144")
        a("s_cbranch_scc1 L_FIN")
        a("s_setprio 0")
        self.reducer()
        a("s_branch L_FIN")

        a("L_KPOST_LIGHT:")
        a("s_and_b32 s12, s98, 15")
        a("s_lshr_b32 s13, s98, 4")
        self.lds_wait_ge(D_CNT_VISS if o["wo"] == "viss" else D_CNT_O, 8, 32)
        a("s_mov_b32 s52, s24\ns_mov_b32 s53, s25\ns_mov_b32 s54, 4718592\ns_mov_b32 s55, 0x00020000")
        a("s_mov_b32 s56, 1152")
        self.wtile_lane_offsets(56, 12, 13, 14)
        a("s_lshl_b32 s14, s12, 8")
        a("s_lshl_b32 s15, s10, 5")
        a("s_add_u32 s14, s14, s15")
        a("s_mul_i32 s14, s14, 1152")
        a("s_mul_i32 s15, s13, 384")
        a("s_add_u32 s14, s14, s15")
        a("s_lshl_b32 s15, s10, 12")
        for u in range(4):
            for st in range(3):
                a(f"s_add_u32 m0, s15, {L_W + st*32768 + u*1024}")
                a(f"s_add_u32 s56, s14, {st*128}")
                if not o.get("nowo"):
                    a(f"buffer_load_dwordx4 v{12 + (u & 1)}, s[52:55], s56 offen nt lds")
            a(f"s_add_u32 s14, s14, {8*1152}")
        a("s_waitcnt vmcnt(0)")
        self.lds_inc(D_CNT_W, 32)
        a("L_VPOST_LIGHT:")
        a("s_cmp_ge_u32 s3, 12")
        a("s_cbranch_scc1 L_LPRE_D")
        a("s_and_b32 s12, s98, 15")
        a("s_lshr_b32 s13, s98, 4")
        a("s_mul_i32 s13, s13, 192")
        a("s_lshr_b32 s15, s3, 2")
        a("s_lshl_b32 s14, s15, 6")
        a("s_add_u32 s13, s13, s14")
        a("s_lshl_b32 s15, s15, 15")
        a("s_and_b32 s14, s3, 3")
        self.tile_pre(wait=8)
        a("L_LPRE_D:")
        a("s_lshr_b32 s4, s3, 1")
        a("s_and_b32 s5, s3, 1")
        a("s_and_b32 s12, s98, 15")
        a("s_lshl_b32 s14, s4, 5")
        a("s_add_u32 s14, s14, s12")
        a("s_lshl_b32 s14, s14, 12")
        a(f"s_add_u32 s14, s14, {WS_O}")
        a("s_lshl_b32 s15, s5, 9" if o["lay"] else "s_lshl_b32 s15, s5, 10")
        a("s_add_u32 s6, s14, s15")
        a("s_add_u32 s7, s6, 0x10000")
        a("s_lshl_b32 s15, s5, 4")
        a("s_add_u32 s8, s14, s15")
        a("s_add_u32 s8, s8, 2048")
        a("s_add_u32 s9, s8, 0x10000")
        a("s_lshl_b32 s60, s12, 10")
        a("s_lshl_b32 s14, s4, 7")
        a("s_add_u32 s60, s60, s14")
        if o["fo3"]:
            a("s_lshr_b32 s14, s98, 4\ns_lshl_b32 s14, s14, 14\ns_add_u32 s60, s60, s14")
        a(f"s_add_u32 s60, s60, {WS_FO3 if o['fo3'] else WS_FO}")
        a("s_add_u32 s66, s40, s60\ns_addc_u32 s67, s41, 0")
        a("v_lshlrev_b32 v5, 7, v1")
        if o["f2r"]:
            a("s_lshr_b32 s63, s98, 4\ns_mul_i32 s63, s63, 6144")
        else:
            a("s_lshr_b32 s63, s98, 4\ns_lshl_b32 s63, s63, 10")
        a("s_lshl_b32 s14, s12, 2")
        a("s_add_u32 s63, s63, s14")
        a(f"s_add_u32 s63, s63, {WS_F2R if o['f2r'] else WS_F2}")
        a(f"s_mul_i32 s14, s4, {BM_PITCH}")
        a("s_lshl_b32 s15, s5, 8")
        a("s_add_u32 s14, s14, s15")
        a(f"s_add_u32 s14, s14, {L_BM}")
        if o["lay"]:
            a("v_and_b32 v4, 31, v1\nv_lshrrev_b32 v3, 5, v1")
            a("v_lshlrev_b32 v11, 3, v4\nv_lshlrev_b32 v10, 2, v3\nv_add_u32 v11, v11, v10")
            a("v_lshlrev_b32 v4, 4, v4\nv_lshlrev_b32 v3, 10, v3\nv_add_u32 v4, v4, v3")
        else:
            a("v_lshlrev_b32 v11, 2, v1")
            a("v_mov_b32 v4, v8")
        a("v_add_u32 v11, s14, v11")
        a("v_mov_b32 v10, 0")
        a("v_mov_b32 v9, s43")
        a("s_mov_b32 s68, s43\ns_mov_b32 s69, s43")
        a("s_mov_b32 s57, 0")
        if o["pp"]:
            n = o["pp"] + 1
            regs = [60, 70, 72, 74][:n]
            for r in regs: a(f"s_mov_b64 s[{r}:{r+1}], 0")
            a("s_waitcnt lgkmcnt(0)")
            for r in regs[:-1]:
                a(f"s_load_dwordx2 s[{r}:{r+1}], s[66:67], 0 glc")
                a(f"s_sleep {max(1, 12 // n)}")
            a("L_OPRE:")
            for i in range(n):
                a(f"s_load_dwordx2 s[{regs[(i-1) % n]}:{regs[(i-1) % n]+1}], s[66:67], 0 glc")
                a(f"s_waitcnt lgkmcnt({n-1})")
                a(f"s_cmp_eq_u64 s[{regs[i]}:{regs[i]+1}], s[68:69]")
                a("s_cbranch_scc1 L_OPRE_D")
            a("s_add_u32 s57, s57, 1")
            a("s_cmp_lt_u32 s57, 0x8000")
            a("s_cbranch_scc1 L_OPRE")
        else:
            a("L_OPRE:")
            a("s_load_dwordx2 s[60:61], s[66:67], 0 glc")
            a("s_add_u32 s57, s57, 1")
            a("s_waitcnt lgkmcnt(0)")
            a("s_cmp_eq_u64 s[60:61], s[68:69]")
            a("s_cbranch_scc1 L_OPRE_D")
            a("s_cmp_lt_u32 s57, 0x10000")
            a("s_cbranch_scc1 L_OPRE")
        a("L_OPRE_D:")
        self.stamp(3)
        a("s_mov_b32 s57, 0")
        def oloads(st0, st1, o0, o1):
            a(f"buffer_load_dwordx4 v[{st0}:{st0+3}], v10, s[44:47], s8 offen sc1")
            a(f"buffer_load_dwordx4 v[{st1}:{st1+3}], v10, s[44:47], s9 offen sc1")
            a(f"buffer_load_dwordx4 v[{o0}:{o0+3}], v4, s[44:47], s6 offen sc1")
            a(f"buffer_load_dwordx4 v[{o1}:{o1+3}], v4, s[44:47], s7 offen sc1")
        oloads(32, 36, 24, 28)
        if o["ab1"]:
            a(f"s_sleep {o['ab1']}")
            oloads(104, 108, 96, 100)
        a("L_OPOLL:")
        a("s_waitcnt vmcnt(6)" if o["ab1"] else "s_waitcnt vmcnt(2)")
        a("v_max_f32 v40, v32, v36")
        a("v_sub_f32 v42, v32, v40")
        a("v_sub_f32 v43, v36, v40")
        a("v_exp_f32 v42, v42")
        a("v_exp_f32 v43, v43")
        a("v_min3_u32 v44, v33, v35, v37\nv_max3_u32 v45, v33, v35, v37")
        a("v_mul_f32 v40, v42, v34")
        a("v_fma_f32 v40, v43, v38, v40")
        a("v_rcp_f32 v40, v40")
        a("v_min_u32 v44, v44, v39\nv_max_u32 v45, v45, v39")
        a("v_mul_f32 v42, v42, v40")
        a("v_mul_f32 v43, v43, v40")
        a("s_waitcnt vmcnt(4)" if o["ab1"] else "s_waitcnt vmcnt(0)")
        a("v_min3_u32 v44, v44, v25, v27\nv_max3_u32 v45, v45, v25, v27")
        a("v_min3_u32 v44, v44, v29, v31\nv_max3_u32 v45, v45, v29, v31")
        a("v_mul_f32 v24, v24, v42")
        a("v_mul_f32 v26, v26, v42")
        a("v_cmp_ne_u32 vcc, s43, v44")
        a("v_cmp_ne_u32 s[58:59], s43, v45")
        a("v_fma_f32 v24, v28, v43, v24")
        a("v_fma_f32 v26, v30, v43, v26")
        a("s_or_b64 vcc, vcc, s[58:59]")
        a("v_cvt_pk_bf16_f32 v24, v24, v26")
        a("s_cbranch_vccz L_OGOT")
        a("s_add_u32 s57, s57, 1")
        a("s_cmp_ge_u32 s57, 0x10000")
        a("s_cbranch_scc1 L_OGOT")
        if o["ab1"]:
            a("s_waitcnt vmcnt(0)")
            for r in range(8):
                a(f"v_mov_b32 v{32+r}, v{104+r}")
            for r in range(8):
                a(f"v_mov_b32 v{24+r}, v{96+r}")
            oloads(104, 108, 96, 100)
        else:
            oloads(32, 36, 24, 28)
        a("s_branch L_OPOLL")
        a("L_OGOT:")
        a("ds_write_b32 v11, v24")
        self.stamp(6)
        if self.stamps:
            a("v_writelane_b32 v2, s57, 1")
        a("s_waitcnt lgkmcnt(0)")
        a("s_barrier")
        if o.get("fst"): self.stamp(5)
        a("s_cmp_ge_u32 s3, 12")
        a("s_cbranch_scc1 L_LFLAG")
        self.tile_post(fst=o.get("fst"))
        self.stamp(7)
        a("s_branch L_FIN")
        a("L_LFLAG:")
        a("s_cmp_eq_u32 s3, 12")
        a("s_cbranch_scc0 L_FIN")
        if o["f2r"]:
            a("s_mov_b32 s58, -1\ns_mov_b32 s59, 0xffff")
            a("s_mov_b64 exec, s[58:59]")
        else:
            a("s_mov_b64 exec, 0xff")
        a("buffer_store_dword v9, v5, s[44:47], s63 offen sc1")
        a("s_mov_b64 exec, -1")
        a("s_branch L_FIN")
        a("L_VPOST:")
        a(f"s_cmp_lt_u32 s98, {NLIGHT}")
        a("s_cbranch_scc1 L_VPOST_LIGHT")
        a("s_branch L_FIN")

    def tile_pre(self, wait=8, ksoff=lambda ks: ks * 4096):
        a = self.a
        self.tr_addr(28, base_sgpr=15)
        a("s_lshl_b32 s56, s14, 5")
        a("v_xor_b32 v28, s56, v28")
        a("v_and_b32 v12, 7, v6")
        a(f"v_mul_u32_u24 v13, {PART_PITCH}, v12")
        a(f"v_mul_u32_u24 v12, {BM_PITCH}, v12")
        a("v_lshlrev_b32 v30, 4, v7")
        a("v_add_u32 v12, v12, v30")
        a(f"v_add_u32 v12, {L_BM}, v12")
        a("v_lshlrev_b32 v30, 4, v7" if self.opt["lay"] else "v_lshlrev_b32 v30, 5, v7")
        a("v_add_u32 v13, v13, v30")
        a(f"s_mul_i32 s62, s12, {8*PART_PITCH}")
        a("s_lshl_b32 s57, s14, 4")
        a("s_add_u32 s57, s57, s13")
        a("s_lshl_b32 s57, s57, 3")
        a("s_add_u32 s62, s62, s57")
        a(f"s_add_u32 s62, s62, {WS_PART}")
        self.lds_wait_ge(D_CNT_W, wait, 30)
        for ks in range(8):
            a(f"ds_read_b64_tr_b16 v[{48+4*ks}:{49+4*ks}], v28 offset:{ksoff(ks)}")
            a(f"ds_read_b64_tr_b16 v[{50+4*ks}:{51+4*ks}], v28 offset:{ksoff(ks)+512}")
            if ks == 3: a("s_waitcnt lgkmcnt(4)")
        a("v_mov_b32 v113, s43\nv_mov_b32 v115, s43\nv_mov_b32 v117, s43\nv_mov_b32 v119, s43")
        a("s_mov_b32 s64, 0x00ff00ff\ns_mov_b32 s65, 0x00ff00ff")

    def tile_post(self, fst=False):
        a = self.a
        if self.opt["bmask"]:
            a("s_mov_b64 exec, s[64:65]")
        for ks in range(8):
            if ks == 4 and not self.opt["bmask"]: a("s_waitcnt vmcnt(0)")
            if self.opt.get("bx") and ks >= self.opt["bx"]:
                a("s_nop 0"); continue
            a(f"ds_read_b128 v[{80+4*ks}:{83+4*ks}], v12 offset:{ks*64}")
        if self.opt["bmask"]:
            a("s_mov_b64 exec, -1")
        for ks in range(8):
            nb = self.opt.get("bx") or 8
            a(f"s_waitcnt lgkmcnt({max(nb-1-ks, 0)})")
            acc = 20 if ks % 2 == 0 else 24
            c = "0" if ks < 2 else f"v[{acc}:{acc+3}]"
            a(f"v_mfma_f32_16x16x32_bf16 v[{acc}:{acc+3}], v[{48+4*ks}:{51+4*ks}], v[{80+4*ks}:{83+4*ks}], {c}")
        if fst: self.stamp(4)
        a("s_mov_b64 exec, s[64:65]")
        a("s_nop 6")
        a("v_add_f32 v112, v20, v24\nv_add_f32 v114, v21, v25\nv_add_f32 v116, v22, v26\nv_add_f32 v118, v23, v27")
        a("buffer_store_dwordx4 v[112:115], v13, s[44:47], s62 offen sc1")
        a(f"buffer_store_dwordx4 v[116:119], v13, s[44:47], s62 offen offset:{64 if self.opt['lay'] else 16} sc1")
        a("s_mov_b64 exec, -1")

    def chk16(self, base, dst):
        a = self.a
        for i in range(8):
            a(f"s_xor_b64 s[{base+2*i}:{base+2*i+1}], s[{base+2*i}:{base+2*i+1}], s[70:71]")
        for i in range(4):
            a(f"s_or_b64 s[{base+4*i}:{base+4*i+1}], s[{base+4*i}:{base+4*i+1}], s[{base+4*i+2}:{base+4*i+3}]")
        a(f"s_or_b64 s[{base}:{base+1}], s[{base}:{base+1}], s[{base+4}:{base+5}]")
        a(f"s_or_b64 s[{base+8}:{base+9}], s[{base+8}:{base+9}], s[{base+12}:{base+13}]")
        a(f"s_or_b64 s[{base}:{base+1}], s[{base}:{base+1}], s[{base+8}:{base+9}]")

    def hloads(self):
        a = self.a
        for u in range(4, 8):
            a(f"buffer_load_dwordx4 v[{48+4*u}:{51+4*u}], v10, s[44:47], s{60+u} offen sc1")
        a("s_mov_b32 s58, -1\ns_mov_b32 s59, 0")
        a("s_mov_b64 exec, s[58:59]")
        a("buffer_load_dwordx4 v[80:83], v10, s[44:47], s68 offen sc1")
        a("s_mov_b64 exec, -1")

    def reducer(self):
        a = self.a
        o = self.opt
        a("s_mul_i32 s12, s11, 3641")
        a("s_lshr_b32 s12, s12, 16")
        a("s_mul_i32 s13, s12, 18")
        a("s_sub_u32 s13, s11, s13")
        a("v_lshlrev_b32 v10, 1, v1")
        a("s_mul_i32 s14, s12, 1152")
        a("v_add_u32 v11, s14, v10")
        for i in range(9):
            a(f"global_load_ushort v{24+i}, v11, s[16:17] offset:{128*i}")
            a(f"global_load_ushort v{36+i}, v10, s[34:35] offset:{128*i}")
        a("s_lshr_b32 s14, s13, 1")
        a("s_lshl_b32 s14, s14, 10")
        a("s_lshl_b32 s15, s12, 7")
        a("s_add_u32 s14, s14, s15")
        a(f"s_add_u32 s14, s14, {WS_F3}")
        a("s_add_u32 s90, s40, s14\ns_addc_u32 s91, s41, 0")
        if o["f2r"]:
            a("s_lshl_b32 s14, s13, 10")
        else:
            a("s_mul_i32 s14, s13, 43")
            a("s_lshr_b32 s14, s14, 8")
            a("s_lshl_b32 s14, s14, 10")
        a("s_add_u32 s14, s14, s15")
        a(f"s_add_u32 s14, s14, {WS_F2R if o['f2r'] else WS_F2}")
        a("s_add_u32 s92, s40, s14\ns_addc_u32 s93, s41, 0")
        a("s_mov_b32 s70, s43\ns_mov_b32 s71, s43")
        a("s_waitcnt vmcnt(0)")
        for i in range(9):
            a(f"v_lshlrev_b32 v{24+i}, 16, v{24+i}")
            a(f"v_lshlrev_b32 v{36+i}, 16, v{36+i}")
        for i in range(9):
            a(f"v_mul_f32 v{24+i}, v{24+i}, v{36+i}")
        for i in range(0, 8, 2):
            a(f"v_cvt_pk_bf16_f32 v{36+i}, v{24+i}, v{25+i}")
        a("v_cvt_pk_bf16_f32 v44, v32, v32")
        a("v_mov_b32 v46, 0")
        for i in range(0, 8, 2):
            a(f"v_lshlrev_b32 v24, 16, v{36+i}\nv_and_b32 v25, 0xffff0000, v{36+i}")
            a("v_add_f32 v46, v46, v24\nv_add_f32 v46, v46, v25")
        a("v_lshlrev_b32 v24, 16, v44\nv_add_f32 v46, v46, v24")
        self.row_reduce("v_add_f32", 46)
        a("s_nop 1")
        a("v_readlane_b32 s14, v46, 0\nv_readlane_b32 s15, v46, 16\nv_readlane_b32 s56, v46, 32\nv_readlane_b32 s57, v46, 48")
        a("s_nop 1")
        a("v_mov_b32 v46, s14\nv_add_f32 v46, s15, v46\nv_add_f32 v46, s56, v46\nv_add_f32 v46, s57, v46")
        a("v_cvt_pk_bf16_f32 v46, v46, v46")
        a("v_lshlrev_b32 v46, 16, v46")
        a("v_mul_f32 v46, 0xbfb8aa3b, v46")
        a("v_exp_f32 v46, v46")
        a("s_nop 0")
        a("v_add_f32 v46, 1.0, v46")
        a("v_rcp_f32 v46, v46")
        a("s_nop 0")
        a("v_cvt_pk_bf16_f32 v46, v46, v46")
        a("v_lshlrev_b32 v46, 16, v46")
        a("v_sub_f32 v47, 1.0, v46")
        a("v_cvt_pk_bf16_f32 v47, v47, v47")
        a("v_lshlrev_b32 v47, 16, v47")
        a(f"v_mul_u32_u24 v10, {8*PART_PITCH}, v7")
        a("v_lshlrev_b32 v11, 4, v6")
        a("v_add_u32 v10, v10, v11")
        a(f"s_mul_i32 s14, s12, {PART_PITCH}")
        a("s_lshl_b32 s15, s13, 8")
        a("s_add_u32 s14, s14, s15")
        a(f"s_add_u32 s14, s14, {WS_PART}")
        for u in range(9):
            a(f"s_add_u32 s{60+u}, s14, {u*4*8*PART_PITCH}")
        a("v_mov_b32 v80, 0\nv_mov_b32 v81, s43\nv_mov_b32 v82, 0\nv_mov_b32 v83, s43")
        a("s_mul_i32 s14, s12, 1152")
        a("s_lshl_b32 s15, s13, 6")
        a("s_add_u32 s14, s14, s15")
        if o["lay"]:
            a("v_lshrrev_b32 v11, 3, v6\nv_lshlrev_b32 v11, 5, v11")
            a("v_and_b32 v24, 3, v6\nv_lshlrev_b32 v24, 3, v24\nv_add_u32 v11, v11, v24")
            a("v_bfe_u32 v24, v6, 2, 1\nv_lshlrev_b32 v24, 2, v24\nv_add_u32 v11, v11, v24")
        else:
            a("v_lshlrev_b32 v11, 2, v6")
        a("v_add_u32 v11, s14, v11")
        a("s_mov_b32 s52, s36\ns_mov_b32 s53, s37\ns_mov_b32 s54, 9216\ns_mov_b32 s55, 0x00020000")
        a("s_setprio 3")
        a("s_mov_b32 s57, 0\ns_mov_b32 s15, 0")
        a("L_RF:")
        a("s_load_dwordx16 s[16:31], s[92:93], 0 glc")
        a("s_cmp_lg_u32 s15, 0")
        a("s_cbranch_scc1 L_RF_W")
        a("s_load_dwordx16 s[72:87], s[90:91], 0 glc")
        a("s_load_dwordx2 s[88:89], s[90:91], 64 glc")
        a("s_waitcnt lgkmcnt(0)")
        a("s_xor_b64 s[88:89], s[88:89], s[70:71]")
        self.chk16(72, None)
        a("s_or_b64 s[72:73], s[72:73], s[88:89]")
        a("s_cbranch_scc1 L_RF_N")
        self.hloads()
        a("s_mov_b32 s15, 1")
        self.stamp(3)
        if o["pp2"]:
            a("s_waitcnt lgkmcnt(0)")
            self.chk16(16, None)
            a("s_cbranch_scc0 L_RF_D")
            a("s_load_dwordx16 s[16:31], s[92:93], 0 glc")
            a(f"s_sleep {o['pp2']}")
            a("L_RF_P:")
            a("s_load_dwordx16 s[72:87], s[92:93], 0 glc")
            a("s_waitcnt lgkmcnt(1)")
            self.chk16(16, None)
            a("s_cbranch_scc0 L_RF_D")
            a("s_load_dwordx16 s[16:31], s[92:93], 0 glc")
            a("s_waitcnt lgkmcnt(1)")
            self.chk16(72, None)
            a("s_cbranch_scc0 L_RF_D")
            a("s_add_u32 s57, s57, 1")
            a("s_cmp_lt_u32 s57, 0x8000")
            a("s_cbranch_scc1 L_RF_P")
            a("s_branch L_RF_D")
        a("L_RF_W:")
        a("s_waitcnt lgkmcnt(0)")
        self.chk16(16, None)
        a("s_cbranch_scc0 L_RF_D")
        a("L_RF_N:")
        a("s_add_u32 s57, s57, 1")
        a("s_cmp_lt_u32 s57, 0x10000")
        a("s_cbranch_scc1 L_RF")
        a("L_RF_D:")
        self.stamp(5)
        a("s_setprio 3")
        a("s_mov_b32 s57, 0")
        a("s_cmp_lg_u32 s15, 0")
        a("s_cbranch_scc1 L_RP2")
        a("L_RPOLL:")
        self.hloads()
        a("L_RP2:")
        for u in range(4):
            a(f"buffer_load_dwordx4 v[{48+4*u}:{51+4*u}], v10, s[44:47], s{60+u} offen sc1")
        if o["ab"]:
            a(f"s_sleep {o['ab']}")
            for u in range(4):
                a(f"buffer_load_dwordx4 v[{84+4*u}:{87+4*u}], v10, s[44:47], s{60+u} offen sc1")
            a("s_waitcnt vmcnt(8)")
        else:
            a("s_waitcnt vmcnt(4)")
        a("v_min3_u32 v24, v65, v67, v69\nv_max3_u32 v25, v65, v67, v69")
        a("v_min3_u32 v24, v24, v71, v73\nv_max3_u32 v25, v25, v71, v73")
        a("v_min3_u32 v24, v24, v75, v77\nv_max3_u32 v25, v25, v75, v77")
        a("v_min3_u32 v24, v24, v79, v81\nv_max3_u32 v25, v25, v79, v81")
        a("v_min_u32 v24, v24, v83\nv_max_u32 v25, v25, v83")
        a("v_add_f32 v28, v64, v68\nv_add_f32 v29, v66, v70")
        a("v_cmp_ne_u32 vcc, s43, v24")
        a("v_cmp_ne_u32 s[58:59], s43, v25")
        a("v_add_f32 v32, v72, v76\nv_add_f32 v33, v74, v78")
        a("s_or_b64 vcc, vcc, s[58:59]")
        a("v_add_f32 v28, v28, v32\nv_add_f32 v29, v29, v33")
        a("s_cbranch_vccz L_RHOK")
        a("s_add_u32 s57, s57, 1")
        a("s_waitcnt vmcnt(0)")
        a("s_cmp_lt_u32 s57, 0x10000")
        a("s_cbranch_scc1 L_RPOLL")
        a("L_RHOK:")
        a("v_add_f32 v28, v28, v80\nv_add_f32 v29, v29, v82")
        for swap in ("v_permlane32_swap_b32", "v_permlane16_swap_b32"):
            a("v_mov_b32 v30, v28\nv_mov_b32 v31, v29")
            a("s_nop 1")
            a(f"{swap} v28, v30\n{swap} v29, v31")
            a("s_nop 1")
            a("v_add_f32 v28, v28, v30\nv_add_f32 v29, v29, v31")
        a("v_cvt_pk_bf16_f32 v31, v28, v29")
        a("v_lshlrev_b32 v28, 16, v31\nv_and_b32 v29, 0xffff0000, v31")
        a("v_mul_f32 v28, v47, v28\nv_mul_f32 v29, v47, v29")
        a("v_cvt_pk_bf16_f32 v31, v28, v29")
        a("v_lshlrev_b32 v28, 16, v31\nv_and_b32 v29, 0xffff0000, v31")
        a("L_RCHK:")
        a("s_waitcnt vmcnt(4)" if o["ab"] else "s_waitcnt vmcnt(0)")
        a("v_min3_u32 v24, v49, v51, v53\nv_max3_u32 v25, v49, v51, v53")
        a("v_min3_u32 v24, v24, v55, v57\nv_max3_u32 v25, v25, v55, v57")
        a("v_min3_u32 v24, v24, v59, v61\nv_max3_u32 v25, v25, v59, v61")
        a("v_min_u32 v24, v24, v63\nv_max_u32 v25, v25, v63")
        a("v_add_f32 v26, v48, v52\nv_add_f32 v27, v50, v54")
        a("v_cmp_ne_u32 vcc, s43, v24")
        a("v_cmp_ne_u32 s[58:59], s43, v25")
        a("v_add_f32 v30, v56, v60\nv_add_f32 v31, v58, v62")
        a("s_or_b64 vcc, vcc, s[58:59]")
        a("v_add_f32 v26, v26, v30\nv_add_f32 v27, v27, v31")
        a("s_cbranch_vccz L_RGOT")
        a("s_add_u32 s57, s57, 1")
        a("s_cmp_ge_u32 s57, 0x10000")
        a("s_cbranch_scc1 L_RGOT")
        if o["ab"]:
            a("s_waitcnt vmcnt(0)")
            for r in range(16):
                a(f"v_mov_b32 v{48+r}, v{84+r}")
            for u in range(4):
                a(f"buffer_load_dwordx4 v[{84+4*u}:{87+4*u}], v10, s[44:47], s{60+u} offen sc1")
        else:
            for u in range(4):
                a(f"buffer_load_dwordx4 v[{48+4*u}:{51+4*u}], v10, s[44:47], s{60+u} offen sc1")
        a("s_branch L_RCHK")
        a("L_RGOT:")
        self.stamp(6)
        if self.stamps:
            a("v_writelane_b32 v2, s57, 1")
        for swap in ("v_permlane32_swap_b32", "v_permlane16_swap_b32"):
            a("v_mov_b32 v30, v26\nv_mov_b32 v31, v27")
            a("s_nop 1")
            a(f"{swap} v26, v30\n{swap} v27, v31")
            a("s_nop 1")
            a("v_add_f32 v26, v26, v30\nv_add_f32 v27, v27, v31")
        a("v_cvt_pk_bf16_f32 v30, v26, v27")
        a("v_lshlrev_b32 v26, 16, v30\nv_and_b32 v27, 0xffff0000, v30")
        a("v_mul_f32 v26, v46, v26\nv_mul_f32 v27, v46, v27")
        a("v_cvt_pk_bf16_f32 v30, v26, v27")
        a("v_lshlrev_b32 v26, 16, v30\nv_and_b32 v27, 0xffff0000, v30")
        a("v_add_f32 v26, v26, v28\nv_add_f32 v27, v27, v29")
        a("v_cvt_pk_bf16_f32 v30, v26, v27")
        a("s_mov_b64 exec, 0xffff")
        a("buffer_store_dword v30, v11, s[52:55], 0 offen")
        a("s_cmp_eq_u32 s11, 0")
        a("s_cbranch_scc0 L_RDONE")
        a("s_mov_b64 exec, 1")
        a("v_mov_b32 v11, s43")
        a("buffer_store_dword v11, off, s[44:47], 0 sc1")
        a("L_RDONE:")
        a("s_mov_b64 exec, -1")
        self.stamp(7)

    def epilogue(self):
        a = self.a
        a("L_FIN:")
        if self.stamps:
            a("s_lshl_b32 s14, s2, 4")
            a("s_add_u32 s14, s14, s3")
            a("s_lshl_b32 s14, s14, 6")
            a(f"s_add_u32 s14, s14, {STAMP_OFF}")
            a("s_add_u32 s40, s40, s14\ns_addc_u32 s41, s41, 0")
            a("v_mov_b32 v3, 0")
            a("v_and_b32 v4, 63, v0")
            a("v_lshlrev_b32 v4, 3, v4")
            a("s_mov_b64 exec, 0xff")
            a("global_store_dwordx2 v4, v[2:3], s[40:41]")
        a("L_END:")
        a("s_endpgm")

    def build(self):
        self.prologue()
        self.vwave_first = True
        self.vwave()
        self.kwave()
        self.post()
        self.epilogue()
        return wrap(self.a.text(), NWG, 1024, LDS_ALLOC, self.opt["vgpr"], sgpr=102)

if __name__ == "__main__":
    stamps = "--stamps" in sys.argv
    opt = {}
    outs = []
    for x in sys.argv[1:]:
        if x.startswith("--"):
            if "=" in x:
                k, v = x[2:].split("=")
                if v in ("True", "False"): v = (v == "True")
                elif v.lstrip("-").isdigit(): v = int(v)
                opt[k] = v
        else:
            outs.append(x)
    txt = Gen(stamps=stamps, **opt).build()
    open(outs[0] if outs else "k.s", "w").write(txt)
```

```python
import sys
from asmlib import *
import rolemap

NWG = 256
NLIGHT = 48
WD0 = 46
L_W = 0
L_KSCR = 98304
L_SMALL = 131072
L_S1SLOT = 73728
L_OSLOT = L_KSCR
L_Q = L_SMALL + 4096
L_P = L_Q + 512
L_BM = L_P + 2048
BM_PITCH = 528
LDS_BYTES = L_BM + 8 * BM_PITCH
LDS_ALLOC = 143360
D_L = 768
D_CNT_S1 = 776
D_FLAG_Q = 777
D_CNT_M = 778
D_CNT_O = 779
D_CNT_W = 780
D_CNT_HA = 781
D_CNT_VISS = 782
D_FLAG_S1P = 783
D_FLAG_P = 784
D_CNT_KISS = 792
D_CNT_VL = 793
D_ZERO = 800
D_M = 1022
def sm(d): return L_SMALL + 4 * d
WS_EPOCH = 0
WS_FO = 0x4000
WS_F2 = 0x8000
WS_F3 = 0x9000
WS_S1 = 0x10000
WS_FO3 = 0x80000
WS_F2R = 0x90000
S1_PITCH = 3328 * 16
WS_O = 0x100000
WS_PART = 0x200000
PART_PITCH = 576 * 8
WS_BYTES = 0x400000
STAMP_OFF = 0x10000000
SCALE_LOG2E = 0.08838834764831845 * 1.4426950408889634

import struct
def f32bits(x): return struct.unpack("<I", struct.pack("<f", x))[0]

class Gen:
    def __init__(self, stamps=False, **opt):
        self.a = Asm()
        self.stamps = stamps
        self.opt = dict(wd="late", gate="all", kiss=True, vgpr=128, red0=0, ofl="cnto", kpost_prio=3, plan="S", viss=8, wo="viss", ngate=6, qf="after", win=12, win3=4, swap=1, cpf=0, ab=0, ab1=0, lay=1, c3u=0, c3w=0, lal=0, bmask=0, numa=0, npol=0, pp=0, pp2=0, fo3=0, f2r=0, dry1=0)
        self.opt.update(opt)

    def stamp(self, idx):
        if self.stamps:
            self.a("s_memrealtime s[96:97]")
            self.a("s_waitcnt lgkmcnt(0)")
            self.a(f"v_writelane_b32 v2, s96, {idx}")

    def lds_wait_ge(self, dword, value, vt, sleep=1):
        a = self.a
        lab = a.label("L_lw"); done = a.label("L_lwd")
        a(f"v_mov_b32 v{vt+1}, {sm(dword)}")
        a("s_mov_b32 s57, 0")
        a(f"{lab}:")
        a(f"ds_read_b32 v{vt}, v{vt+1}")
        a("s_waitcnt lgkmcnt(0)")
        a(f"v_readfirstlane_b32 s56, v{vt}")
        a("s_add_u32 s57, s57, 1")
        a(f"s_cmp_ge_u32 s56, {value}")
        a(f"s_cbranch_scc1 {done}")
        a(f"s_sleep {sleep}")
        a("s_cmp_lt_u32 s57, 0x40000")
        a(f"s_cbranch_scc1 {lab}")
        a(f"{done}:")

    def lds_inc(self, dword, vt, rtn=False):
        a = self.a
        a("s_mov_b64 s[58:59], exec")
        a("s_mov_b64 exec, 1")
        a(f"v_mov_b32 v{vt}, {sm(dword)}")
        a(f"v_mov_b32 v{vt+1}, 1")
        if rtn:
            a(f"ds_add_rtn_u32 v{vt+2}, v{vt}, v{vt+1}")
            a("s_waitcnt lgkmcnt(0)")
            a(f"v_readfirstlane_b32 s56, v{vt+2}")
        else:
            a(f"ds_add_u32 v{vt}, v{vt+1}")
        a("s_mov_b64 exec, s[58:59]")

    def flag_store(self, soff, vt):
        a = self.a
        a(f"v_mov_b32 v{vt}, s43")
        a("s_mov_b64 exec, 1")
        a(f"buffer_store_dword v{vt}, off, s[44:47], s{soff} sc1")
        a("s_mov_b64 exec, -1")

    def row_reduce(self, op, v):
        a = self.a
        for ctl in ("quad_perm:[1,0,3,2]", "quad_perm:[2,3,0,1]", "row_half_mirror", "row_mirror"):
            a("s_nop 1")
            a(f"{op}_dpp v{v}, v{v}, v{v} {ctl} row_mask:0xf bank_mask:0xf")

    def qfetch(self):
        a = self.a
        lab = a.label("L_qf")
        a(f"s_mul_i32 s14, s4, {S1_PITCH}")
        a("s_lshl_b32 s12, s5, 10")
        a("s_add_u32 s14, s14, s12")
        a("s_lshl_b32 s12, s15, 8")
        a("s_add_u32 s14, s14, s12")
        a(f"s_add_u32 s14, s14, {WS_S1}")
        a("s_add_u32 s12, s40, s14\ns_addc_u32 s13, s41, 0")
        a("s_mov_b32 s11, 0")
        a(f"{lab}:")
        a("s_load_dwordx16 s[16:31], s[12:13], 0 glc")
        a("s_load_dwordx16 s[56:71], s[12:13], 64 glc")
        a("s_load_dwordx16 s[72:87], s[12:13], 128 glc")
        a("s_load_dwordx8 s[32:39], s[12:13], 192 glc")
        a("s_load_dwordx8 s[88:95], s[12:13], 224 glc")
        a("s_add_u32 s11, s11, 1")
        a("s_cmp_ge_u32 s11, 0x8000")
        a(f"s_cbranch_scc1 {lab}_go")
        a("s_waitcnt lgkmcnt(0)")
        a("s_xor_b32 s14, s31, s43\ns_xor_b32 s100, s71, s43\ns_or_b32 s14, s14, s100")
        a("s_xor_b32 s100, s87, s43\ns_or_b32 s14, s14, s100")
        a("s_xor_b32 s100, s39, s43\ns_or_b32 s14, s14, s100")
        a("s_xor_b32 s100, s95, s43\ns_or_b32 s14, s14, s100")
        a(f"s_cbranch_scc1 {lab}")
        regs = list(range(16, 32)) + list(range(56, 72)) + list(range(72, 88)) + list(range(32, 40)) + list(range(88, 96))
        for lane, r in enumerate(regs):
            a(f"v_writelane_b32 v24, s{r}, {lane}")
        a("s_mov_b32 s100, 0xaaaaaaaa\ns_mov_b32 s101, 0xaaaaaaaa")
        a("s_nop 0")
        a("v_cmp_ne_u32 vcc, s43, v24")
        a("s_and_b64 vcc, vcc, s[100:101]")
        a(f"s_cbranch_vccnz {lab}")
        a(f"{lab}_go:")
        a("s_waitcnt lgkmcnt(0)")
        a("v_lshrrev_b32 v25, 1, v1")
        a("v_lshlrev_b32 v25, 2, v25")
        a("s_lshl_b32 s14, s15, 7")
        a(f"s_add_u32 s14, s14, {L_Q}")
        a("v_add_u32 v25, s14, v25")
        a("s_mov_b32 s100, 0x55555555\ns_mov_b32 s101, 0x55555555")
        a("s_mov_b64 exec, s[100:101]")
        a("ds_write_b32 v25, v24")
        a("s_mov_b64 exec, -1")
        a("s_load_dwordx16 s[16:31], s[0:1], 0")
        a("s_load_dwordx8 s[32:39], s[0:1], 64")
        a("s_waitcnt lgkmcnt(0)")
        self.lds_inc(D_FLAG_Q, 25)

    def prologue(self):
        a = self.a
        if self.stamps:
            a("s_memrealtime s[96:97]")
        a(f"s_cmp_ge_u32 s2, {NWG}")
        a("s_cbranch_scc1 L_END")
        a("s_load_dwordx16 s[16:31], s[0:1], 0")
        a("s_load_dwordx8 s[32:39], s[0:1], 64")
        a("s_load_dwordx2 s[40:41], s[0:1], 96")
        T = rolemap.tables(self.opt["plan"])
        a("s_and_b32 s99, s2, 7")
        a("s_lshl_b32 s99, s99, 3")
        def look(tab, dst):
            lo, hi = rolemap.pack(tab)
            a(f"s_mov_b32 s56, 0x{lo:08x}\ns_mov_b32 s57, 0x{hi:08x}")
            a("s_lshr_b64 s[56:57], s[56:57], s99")
            a(f"s_and_b32 s{dst}, s56, 0xff")
        look(T["nL"], 60); look(T["Lbase"], 61); look(T["Sbase"], 62); look(T["nD"], 63); look(T["Dbase"], 64)
        if T["use3"]:
            look(T["n3"], 66); look(T["K3base"], 67)
        a("s_lshr_b32 s65, s2, 3")
        if self.opt["lal"]:
            assert all(n == 6 for n in T["nL"])
            a("s_and_b32 s98, s2, 7")
            a("s_and_b32 s68, s65, 1\ns_lshl_b32 s68, s68, 3\ns_add_u32 s98, s98, s68")
            a("s_lshr_b32 s68, s65, 1\ns_lshl_b32 s68, s68, 4\ns_add_u32 s98, s98, s68")
        else:
            a("s_add_u32 s98, s61, s65")
        a("s_mov_b32 s99, 255")
        a("s_cmp_lt_u32 s65, s60")
        a("s_cbranch_scc1 L_ROLE")
        a("s_sub_u32 s65, s65, s60")
        if T["skip3"]:
            a("s_sub_u32 s69, s65, s66")
            a("s_add_u32 s68, s64, s69")
            a("s_cmp_lt_u32 s69, s63")
        else:
            a("s_add_u32 s68, s64, s65")
            a("s_cmp_lt_u32 s65, s63")
        a("s_cselect_b32 s99, s68, 255")
        if T["use3"]:
            a("s_add_u32 s98, s67, s65\ns_lshl_b32 s98, s98, 3")
            a(f"s_add_u32 s98, s98, {NLIGHT + 3}")
            a("s_cmp_lt_u32 s65, s66")
            a("s_cbranch_scc1 L_ROLE")
            a("s_add_u32 s68, s62, s65\ns_sub_u32 s68, s68, s66")
            a("s_mul_i32 s69, s68, 9363\ns_lshr_b32 s69, s69, 16")
            a("s_mul_i32 s70, s69, 7\ns_sub_u32 s68, s68, s70")
            a("s_lshl_b32 s98, s69, 3\ns_add_u32 s98, s98, s68")
            a("s_cmp_ge_u32 s68, 3")
            a(f"s_addc_u32 s98, s98, {NLIGHT}")
        else:
            a("s_add_u32 s98, s62, s65")
            a(f"s_add_u32 s98, s98, {NLIGHT}")
        a("L_ROLE:")
        a("v_and_b32 v1, 63, v0")
        a("v_lshrrev_b32 v9, 6, v0")
        a("v_lshlrev_b32 v3, 2, v0")
        a(f"v_add_u32 v3, {L_SMALL}, v3")
        a("v_mov_b32 v4, 0")
        a("v_mov_b32 v5, 0xff800000")
        a(f"v_cmp_le_u32 vcc, {D_M}, v0")
        a("v_readfirstlane_b32 s3, v9")
        a("s_nop 0")
        a("v_cndmask_b32 v4, v4, v5, vcc")
        if self.opt["swap"]:
            a("s_xor_b32 s3, s3, 8")
        a("ds_write_b32 v3, v4")
        if self.opt["cpf"] == 1:
            a("s_cmp_eq_u32 s3, 7")
            a("s_cbranch_scc0 L_NOCPF")
            a("s_getpc_b64 s[12:13]")
            a("L_CPFPC:")
            a(f"s_sub_u32 s12, s12, L_CPFPC-{NAME}_kernel")
            a("s_subb_u32 s13, s13, 0")
            a("v_lshlrev_b32 v10, 7, v1")
            a("global_load_dword v48, v10, s[12:13]")
            a("v_add_u32 v10, 0x2000, v10")
            a(f"v_cmp_gt_u32 vcc, L_END-{NAME}_kernel, v10")
            a("s_and_b64 exec, exec, vcc")
            a("global_load_dword v49, v10, s[12:13]")
            a("s_mov_b64 exec, -1")
            a("L_NOCPF:")
        elif self.opt["cpf"] == 2:
            a("s_cmp_eq_u32 s3, 7")
            a("s_cbranch_scc0 L_NOCPF")
            a("s_cmp_lt_u32 s2, 16")
            a("s_cbranch_scc0 L_NOCPF")
            a("s_getpc_b64 s[12:13]")
            a("L_CPFPC:")
            a(f"s_sub_u32 s12, s12, L_CPFPC-{NAME}_kernel")
            a("s_subb_u32 s13, s13, 0")
            a("v_lshlrev_b32 v10, 7, v1")
            a("s_lshr_b32 s14, s2, 3\ns_lshl_b32 s14, s14, 13")
            a("v_add_u32 v10, s14, v10")
            a(f"v_cmp_gt_u32 vcc, L_END-{NAME}_kernel, v10")
            a("s_and_b64 exec, exec, vcc")
            a("global_load_dword v48, v10, s[12:13]")
            a("s_mov_b64 exec, -1")
            a("L_NOCPF:")
        a("v_and_b32 v6, 15, v1")
        a("v_lshrrev_b32 v7, 4, v1")
        a("v_lshlrev_b32 v8, 4, v1")
        if self.opt["numa"]:
            a("s_lshr_b32 s6, s2, 3\ns_lshl_b32 s6, s6, 2\ns_and_b32 s7, s2, 3\ns_or_b32 s6, s6, s7")
            a("s_lshr_b32 s4, s6, 4")
            a("s_and_b32 s5, s6, 15")
            a("s_lshr_b32 s7, s2, 2\ns_lshr_b32 s8, s6, 1\ns_xor_b32 s7, s7, s8")
            a(f"s_xor_b32 s7, s7, {self.opt['npol']}")
            a("s_and_b32 s7, s7, 1")
            a("s_lshl_b32 s6, s6, 20")
            a("s_lshl_b32 s7, s7, 13")
            a("s_add_u32 s6, s6, s7")
            a("s_add_u32 s6, s6, 0xC0000")
            a("s_add_u32 s7, s3, s2")
            a("s_and_b32 s7, s7, 7")
            a("s_lshl_b32 s7, s7, 15")
            a("s_add_u32 s6, s6, s7")
            a("s_add_u32 s7, s6, 4096")
            a("s_add_u32 s8, s6, 16384")
            a("s_add_u32 s9, s6, 20480")
        else:
            a("s_lshr_b32 s4, s2, 5")
            a("s_and_b32 s5, s2, 15")
            a("s_lshl_b32 s6, s4, 4")
            a("s_add_u32 s6, s6, s5")
            a("s_lshl_b32 s6, s6, 20")
            a("s_lshr_b32 s7, s2, 4")
            a("s_and_b32 s7, s7, 1")
            a("s_lshl_b32 s7, s7, 17")
            a("s_add_u32 s6, s6, s7")
            a("s_add_u32 s6, s6, 0xC0000")
            a("s_add_u32 s7, s3, s2")
            a("s_and_b32 s7, s7, 7")
            a("s_lshl_b32 s7, s7, 14")
            a("s_add_u32 s6, s6, s7")
            a("s_add_u32 s7, s6, 4096")
            a("s_add_u32 s8, s6, 8192")
            a("s_add_u32 s9, s6, 12288")
        a("s_and_b32 s10, s3, 7")
        a(f"s_sub_u32 s11, s98, {NLIGHT}")
        a("s_cmp_ge_u32 s3, 8")
        a("s_cbranch_scc1 L_VPRO")
        a("s_waitcnt lgkmcnt(0)")
        self.common_after_args()
        a("s_branch L_KWAVE")
        a("L_VPRO:")
        a("v_and_b32 v10, 7, v6")
        a("v_mul_u32_u24 v10, 1152, v10")
        a("v_lshlrev_b32 v11, 4, v7")
        a("v_add_u32 v10, v10, v11")
        a("s_mul_i32 s14, s10, 192")
        a("v_add_u32 v10, s14, v10")
        a("s_mov_b32 s12, 8192\ns_mov_b32 s13, s11\ns_mov_b32 s54, 4718592")
        a("s_cmp_lt_i32 s11, 64\ns_cbranch_scc1 L_S1SEL0")
        a("s_mov_b32 s54, 5308416\ns_mov_b32 s12, 9216\ns_sub_u32 s13, s11, 64")
        a("s_cmp_lt_u32 s11, 136\ns_cbranch_scc1 L_S1SEL0")
        a("s_sub_u32 s13, s11, 136")
        a("L_S1SEL0:")
        a("s_mov_b32 s55, 0x00020000")
        a("s_lshl_b32 s13, s13, 7")
        self.wtile_lane_offsets(12, 12, 13, 14)
        a("s_mul_i32 s14, s10, 96")
        a("s_mul_i32 s14, s14, s12")
        a("s_add_u32 s14, s14, s13")
        a("s_lshl_b32 s15, s12, 3")
        a("s_mul_i32 s56, s10, 12288")
        a("s_waitcnt lgkmcnt(0)")
        self.common_after_args()

    def common_after_args(self):
        a = self.a
        if self.stamps:
            a("v_mov_b32 v2, 0")
            a("v_writelane_b32 v2, s96, 0")
        a("s_load_dword s42, s[40:41], 0")
        a("s_mov_b32 s44, s40\ns_mov_b32 s45, s41")
        a(f"s_mov_b32 s46, {WS_BYTES}\ns_mov_b32 s47, 0x00020000")

    def setidx(self, d):
        a = self.a
        if self.opt["numa"]:
            a(f"s_lshr_b32 s{d}, s5, 1\ns_lshl_b32 s{d}, s{d}, 2\ns_xor_b32 s{d}, s{d}, s2\ns_lshr_b32 s{d}, s{d}, 2")
            a(f"s_xor_b32 s{d}, s{d}, {self.opt['npol']}\ns_and_b32 s{d}, s{d}, 1")
        else:
            a(f"s_lshr_b32 s{d}, s2, 4\ns_and_b32 s{d}, s{d}, 1")

    def tag_ready(self):
        a = self.a
        a("s_waitcnt lgkmcnt(0)")
        a("s_mul_i32 s43, s42, 0x9E3779B1")
        a("s_add_u32 s43, s43, 0x7F4A7C15")

    def wtile_lane_offsets(self, pitch_sgpr, ve, vo, vt):
        a = self.a
        a(f"v_lshrrev_b32 v{vt}, 3, v1")
        a(f"v_mul_lo_u32 v{ve}, v{vt}, s{pitch_sgpr}")
        a(f"v_and_b32 v{vt}, 1, v7")
        a(f"v_lshlrev_b32 v{vt}, 1, v{vt}")
        a(f"v_and_b32 v{vo}, 7, v1")
        a(f"v_xor_b32 v{vt}, v{vt}, v{vo}")
        a(f"v_lshlrev_b32 v{vo}, 4, v{vt}")
        a(f"v_add_u32 v{ve}, v{ve}, v{vo}")
        a(f"v_xor_b32 v{vo}, 64, v{ve}")

    def tr_addr(self, v0, base_const=None, base_sgpr=None):
        a = self.a
        t = v0 + 3
        a(f"v_lshrrev_b32 v{v0}, 2, v6")
        a(f"v_lshlrev_b32 v{t}, 3, v7")
        a(f"v_add_u32 v{t}, v{t}, v{v0}")
        a(f"v_lshlrev_b32 v{t}, 7, v{t}")
        a(f"v_lshrrev_b32 v{v0}, 1, v{v0}")
        a(f"v_and_b32 v{v0+1}, 1, v7")
        a(f"v_lshlrev_b32 v{v0+1}, 1, v{v0+1}")
        a(f"v_or_b32 v{v0}, v{v0}, v{v0+1}")
        a(f"v_lshlrev_b32 v{v0}, 5, v{v0}")
        a(f"v_add_u32 v{t}, v{t}, v{v0}")
        a(f"v_and_b32 v{v0}, 3, v6")
        a(f"v_lshlrev_b32 v{v0}, 3, v{v0}")
        a(f"v_add_u32 v{v0}, v{t}, v{v0}")
        if base_sgpr is not None:
            a(f"v_add_u32 v{v0}, s{base_sgpr}, v{v0}")
        elif base_const:
            a(f"v_add_u32 v{v0}, {base_const}, v{v0}")
        a(f"v_xor_b32 v{v0+1}, 32, v{v0}")
        a(f"v_xor_b32 v{v0+2}, 64, v{v0}")
        a(f"v_xor_b32 v{v0+3}, 0x60, v{v0}")

    def s1job(self):
        a = self.a
        a("s_setprio 3")
        a("s_mov_b32 s52, s22\ns_mov_b32 s53, s23")
        a("s_cmp_lt_u32 s11, 64\ns_cbranch_scc1 L_S1SEL")
        a("s_mov_b32 s52, s28\ns_mov_b32 s53, s29")
        a("s_cmp_lt_u32 s11, 136\ns_cbranch_scc1 L_S1SEL")
        a("s_mov_b32 s52, s30\ns_mov_b32 s53, s31")
        a("L_S1SEL:")
        def dma(u):
            a(f"s_add_u32 m0, s56, {L_W + u*1024}")
            a("s_add_u32 s14, s14, s15" if u > 0 else "s_nop 0")
            a(f"buffer_load_dwordx4 v{12 + (u & 1)}, s[52:55], s14 offen nt lds")
        def xl():
            for ks in range(3):
                a(f"global_load_dwordx4 v[{16+4*ks}:{19+4*ks}], v10, s[16:17] offset:{64*ks}")
        W, W3 = self.opt["win"], self.opt["win3"]
        if W >= 12 and not self.opt["c3w"]:
            for u in range(12): dma(u)
            xl()
            a("s_barrier")
            self.stamp(1)
        else:
            xl()
            a("s_and_b32 s57, s11, 7")
            a("s_cmp_eq_u32 s57, 3")
            a("s_cbranch_scc0 L_S1WN")
            if self.opt["c3w"] == 1:
                a("s_cmp_ge_u32 s11, 64")
                a("s_cbranch_scc0 L_S1WN")
            for u in range(W3): dma(u)
            a("s_barrier")
            self.stamp(1)
            for u in range(W3, 12):
                a(f"s_waitcnt vmcnt({W3-1})")
                dma(u)
            a("s_branch L_S1WD")
            a("L_S1WN:")
            for u in range(min(W, 12)): dma(u)
            a("s_barrier")
            self.stamp(1)
            for u in range(W, 12):
                a(f"s_waitcnt vmcnt({W-1})")
                dma(u)
            a("L_S1WD:")
        self.tr_addr(28, base_sgpr=56)
        a("s_waitcnt vmcnt(0)")
        def rd(ks):
            for t in range(4):
                for hf in range(2):
                    r = 48 + (ks*4+t)*4 + hf*2
                    a(f"ds_read_b64_tr_b16 v[{r}:{r+1}], v{28+t} offset:{ks*4096 + hf*512}")
        def mm(ks):
            for t in range(4):
                r = 48 + (ks*4+t)*4
                c = "0" if ks == 0 else f"v[{32+4*t}:{35+4*t}]"
                a(f"v_mfma_f32_16x16x32_bf16 v[{32+4*t}:{35+4*t}], v[{r}:{r+3}], v[{16+4*ks}:{19+4*ks}], {c}")
        rd(0)
        a("s_waitcnt lgkmcnt(7)")
        rd(1)
        a("s_waitcnt lgkmcnt(8)")
        mm(0)
        rd(2)
        a("s_waitcnt lgkmcnt(8)")
        mm(1)
        a("s_waitcnt lgkmcnt(0)")
        mm(2)
        a("v_lshlrev_b32 v10, 3, v7")
        a("v_add_u32 v10, v10, v6")
        a("v_lshlrev_b32 v10, 4, v10")
        a("s_lshl_b32 s14, s10, 11")
        a(f"s_add_u32 s14, s14, {L_S1SLOT}")
        a("v_add_u32 v10, s14, v10")
        a("s_mov_b32 s58, 0x00ff00ff\ns_mov_b32 s59, 0x00ff00ff")
        a("s_nop 1")
        a("s_mov_b64 exec, s[58:59]")
        for t in range(4):
            a(f"ds_write_b128 v10, v[{32+4*t}:{35+4*t}] offset:{t*512}")
        a("s_mov_b64 exec, -1")
        a("s_waitcnt lgkmcnt(0)")
        self.lds_inc(D_CNT_S1, 10, rtn=True)
        a("s_cmp_eq_u32 s56, 5")
        a("s_cbranch_scc0 L_S1DONE")
        a("v_and_b32 v10, 31, v1")
        a("v_lshlrev_b32 v10, 4, v10")
        a("v_lshrrev_b32 v11, 5, v1")
        a("v_lshlrev_b32 v12, 9, v11")
        a("v_add_u32 v10, v10, v12")
        a(f"v_add_u32 v10, {L_S1SLOT}, v10")
        for sl in range(6):
            for i in range(2):
                r = 48 + (sl*2+i)*4
                a(f"ds_read_b128 v[{r}:{r+3}], v10 offset:{sl*2048 + i*1024}")
        a("v_and_b32 v12, 7, v1")
        a(f"s_mov_b32 s14, {S1_PITCH}")
        a("v_mul_lo_u32 v12, v12, s14")
        a("v_bfe_u32 v13, v1, 3, 2")
        a("v_lshlrev_b32 v14, 2, v11")
        a("v_add_u32 v13, v13, v14")
        a("v_lshlrev_b32 v13, 4, v13")
        a("v_add_u32 v12, v12, v13")
        a("s_lshl_b32 s14, s11, 8")
        a(f"s_add_u32 s14, s14, {WS_S1}")
        self.tag_ready()
        for i in range(2):
            for c in range(4):
                R = lambda sl: 48 + (sl*2+i)*4 + c
                d = 16 + 4*i + c
                a(f"v_add_f32 v{d}, v{R(0)}, v{R(1)}")
                a(f"v_add_f32 v{R(2)}, v{R(2)}, v{R(3)}")
                a(f"v_add_f32 v{R(4)}, v{R(4)}, v{R(5)}")
                a(f"v_add_f32 v{d}, v{d}, v{R(2)}")
                a(f"v_add_f32 v{d}, v{d}, v{R(4)}")
        a("v_mov_b32 v25, s43\nv_mov_b32 v27, s43\nv_mov_b32 v29, s43\nv_mov_b32 v31, s43")
        a("v_cvt_pk_bf16_f32 v24, v16, v17")
        a("v_cvt_pk_bf16_f32 v26, v18, v19")
        a("v_cvt_pk_bf16_f32 v28, v20, v21")
        a("v_cvt_pk_bf16_f32 v30, v22, v23")
        a("buffer_store_dwordx4 v[24:27], v12, s[44:47], s14 offen sc1")
        a("buffer_store_dwordx4 v[28:31], v12, s[44:47], s14 offen offset:128 sc1")
        self.lds_inc(D_FLAG_S1P, 10)
        a("L_S1DONE:")
        self.stamp(6)

    def kwave(self):
        a = self.a
        o = self.opt
        a("L_KWAVE:")
        a("s_mov_b32 s48, s18\ns_mov_b32 s49, s19\ns_mov_b32 s50, 0x8000000\ns_mov_b32 s51, 0x00020000")
        a("s_setprio 2")
        a("s_barrier")
        self.stamp(1)
        if o["qf"] == "first":
            a("s_cmp_lt_u32 s10, 6")
            a("s_cbranch_scc1 L_KGATE")
            self.tag_ready()
            a("s_sub_u32 s15, s10, 6")
            self.qfetch()
            a("s_branch L_KLOAD")
            a("L_KGATE:")
        if o["gate"] != "none":
            a(f"s_cmp_ge_u32 s10, {o['ngate']}")
            a("s_cbranch_scc1 L_KLOAD")
            lim = 64 if o["gate"] == "q" else 208
            a(f"s_cmp_ge_u32 s11, {lim}")
            a("s_cbranch_scc1 L_KLOAD")
            if o["c3u"]:
                if o["c3u"] == 1:
                    a("s_cmp_lt_u32 s11, 64")
                    a("s_cbranch_scc1 L_KG2")
                a("s_and_b32 s56, s11, 7")
                a("s_cmp_eq_u32 s56, 3")
                a("s_cbranch_scc1 L_KLOAD")
                a("L_KG2:")
            self.lds_wait_ge(D_FLAG_S1P, 1, 10)
        a("L_KLOAD:")
        KB = 48
        for u in range(16):
            a(f"buffer_load_dwordx4 v[{KB+4*u}:{KB+4*u+3}], v8, s[48:51], s{6 + u//4} offen offset:{(u%4)*1024} nt")
        self.lds_inc(D_CNT_KISS, 10)
        self.stamp(2)
        a("s_mov_b32 s61, 0")
        a("s_cmp_ge_u32 s99, 162")
        a("s_cbranch_scc1 L_NOHP")
        if o["qf"] != "first":
            a("s_cmp_ge_u32 s10, 6")
            a("s_cbranch_scc1 L_NOHP")
        self.haddr()
        a("buffer_load_dwordx4 v[120:123], v8, s[44:47], s14 offen sc1")
        a("buffer_load_dwordx4 v[124:127], v8, s[44:47], s15 offen sc1")
        a("s_mov_b32 s61, 2")
        if o["wd"] == "kearly":
            self.wd_dma_early(waitflag=True)
        a("L_NOHP:")
        a(f"s_lshl_b32 s56, s10, 12")
        a(f"s_add_u32 s56, s56, {L_KSCR}")
        a("v_xor_b32 v10, v6, v7")
        a("v_lshlrev_b32 v10, 4, v10")
        a("v_lshlrev_b32 v11, 8, v7")
        a("v_add_u32 v12, v10, v11")
        a("v_add_u32 v12, s56, v12")
        a("v_xor_b32 v13, 64, v12\nv_xor_b32 v14, 0x80, v12\nv_xor_b32 v15, 0xc0, v12")
        a("v_lshlrev_b32 v11, 8, v6")
        a("v_add_u32 v16, v10, v11")
        a("v_add_u32 v16, s56, v16")
        a("v_xor_b32 v17, 64, v16\nv_xor_b32 v18, 0x80, v16\nv_xor_b32 v19, 0xc0, v16")
        a("v_bfe_u32 v20, v6, 2, 1")
        a("v_lshlrev_b32 v20, 8, v20")
        a("v_lshlrev_b32 v21, 4, v7")
        a("v_add_u32 v20, v20, v21")
        a(f"v_add_u32 v20, {L_Q}, v20")
        self.tag_ready()
        if o["qf"] != "first":
            a("s_cmp_lt_u32 s10, 6")
            a("s_cbranch_scc1 L_QWAIT")
            a("s_sub_u32 s15, s10, 6")
            self.qfetch()
            a("s_mov_b32 s61, 0")
            a("s_cmp_ge_u32 s99, 162")
            a("s_cbranch_scc1 L_QWAIT")
            self.haddr()
            a("buffer_load_dwordx4 v[120:123], v8, s[44:47], s14 offen sc1")
            a("buffer_load_dwordx4 v[124:127], v8, s[44:47], s15 offen sc1")
            a("s_mov_b32 s61, 2")
        a("L_QWAIT:")
        self.lds_wait_ge(D_FLAG_Q, 4, 22)
        self.stamp(4)
        for j in range(4):
            a(f"ds_read_b128 v[{32+4*j}:{35+4*j}], v20 offset:{64*j}")
        a("s_cmp_eq_u32 s61, 0")
        a("s_cbranch_scc1 L_KW0")
        if o["wd"] == "kearly":
            a("s_cmp_eq_u32 s61, 2")
            a("s_cbranch_scc1 L_KW2")
            a("s_waitcnt vmcnt(10)")
            a("s_branch L_KW1")
            a("L_KW2:")
        a("s_waitcnt vmcnt(2)")
        a("s_branch L_KW1")
        a("L_KW0:")
        a("s_waitcnt vmcnt(0)")
        a("L_KW1:")
        self.stamp(5)
        ACC = [112, 116, 24, 28]
        def tile_ops(t):
            Gk, tp = t >> 1, t & 1
            for aa in range(4):
                u = 8*Gk + 2*aa + tp
                a(f"ds_write_b128 v{12+aa}, v[{KB+4*u}:{KB+4*u+3}] offset:{aa*1024}")
            for j in range(4):
                u = 8*Gk + 2*j + tp
                a(f"ds_read_b128 v[{KB+4*u}:{KB+4*u+3}], v{16+j}")
        def tile_mm(t):
            Gk, tp = t >> 1, t & 1
            for j in range(4):
                u = 8*Gk + 2*j + tp
                c = "0" if j == 0 else f"v[{ACC[t]}:{ACC[t]+3}]"
                a(f"v_mfma_f32_16x16x32_bf16 v[{ACC[t]}:{ACC[t]+3}], v[{32+4*j}:{35+4*j}], v[{KB+4*u}:{KB+4*u+3}], {c}")
        tile_ops(0)
        a("s_waitcnt lgkmcnt(6)")
        tile_ops(1)
        a("s_waitcnt lgkmcnt(8)")
        tile_mm(0)
        tile_ops(2)
        a("s_waitcnt lgkmcnt(8)")
        tile_mm(1)
        tile_ops(3)
        a("s_waitcnt lgkmcnt(8)")
        tile_mm(2)
        a("s_waitcnt lgkmcnt(0)")
        tile_mm(3)
        a("v_and_b32 v22, 1, v7")
        a("v_lshlrev_b32 v22, 2, v22")
        a(f"v_add_u32 v23, {sm(D_L)}, v22")
        a(f"v_add_u32 v22, {sm(D_M)}, v22")
        a("s_mov_b32 s58, 0x00010001\ns_mov_b32 s59, 0")
        a("v_max_f32 v21, v112, v116")
        a("s_nop 3")
        a("v_max3_f32 v21, v21, v24, v28")
        self.row_reduce("v_max_f32", 21)
        a("s_mov_b64 exec, s[58:59]")
        a("ds_max_f32 v22, v21")
        a("s_mov_b64 exec, -1")
        a("s_waitcnt lgkmcnt(0)")
        self.lds_inc(D_CNT_M, 26)
        a("v_and_b32 v30, 3, v6")
        a("v_lshlrev_b32 v30, 2, v30")
        a("v_lshrrev_b32 v31, 2, v6")
        a("v_add_u32 v30, v30, v31")
        a("v_lshlrev_b32 v30, 2, v30")
        a("v_lshlrev_b32 v31, 7, v7")
        a("v_add_u32 v30, v30, v31")
        a("s_lshl_b32 s14, s10, 8")
        a(f"s_add_u32 s14, s14, {L_P}")
        a("v_add_u32 v30, s14, v30")
        a("s_lshl_b32 s15, s10, 2")
        a(f"s_add_u32 s15, s15, {sm(D_FLAG_P)}")
        a(f"s_mov_b32 s14, 0x{f32bits(SCALE_LOG2E):08x}")
        self.lds_wait_ge(D_CNT_M, 8, 26, sleep=0)
        a("ds_read_b32 v21, v22")
        a("s_waitcnt lgkmcnt(0)")
        a("v_mul_f32 v21, s14, v21")
        E = [112, 116, 24, 28]
        for t in range(4):
            a(f"v_fma_f32 v{E[t]}, v{E[t]}, s14, -v21")
        for t in range(4):
            a(f"v_exp_f32 v{E[t]}, v{E[t]}")
        a("s_nop 0")
        a("v_add_f32 v26, v112, v116")
        a("v_add_f32 v27, v24, v28")
        a("v_cvt_pk_bf16_f32 v25, v112, v116")
        a("v_cvt_pk_bf16_f32 v29, v24, v28")
        a("v_add_f32 v26, v26, v27")
        a("s_mov_b32 s58, -1\ns_mov_b32 s59, 0")
        a("s_mov_b64 exec, s[58:59]")
        a("ds_write_b32 v30, v25")
        a("ds_write_b32 v30, v29 offset:64")
        a("s_mov_b64 exec, -1")
        self.row_reduce("v_add_f32", 26)
        a("s_mov_b32 s58, 0x00010001\ns_mov_b32 s59, 0")
        a("s_mov_b64 exec, s[58:59]")
        a("ds_add_f32 v23, v26")
        a("s_mov_b64 exec, -1")
        a("v_mov_b32 v30, s15\nv_mov_b32 v31, 1")
        a("s_waitcnt lgkmcnt(0)")
        a("s_mov_b64 exec, 1")
        a("ds_write_b32 v30, v31")
        a("s_mov_b64 exec, -1")
        self.stamp(6)
        a("s_branch L_KPOST")

    def haddr(self):
        a = self.a
        a("s_mov_b32 s11, s99")
        a("s_mul_i32 s12, s11, 7282")
        a("s_lshr_b32 s12, s12, 16")
        a("s_mul_i32 s13, s12, 9")
        a("s_sub_u32 s13, s11, s13")
        a(f"s_mul_i32 s14, s10, {S1_PITCH}")
        a("s_lshl_b32 s15, s12, 10")
        a("s_add_u32 s14, s14, s15")
        a(f"s_add_u32 s14, s14, {WS_S1 + 1024*16}")
        a(f"s_add_u32 s15, s14, {1152*16}")

    def wd_dma_early(self, waitflag=False):
        a = self.a
        a("s_cmp_ge_u32 s99, 162")
        a("s_cbranch_scc1 L_NOWD")
        a("s_cmp_ge_u32 s10, 4")
        a("s_cbranch_scc1 L_NOWD")
        if waitflag:
            self.lds_wait_ge(D_FLAG_S1P, 1, 10)
        a("s_mov_b32 s11, s99")
        a("s_mul_i32 s12, s11, 7282")
        a("s_lshr_b32 s12, s12, 16")
        a("s_mul_i32 s13, s12, 9")
        a("s_sub_u32 s13, s11, s13")
        a("s_mov_b32 s52, s32\ns_mov_b32 s53, s33\ns_mov_b32 s54, 5308416\ns_mov_b32 s55, 0x00020000")
        a("s_mov_b32 s56, 1152")
        self.wtile_lane_offsets(56, 12, 13, 14)
        a("s_lshl_b32 s14, s12, 8")
        a("s_lshl_b32 s15, s10, 6")
        a("s_add_u32 s14, s14, s15")
        a("s_mul_i32 s14, s14, 1152")
        a("s_lshl_b32 s15, s13, 7")
        a("s_add_u32 s14, s14, s15")
        a("s_mul_i32 s15, s10, 12288")
        for u in range(8):
            a(f"s_add_u32 m0, s15, {L_W + u*1024}")
            a(f"s_add_u32 s14, s14, {8*1152}" if u > 0 else "s_nop 0")
            a(f"buffer_load_dwordx4 v{12 + (u & 1)}, s[52:55], s14 offen nt lds")
        a("s_mov_b32 s61, 10" if waitflag else "s_mov_b32 s61, 1")
        a("L_NOWD:")

    def vwave(self):
        a = self.a
        o = self.opt
        a("L_VWAVE:")
        a("s_mov_b32 s48, s20\ns_mov_b32 s49, s21\ns_mov_b32 s50, 0x8000000\ns_mov_b32 s51, 0x00020000")
        a(f"s_cmp_lt_u32 s98, {NLIGHT}")
        a("s_cbranch_scc1 L_VBAR")
        a("s_cmp_ge_u32 s10, 6")
        a("s_cbranch_scc1 L_VBAR")
        self.s1job()
        a("s_setprio 1")
        a("s_branch L_VGATE")
        a("L_VBAR:")
        a("s_setprio 1")
        a("s_barrier")
        self.stamp(1)
        VB = 48
        a("s_cmp_lt_u32 s3, 14")
        a("s_cbranch_scc1 L_VGATE")
        self.tag_ready()
        a("s_sub_u32 s15, s3, 12")
        self.qfetch()
        self.stamp(7)
        a("L_VGATE:")
        if o["kiss"]:
            self.lds_wait_ge(D_CNT_KISS, 8, 22)
        a("s_mov_b32 s61, 0")
        if o["wd"] == "early":
            self.wd_dma_early()
        for u in range(16):
            a(f"buffer_load_dwordx4 v[{VB+4*u}:{VB+4*u+3}], v8, s[48:51], s{6 + u//4} offen offset:{(u%4)*1024} nt")
        self.lds_inc(D_CNT_VISS, 22)
        self.stamp(2)
        a("s_lshl_b32 s14, s10, 8")
        a(f"s_add_u32 s14, s14, {L_P}")
        a("v_and_b32 v10, 1, v6")
        a("v_lshlrev_b32 v10, 7, v10")
        a("v_lshlrev_b32 v11, 4, v7")
        a("v_add_u32 v10, v10, v11")
        a("v_add_u32 v10, s14, v10")
        a(f"v_mov_b32 v11, {sm(D_ZERO)}")
        a("v_and_b32 v16, 14, v6")
        for gp in range(4):
            a(f"v_cmp_eq_u32 vcc, {4*gp}, v16")
            a("s_nop 1")
            a(f"v_cndmask_b32 v{12+gp}, v11, v10, vcc")
        a("v_lshlrev_b32 v10, 3, v6")
        a("v_add_u32 v10, v10, v7")
        a("v_lshlrev_b32 v10, 2, v10")
        a("s_lshl_b32 s14, s10, 10")
        a(f"s_add_u32 s14, s14, {L_OSLOT}")
        a("v_add_u32 v10, s14, v10")
        a("s_mov_b32 s12, 0x05040100\ns_mov_b32 s13, 0x07060302")
        a("s_lshl_b32 s60, s5, 10")
        a("s_lshl_b32 s14, s4, 7")
        a("s_add_u32 s60, s60, s14")
        self.setidx(14)
        a("s_lshl_b32 s14, s14, 2")
        a("s_add_u32 s60, s60, s14")
        a(f"s_add_u32 s60, s60, {WS_FO3 if o['fo3'] else WS_FO}")
        self.tag_ready()
        a("v_mov_b32 v11, s43")
        if o["fo3"]:
            a("v_lshlrev_b32 v9, 14, v1")
        lab = a.label("L_pw")
        a("s_lshl_b32 s14, s10, 2")
        a(f"s_add_u32 s14, s14, {sm(D_FLAG_P)}")
        a("v_mov_b32 v18, s14")
        a("s_mov_b32 s57, 0")
        a(f"{lab}:")
        a("ds_read_b32 v17, v18")
        a("s_waitcnt lgkmcnt(0)")
        a("v_readfirstlane_b32 s56, v17")
        a("s_add_u32 s57, s57, 1")
        a("s_cmp_ge_u32 s56, 1")
        a(f"s_cbranch_scc1 {lab}_d")
        a("s_sleep 2")
        a("s_cmp_lt_u32 s57, 0x40000")
        a(f"s_cbranch_scc1 {lab}")
        a(f"{lab}_d:")
        self.stamp(3)
        for gp in range(4):
            a(f"ds_read_b128 v[{28+4*gp}:{31+4*gp}], v{12+gp}")
        a("s_waitcnt vmcnt(8)")
        if o["wd"] == "early":
            a("s_cmp_eq_u32 s61, 0")
            a("s_cbranch_scc1 L_NOWINC")
            self.lds_inc(D_CNT_W, 16)
            a("L_NOWINC:")
        T = [112, 116, 44, 16]
        def L(G, i, d): return VB + 32*G + 4*i + d
        for ph in range(2):
            for dd in range(2):
                d = 2*ph + dd
                for e in range(2):
                    for rp in range(4):
                        a(f"v_perm_b32 v{T[2*dd+e]+rp}, v{L(0,2*rp+1,d)}, v{L(0,2*rp,d)}, s{12+e}")
            if ph == 0:
                a("s_waitcnt lgkmcnt(0)")
            else:
                a("s_nop 1")
            for jj in range(4):
                c = "0" if jj == 0 else f"v[{20+4*ph}:{23+4*ph}]"
                a(f"v_mfma_f32_16x16x32_bf16 v[{20+4*ph}:{23+4*ph}], v[{28+4*jj}:{31+4*jj}], v[{T[jj]}:{T[jj]+3}], {c}")
        a("s_nop 7")
        for gp in range(4):
            a(f"ds_read_b128 v[{28+4*gp}:{31+4*gp}], v{12+gp} offset:64")
        for rp in range(4):
            a(f"s_waitcnt vmcnt({6 - 2*rp})")
            if rp == 3 and o["ofl"] == "land":
                a("s_mov_b64 exec, 1")
                a(f"v_mov_b32 v16, {sm(D_CNT_VL)}\nv_mov_b32 v17, 1")
                a("ds_add_rtn_u32 v18, v16, v17")
                a("s_mov_b64 exec, -1")
            for d in range(4):
                for e in range(2):
                    a(f"v_perm_b32 v{VB+4*(2*d+e)+rp}, v{L(1,2*rp+1,d)}, v{L(1,2*rp,d)}, s{12+e}")
        self.stamp(4)
        a("s_waitcnt lgkmcnt(0)")
        if o["ofl"] == "land":
            a("v_readfirstlane_b32 s56, v18")
            a("s_cmp_eq_u32 s56, 7")
            a("s_cbranch_scc0 L_NOFL")
            a("s_mov_b64 exec, 1")
            a("buffer_store_dword v11, off, s[44:47], s60 sc1")
            a("s_mov_b64 exec, -1")
            a("L_NOFL:")
        for jj in range(4):
            for ph in range(2):
                j = 4*ph + jj
                a(f"v_mfma_f32_16x16x32_bf16 v[{20+4*ph}:{23+4*ph}], v[{28+4*jj}:{31+4*jj}], v[{VB+4*j}:{VB+4*j+3}], v[{20+4*ph}:{23+4*ph}]")
        a("s_nop 7")
        for r in range(2):
            a(f"ds_write2_b32 v10, v{20+r}, v{24+r} offset0:{r*128} offset1:{r*128+4}")
        a("s_waitcnt lgkmcnt(0)")
        self.lds_inc(D_CNT_O, 28, rtn=True)
        a("s_cmp_eq_u32 s56, 7")
        a("s_cbranch_scc0 L_VPOST")
        if o["ofl"] == "cnto":
            if o["fo3"]:
                a("s_mov_b64 exec, 7")
                a("buffer_store_dword v11, v9, s[44:47], s60 offen sc1")
            else:
                a("s_mov_b64 exec, 1")
                a("buffer_store_dword v11, off, s[44:47], s60 sc1")
            a("s_mov_b64 exec, -1")
        a(f"v_add_u32 v28, {L_OSLOT}, v8")
        for sl in range(8):
            a(f"ds_read_b128 v[{48+4*sl}:{51+4*sl}], v28 offset:{sl*1024}")
        a("v_lshrrev_b32 v29, 5, v1")
        a("v_lshlrev_b32 v29, 2, v29")
        a(f"v_add_u32 v30, {sm(D_M)}, v29")
        a(f"v_add_u32 v31, {sm(D_L)}, v29")
        a("ds_read_b32 v44, v30")
        a("ds_read_b32 v46, v31")
        self.setidx(15)
        a("s_lshl_b32 s14, s4, 5\ns_lshl_b32 s15, s15, 4\ns_or_b32 s14, s14, s15\ns_or_b32 s14, s14, s5")
        a("s_lshl_b32 s14, s14, 12")
        a(f"s_add_u32 s14, s14, {WS_O}")
        a("v_lshlrev_b32 v28, 4, v1" if o["lay"] else "v_lshlrev_b32 v28, 5, v1")
        a("v_mov_b32 v37, s43\nv_mov_b32 v39, s43\nv_mov_b32 v41, s43\nv_mov_b32 v43, s43\nv_mov_b32 v45, s43\nv_mov_b32 v47, s43")
        a(f"s_mov_b32 s15, 0x{f32bits(SCALE_LOG2E):08x}")
        a("v_lshlrev_b32 v29, 2, v29")
        a("s_mov_b32 s58, 1\ns_mov_b32 s59, 1")
        a("s_waitcnt lgkmcnt(0)")
        for c in range(4):
            R = lambda sl: 48 + 4*sl + c
            a(f"v_add_f32 v{R(0)}, v{R(0)}, v{R(1)}")
            a(f"v_add_f32 v{R(2)}, v{R(2)}, v{R(3)}")
            a(f"v_add_f32 v{R(4)}, v{R(4)}, v{R(5)}")
            a(f"v_add_f32 v{R(6)}, v{R(6)}, v{R(7)}")
            a(f"v_add_f32 v{R(0)}, v{R(0)}, v{R(2)}")
            a(f"v_add_f32 v{R(4)}, v{R(4)}, v{R(6)}")
            a(f"v_add_f32 v{36+2*c}, v{R(0)}, v{R(4)}")
            if c == 1:
                a("buffer_store_dwordx4 v[36:39], v28, s[44:47], s14 offen sc1")
        a("v_mul_f32 v44, s15, v44")
        a(f"buffer_store_dwordx4 v[40:43], v28, s[44:47], s14 offen offset:{1024 if o['lay'] else 16} sc1")
        a("s_mov_b64 exec, s[58:59]")
        a("buffer_store_dwordx4 v[44:47], v29, s[44:47], s14 offen offset:2048 sc1")
        a("s_mov_b64 exec, -1")
        self.stamp(5)
        a("s_branch L_VPOST")

    def post(self):
        a = self.a
        o = self.opt
        early = o["wd"] in ("early", "kearly")
        a("L_KPOST:")
        a(f"s_setprio {o['kpost_prio']}")
        a(f"s_cmp_lt_u32 s98, {NLIGHT}")
        a("s_cbranch_scc1 L_KPOST_LIGHT")
        a("s_cmp_ge_u32 s99, 162")
        a("s_cbranch_scc1 L_HDONE")
        self.haddr()
        a("s_mov_b32 s57, 0")
        a("s_branch L_HCHK")
        a("L_HPOLL:")
        a("s_sleep 8")
        a("buffer_load_dwordx4 v[120:123], v8, s[44:47], s14 offen sc1")
        a("buffer_load_dwordx4 v[124:127], v8, s[44:47], s15 offen sc1")
        a("L_HCHK:")
        a("s_add_u32 s57, s57, 1")
        a("s_waitcnt vmcnt(0)")
        a("v_min3_u32 v32, v121, v123, v125\nv_max3_u32 v33, v121, v123, v125")
        a("v_min_u32 v32, v32, v127\nv_max_u32 v33, v33, v127")
        a("v_cmp_ne_u32 vcc, s43, v32")
        a("v_cmp_ne_u32 s[58:59], s43, v33")
        a("s_or_b64 vcc, vcc, s[58:59]")
        a("s_cbranch_vccz L_HGOT")
        a("s_cmp_lt_u32 s57, 0x10000")
        a("s_cbranch_scc1 L_HPOLL")
        a("L_HGOT:")
        a("s_cmp_eq_u32 s10, 7")
        a("s_cbranch_scc1 L_HG2")
        self.stamp(3)
        a("L_HG2:")
        a("v_lshlrev_b32 v32, 16, v120\nv_and_b32 v33, 0xffff0000, v120\nv_lshlrev_b32 v34, 16, v122\nv_and_b32 v35, 0xffff0000, v122")
        a("v_lshlrev_b32 v36, 16, v124\nv_and_b32 v37, 0xffff0000, v124\nv_lshlrev_b32 v38, 16, v126\nv_and_b32 v39, 0xffff0000, v126")
        a("s_mov_b32 s14, 0xbfb8aa3b")
        for i in range(4):
            a(f"v_mul_f32 v{40+i}, s14, v{32+i}")
        for i in range(4):
            a(f"v_exp_f32 v{40+i}, v{40+i}")
        a("s_nop 0")
        for i in range(4):
            a(f"v_add_f32 v{40+i}, 1.0, v{40+i}")
        for i in range(4):
            a(f"v_rcp_f32 v{40+i}, v{40+i}")
        a("s_nop 0")
        for i in range(4):
            a(f"v_mul_f32 v{40+i}, v{32+i}, v{40+i}")
        a("v_cvt_pk_bf16_f32 v44, v40, v41\nv_cvt_pk_bf16_f32 v45, v42, v43")
        a("v_lshlrev_b32 v40, 16, v44\nv_and_b32 v41, 0xffff0000, v44\nv_lshlrev_b32 v42, 16, v45\nv_and_b32 v43, 0xffff0000, v45")
        for i in range(4):
            a(f"v_mul_f32 v{40+i}, v{40+i}, v{36+i}")
        a("v_cvt_pk_bf16_f32 v44, v40, v41\nv_cvt_pk_bf16_f32 v45, v42, v43")
        a(f"s_mul_i32 s14, s10, {BM_PITCH}")
        a(f"s_add_u32 s14, s14, {L_BM}")
        a("v_lshlrev_b32 v46, 3, v1")
        a("v_add_u32 v46, s14, v46")
        a("ds_write_b64 v46, v[44:45]")
        if not early:
            self.lds_wait_ge(D_CNT_VISS if o["wd"] == "late" else D_CNT_O, o["viss"] if o["wd"] == "late" else 8, 32)
            self.lds_wait_ge(D_FLAG_S1P, 1, 32)
            a("s_mov_b32 s52, s32\ns_mov_b32 s53, s33\ns_mov_b32 s54, 5308416\ns_mov_b32 s55, 0x00020000")
            a("s_mov_b32 s56, 1152")
            self.wtile_lane_offsets(56, 12, 13, 14)
            a("s_lshl_b32 s14, s12, 8")
            a("s_lshl_b32 s15, s10, 5")
            a("s_add_u32 s14, s14, s15")
            a("s_mul_i32 s14, s14, 1152")
            a("s_lshl_b32 s15, s13, 7")
            a("s_add_u32 s14, s14, s15")
            a("s_lshl_b32 s15, s10, 12")
            for u in range(4):
                a(f"s_add_u32 m0, s15, {L_W + u*1024}")
                a(f"s_add_u32 s14, s14, {8*1152}" if u > 0 else "s_nop 0")
                if not o.get("nowd"):
                    a(f"buffer_load_dwordx4 v{12 + (u & 1)}, s[52:55], s14 offen nt lds")
        a("s_waitcnt vmcnt(0) lgkmcnt(0)")
        self.lds_inc(D_CNT_W, 32)
        a("s_cmp_ge_u32 s10, 4")
        a("s_cbranch_scc1 L_HDONE")
        a("s_lshl_b32 s63, s13, 10")
        a("s_lshl_b32 s14, s12, 2")
        a("s_add_u32 s63, s63, s14")
        a(f"s_add_u32 s63, s63, {WS_F3}")
        a("s_add_u32 s12, s12, 16")
        a("s_lshl_b32 s13, s13, 6")
        a("s_mov_b32 s15, 0")
        a("s_mov_b32 s14, s10")
        if early:
            self.tile_pre(wait=12 if o["wd"] == "early" else 8, ksoff=lambda ks: (ks >> 1) * 12288 + (ks & 1) * 4096)
        else:
            self.tile_pre(wait=8)
        self.stamp(1)
        self.tile_post()
        self.stamp(7)
        self.lds_inc(D_CNT_HA, 32, rtn=True)
        a("s_cmp_eq_u32 s56, 3")
        a("s_cbranch_scc0 L_HDONE")
        a("v_mov_b32 v32, s43")
        a("v_lshlrev_b32 v33, 7, v1")
        a("s_mov_b64 exec, 0xff")
        a("buffer_store_dword v32, v33, s[44:47], s63 offen sc1")
        a("s_mov_b64 exec, -1")
        a("L_HDONE:")
        a("s_cmp_eq_u32 s10, 7")
        a("s_cbranch_scc0 L_FIN")
        a(f"s_sub_u32 s11, s98, {NLIGHT + o['red0']}")
        a("s_cmp_ge_u32 s11, 144")
        a("s_cbranch_scc1 L_FIN")
        a("s_setprio 0")
        self.reducer()
        a("s_branch L_FIN")

        a("L_KPOST_LIGHT:")
        if o["dry1"]:
            a("s_mov_b32 s74, 0")
        a("s_and_b32 s12, s98, 15")
        a("s_lshr_b32 s13, s98, 4")
        self.lds_wait_ge(D_CNT_VISS if o["wo"] == "viss" else D_CNT_O, 8, 32)
        a("s_mov_b32 s52, s24\ns_mov_b32 s53, s25\ns_mov_b32 s54, 4718592\ns_mov_b32 s55, 0x00020000")
        a("s_mov_b32 s56, 1152")
        self.wtile_lane_offsets(56, 12, 13, 14)
        a("s_lshl_b32 s14, s12, 8")
        a("s_lshl_b32 s15, s10, 5")
        a("s_add_u32 s14, s14, s15")
        a("s_mul_i32 s14, s14, 1152")
        a("s_mul_i32 s15, s13, 384")
        a("s_add_u32 s14, s14, s15")
        a("s_lshl_b32 s15, s10, 12")
        for u in range(4):
            for st in range(3):
                a(f"s_add_u32 m0, s15, {L_W + st*32768 + u*1024}")
                a(f"s_add_u32 s56, s14, {st*128}")
                if not o.get("nowo"):
                    a(f"buffer_load_dwordx4 v{12 + (u & 1)}, s[52:55], s56 offen nt lds")
            a(f"s_add_u32 s14, s14, {8*1152}")
        a("s_waitcnt vmcnt(0)")
        self.lds_inc(D_CNT_W, 32)
        a("L_VPOST_LIGHT:")
        a("s_cmp_ge_u32 s3, 12")
        a("s_cbranch_scc1 L_LPRE_D")
        a("s_and_b32 s12, s98, 15")
        a("s_lshr_b32 s13, s98, 4")
        a("s_mul_i32 s13, s13, 192")
        a("s_lshr_b32 s15, s3, 2")
        a("s_lshl_b32 s14, s15, 6")
        a("s_add_u32 s13, s13, s14")
        a("s_lshl_b32 s15, s15, 15")
        a("s_and_b32 s14, s3, 3")
        self.tile_pre(wait=8)
        a("L_LPRE_D:")
        a("s_lshr_b32 s4, s3, 1")
        a("s_and_b32 s5, s3, 1")
        a("s_and_b32 s12, s98, 15")
        a("s_lshl_b32 s14, s4, 5")
        a("s_add_u32 s14, s14, s12")
        a("s_lshl_b32 s14, s14, 12")
        a(f"s_add_u32 s14, s14, {WS_O}")
        a("s_lshl_b32 s15, s5, 9" if o["lay"] else "s_lshl_b32 s15, s5, 10")
        a("s_add_u32 s6, s14, s15")
        a("s_add_u32 s7, s6, 0x10000")
        a("s_lshl_b32 s15, s5, 4")
        a("s_add_u32 s8, s14, s15")
        a("s_add_u32 s8, s8, 2048")
        a("s_add_u32 s9, s8, 0x10000")
        a("s_lshl_b32 s60, s12, 10")
        a("s_lshl_b32 s14, s4, 7")
        a("s_add_u32 s60, s60, s14")
        if o["fo3"]:
            a("s_lshr_b32 s14, s98, 4\ns_lshl_b32 s14, s14, 14\ns_add_u32 s60, s60, s14")
        a(f"s_add_u32 s60, s60, {WS_FO3 if o['fo3'] else WS_FO}")
        a("s_add_u32 s66, s40, s60\ns_addc_u32 s67, s41, 0")
        a("v_lshlrev_b32 v5, 7, v1")
        if o["f2r"]:
            a("s_lshr_b32 s63, s98, 4\ns_mul_i32 s63, s63, 6144")
        else:
            a("s_lshr_b32 s63, s98, 4\ns_lshl_b32 s63, s63, 10")
        a("s_lshl_b32 s14, s12, 2")
        a("s_add_u32 s63, s63, s14")
        a(f"s_add_u32 s63, s63, {WS_F2R if o['f2r'] else WS_F2}")
        a(f"s_mul_i32 s14, s4, {BM_PITCH}")
        a("s_lshl_b32 s15, s5, 8")
        a("s_add_u32 s14, s14, s15")
        a(f"s_add_u32 s14, s14, {L_BM}")
        if o["lay"]:
            a("v_and_b32 v4, 31, v1\nv_lshrrev_b32 v3, 5, v1")
            a("v_lshlrev_b32 v11, 3, v4\nv_lshlrev_b32 v10, 2, v3\nv_add_u32 v11, v11, v10")
            a("v_lshlrev_b32 v4, 4, v4\nv_lshlrev_b32 v3, 10, v3\nv_add_u32 v4, v4, v3")
        else:
            a("v_lshlrev_b32 v11, 2, v1")
            a("v_mov_b32 v4, v8")
        a("v_add_u32 v11, s14, v11")
        a("v_mov_b32 v10, 0")
        a("v_mov_b32 v9, s43")
        a("s_mov_b32 s68, s43\ns_mov_b32 s69, s43")
        a("s_mov_b32 s57, 0")
        if o["dry1"]:
            if o["f2r"]: a("s_mov_b32 s76, -1\ns_mov_b32 s77, 0xffff")
            else: a("s_mov_b64 s[76:77], 0xff")
        if o["pp"]:
            n = o["pp"] + 1
            regs = [60, 70, 72, 74][:n]
            for r in regs: a(f"s_mov_b64 s[{r}:{r+1}], 0")
            a("s_waitcnt lgkmcnt(0)")
            for r in regs[:-1]:
                a(f"s_load_dwordx2 s[{r}:{r+1}], s[66:67], 0 glc")
                a(f"s_sleep {max(1, 12 // n)}")
            a("L_OPRE:")
            for i in range(n):
                a(f"s_load_dwordx2 s[{regs[(i-1) % n]}:{regs[(i-1) % n]+1}], s[66:67], 0 glc")
                a(f"s_waitcnt lgkmcnt({n-1})")
                a(f"s_cmp_eq_u64 s[{regs[i]}:{regs[i]+1}], s[68:69]")
                a("s_cbranch_scc1 L_OPRE_D")
            a("s_add_u32 s57, s57, 1")
            a("s_cmp_lt_u32 s57, 0x8000")
            a("s_cbranch_scc1 L_OPRE")
        else:
            a("L_OPRE:")
            a("s_load_dwordx2 s[60:61], s[66:67], 0 glc")
            a("s_add_u32 s57, s57, 1")
            a("s_waitcnt lgkmcnt(0)")
            a("s_cmp_eq_u64 s[60:61], s[68:69]")
            a("s_cbranch_scc1 L_OPRE_D")
            a("s_cmp_lt_u32 s57, 0x10000")
            a("s_cbranch_scc1 L_OPRE")
        a("L_OPRE_D:")
        self.stamp(3)
        a("s_mov_b32 s57, 0")
        def oloads(st0, st1, o0, o1):
            a(f"buffer_load_dwordx4 v[{st0}:{st0+3}], v10, s[44:47], s8 offen sc1")
            a(f"buffer_load_dwordx4 v[{st1}:{st1+3}], v10, s[44:47], s9 offen sc1")
            a(f"buffer_load_dwordx4 v[{o0}:{o0+3}], v4, s[44:47], s6 offen sc1")
            a(f"buffer_load_dwordx4 v[{o1}:{o1+3}], v4, s[44:47], s7 offen sc1")
        oloads(32, 36, 24, 28)
        if o["ab1"]:
            a(f"s_sleep {o['ab1']}")
            oloads(104, 108, 96, 100)
        a("L_OPOLL:")
        a("s_waitcnt vmcnt(6)" if o["ab1"] else "s_waitcnt vmcnt(2)")
        a("v_max_f32 v40, v32, v36")
        a("v_sub_f32 v42, v32, v40")
        a("v_sub_f32 v43, v36, v40")
        a("v_exp_f32 v42, v42")
        a("v_exp_f32 v43, v43")
        a("v_min3_u32 v44, v33, v35, v37\nv_max3_u32 v45, v33, v35, v37")
        a("v_mul_f32 v40, v42, v34")
        a("v_fma_f32 v40, v43, v38, v40")
        a("v_rcp_f32 v40, v40")
        a("v_min_u32 v44, v44, v39\nv_max_u32 v45, v45, v39")
        a("v_mul_f32 v42, v42, v40")
        a("v_mul_f32 v43, v43, v40")
        a("s_waitcnt vmcnt(4)" if o["ab1"] else "s_waitcnt vmcnt(0)")
        a("v_min3_u32 v44, v44, v25, v27\nv_max3_u32 v45, v45, v25, v27")
        a("v_min3_u32 v44, v44, v29, v31\nv_max3_u32 v45, v45, v29, v31")
        a("v_mul_f32 v24, v24, v42")
        a("v_mul_f32 v26, v26, v42")
        a("v_cmp_ne_u32 vcc, s43, v44")
        a("v_cmp_ne_u32 s[58:59], s43, v45")
        a("v_fma_f32 v24, v28, v43, v24")
        a("v_fma_f32 v26, v30, v43, v26")
        a("s_or_b64 vcc, vcc, s[58:59]")
        a("v_cvt_pk_bf16_f32 v24, v24, v26")
        a("s_cbranch_vccz L_OGOT")
        a("s_add_u32 s57, s57, 1")
        a("s_cmp_ge_u32 s57, 0x10000")
        a("s_cbranch_scc1 L_OGOT")
        if o["ab1"]:
            a("s_waitcnt vmcnt(0)")
            for r in range(8):
                a(f"v_mov_b32 v{32+r}, v{104+r}")
            for r in range(8):
                a(f"v_mov_b32 v{24+r}, v{96+r}")
            oloads(104, 108, 96, 100)
        else:
            oloads(32, 36, 24, 28)
        a("s_branch L_OPOLL")
        a("L_OGOT:")
        a("ds_write_b32 v11, v24")
        self.stamp(6)
        if self.stamps:
            a("v_writelane_b32 v2, s57, 1")
        a("s_waitcnt lgkmcnt(0)")
        if o["dry1"]:
            a("s_cbranch_execz L_LNOBAR")
        a("s_barrier")
        a("L_LNOBAR:")
        if o.get("fst"): self.stamp(5)
        a("s_cmp_ge_u32 s3, 12")
        a("s_cbranch_scc1 L_LFLAG")
        self.tile_post(fst=o.get("fst"))
        self.stamp(7)
        EX = "L_LEXIT" if o["dry1"] else "L_FIN"
        a(f"s_branch {EX}")
        a("L_LFLAG:")
        a("s_cmp_eq_u32 s3, 12")
        a(f"s_cbranch_scc0 {EX}")
        if o["dry1"]:
            a("s_mov_b64 exec, s[76:77]")
        elif o["f2r"]:
            a("s_mov_b32 s58, -1\ns_mov_b32 s59, 0xffff")
            a("s_mov_b64 exec, s[58:59]")
        else:
            a("s_mov_b64 exec, 0xff")
        a("buffer_store_dword v9, v5, s[44:47], s63 offen sc1")
        a("s_mov_b64 exec, -1")
        if o["dry1"]:
            a("L_LEXIT:")
            a("s_cmp_eq_u32 s74, 0")
            a("s_cbranch_scc1 L_FIN")
            a("s_mov_b32 s74, 0")
            a("s_mov_b64 exec, -1")
            a("s_branch L_VPOST_LIGHT")
        else:
            a("s_branch L_FIN")
        a("L_VPOST:")
        a(f"s_cmp_lt_u32 s98, {NLIGHT}")
        if o["dry1"]:
            a("s_cbranch_scc0 L_FIN")
            a("s_mov_b32 s74, 1")
            a("s_mov_b64 s[64:65], 0\ns_mov_b64 s[76:77], 0")
            a("s_mov_b32 s6, 0\ns_mov_b32 s7, 0\ns_mov_b32 s8, 0\ns_mov_b32 s9, 0\ns_mov_b32 s62, 0\ns_mov_b32 s63, 0")
            a("s_mov_b64 exec, 0")
            a("s_branch L_OPRE_D")
        else:
            a("s_cbranch_scc1 L_VPOST_LIGHT")
            a("s_branch L_FIN")

    def tile_pre(self, wait=8, ksoff=lambda ks: ks * 4096):
        a = self.a
        self.tr_addr(28, base_sgpr=15)
        a("s_lshl_b32 s56, s14, 5")
        a("v_xor_b32 v28, s56, v28")
        a("v_and_b32 v12, 7, v6")
        a(f"v_mul_u32_u24 v13, {PART_PITCH}, v12")
        a(f"v_mul_u32_u24 v12, {BM_PITCH}, v12")
        a("v_lshlrev_b32 v30, 4, v7")
        a("v_add_u32 v12, v12, v30")
        a(f"v_add_u32 v12, {L_BM}, v12")
        a("v_lshlrev_b32 v30, 4, v7" if self.opt["lay"] else "v_lshlrev_b32 v30, 5, v7")
        a("v_add_u32 v13, v13, v30")
        a(f"s_mul_i32 s62, s12, {8*PART_PITCH}")
        a("s_lshl_b32 s57, s14, 4")
        a("s_add_u32 s57, s57, s13")
        a("s_lshl_b32 s57, s57, 3")
        a("s_add_u32 s62, s62, s57")
        a(f"s_add_u32 s62, s62, {WS_PART}")
        self.lds_wait_ge(D_CNT_W, wait, 30)
        for ks in range(8):
            a(f"ds_read_b64_tr_b16 v[{48+4*ks}:{49+4*ks}], v28 offset:{ksoff(ks)}")
            a(f"ds_read_b64_tr_b16 v[{50+4*ks}:{51+4*ks}], v28 offset:{ksoff(ks)+512}")
            if ks == 3: a("s_waitcnt lgkmcnt(4)")
        a("v_mov_b32 v113, s43\nv_mov_b32 v115, s43\nv_mov_b32 v117, s43\nv_mov_b32 v119, s43")
        a("s_mov_b32 s64, 0x00ff00ff\ns_mov_b32 s65, 0x00ff00ff")

    def tile_post(self, fst=False):
        a = self.a
        if self.opt["bmask"]:
            a("s_mov_b64 exec, s[64:65]")
        for ks in range(8):
            if ks == 4 and not self.opt["bmask"]: a("s_waitcnt vmcnt(0)")
            if self.opt.get("bx") and ks >= self.opt["bx"]:
                a("s_nop 0"); continue
            a(f"ds_read_b128 v[{80+4*ks}:{83+4*ks}], v12 offset:{ks*64}")
        if self.opt["bmask"]:
            a("s_mov_b64 exec, -1")
        for ks in range(8):
            nb = self.opt.get("bx") or 8
            a(f"s_waitcnt lgkmcnt({max(nb-1-ks, 0)})")
            acc = 20 if ks % 2 == 0 else 24
            c = "0" if ks < 2 else f"v[{acc}:{acc+3}]"
            a(f"v_mfma_f32_16x16x32_bf16 v[{acc}:{acc+3}], v[{48+4*ks}:{51+4*ks}], v[{80+4*ks}:{83+4*ks}], {c}")
        if fst: self.stamp(4)
        a("s_mov_b64 exec, s[64:65]")
        a("s_nop 6")
        a("v_add_f32 v112, v20, v24\nv_add_f32 v114, v21, v25\nv_add_f32 v116, v22, v26\nv_add_f32 v118, v23, v27")
        a("buffer_store_dwordx4 v[112:115], v13, s[44:47], s62 offen sc1")
        a(f"buffer_store_dwordx4 v[116:119], v13, s[44:47], s62 offen offset:{64 if self.opt['lay'] else 16} sc1")
        a("s_mov_b64 exec, -1")

    def chk16(self, base, dst):
        a = self.a
        for i in range(8):
            a(f"s_xor_b64 s[{base+2*i}:{base+2*i+1}], s[{base+2*i}:{base+2*i+1}], s[70:71]")
        for i in range(4):
            a(f"s_or_b64 s[{base+4*i}:{base+4*i+1}], s[{base+4*i}:{base+4*i+1}], s[{base+4*i+2}:{base+4*i+3}]")
        a(f"s_or_b64 s[{base}:{base+1}], s[{base}:{base+1}], s[{base+4}:{base+5}]")
        a(f"s_or_b64 s[{base+8}:{base+9}], s[{base+8}:{base+9}], s[{base+12}:{base+13}]")
        a(f"s_or_b64 s[{base}:{base+1}], s[{base}:{base+1}], s[{base+8}:{base+9}]")

    def hloads(self):
        a = self.a
        for u in range(4, 8):
            a(f"buffer_load_dwordx4 v[{48+4*u}:{51+4*u}], v10, s[44:47], s{60+u} offen sc1")
        a("s_mov_b32 s58, -1\ns_mov_b32 s59, 0")
        a("s_mov_b64 exec, s[58:59]")
        a("buffer_load_dwordx4 v[80:83], v10, s[44:47], s68 offen sc1")
        a("s_mov_b64 exec, -1")

    def reducer(self):
        a = self.a
        o = self.opt
        a("s_mul_i32 s12, s11, 3641")
        a("s_lshr_b32 s12, s12, 16")
        a("s_mul_i32 s13, s12, 18")
        a("s_sub_u32 s13, s11, s13")
        a("v_lshlrev_b32 v10, 1, v1")
        a("s_mul_i32 s14, s12, 1152")
        a("v_add_u32 v11, s14, v10")
        for i in range(9):
            a(f"global_load_ushort v{24+i}, v11, s[16:17] offset:{128*i}")
            a(f"global_load_ushort v{36+i}, v10, s[34:35] offset:{128*i}")
        a("s_lshr_b32 s14, s13, 1")
        a("s_lshl_b32 s14, s14, 10")
        a("s_lshl_b32 s15, s12, 7")
        a("s_add_u32 s14, s14, s15")
        a(f"s_add_u32 s14, s14, {WS_F3}")
        a("s_add_u32 s90, s40, s14\ns_addc_u32 s91, s41, 0")
        if o["f2r"]:
            a("s_lshl_b32 s14, s13, 10")
        else:
            a("s_mul_i32 s14, s13, 43")
            a("s_lshr_b32 s14, s14, 8")
            a("s_lshl_b32 s14, s14, 10")
        a("s_add_u32 s14, s14, s15")
        a(f"s_add_u32 s14, s14, {WS_F2R if o['f2r'] else WS_F2}")
        a("s_add_u32 s92, s40, s14\ns_addc_u32 s93, s41, 0")
        a("s_mov_b32 s70, s43\ns_mov_b32 s71, s43")
        a("s_waitcnt vmcnt(0)")
        for i in range(9):
            a(f"v_lshlrev_b32 v{24+i}, 16, v{24+i}")
            a(f"v_lshlrev_b32 v{36+i}, 16, v{36+i}")
        for i in range(9):
            a(f"v_mul_f32 v{24+i}, v{24+i}, v{36+i}")
        for i in range(0, 8, 2):
            a(f"v_cvt_pk_bf16_f32 v{36+i}, v{24+i}, v{25+i}")
        a("v_cvt_pk_bf16_f32 v44, v32, v32")
        a("v_mov_b32 v46, 0")
        for i in range(0, 8, 2):
            a(f"v_lshlrev_b32 v24, 16, v{36+i}\nv_and_b32 v25, 0xffff0000, v{36+i}")
            a("v_add_f32 v46, v46, v24\nv_add_f32 v46, v46, v25")
        a("v_lshlrev_b32 v24, 16, v44\nv_add_f32 v46, v46, v24")
        self.row_reduce("v_add_f32", 46)
        a("s_nop 1")
        a("v_readlane_b32 s14, v46, 0\nv_readlane_b32 s15, v46, 16\nv_readlane_b32 s56, v46, 32\nv_readlane_b32 s57, v46, 48")
        a("s_nop 1")
        a("v_mov_b32 v46, s14\nv_add_f32 v46, s15, v46\nv_add_f32 v46, s56, v46\nv_add_f32 v46, s57, v46")
        a("v_cvt_pk_bf16_f32 v46, v46, v46")
        a("v_lshlrev_b32 v46, 16, v46")
        a("v_mul_f32 v46, 0xbfb8aa3b, v46")
        a("v_exp_f32 v46, v46")
        a("s_nop 0")
        a("v_add_f32 v46, 1.0, v46")
        a("v_rcp_f32 v46, v46")
        a("s_nop 0")
        a("v_cvt_pk_bf16_f32 v46, v46, v46")
        a("v_lshlrev_b32 v46, 16, v46")
        a("v_sub_f32 v47, 1.0, v46")
        a("v_cvt_pk_bf16_f32 v47, v47, v47")
        a("v_lshlrev_b32 v47, 16, v47")
        a(f"v_mul_u32_u24 v10, {8*PART_PITCH}, v7")
        a("v_lshlrev_b32 v11, 4, v6")
        a("v_add_u32 v10, v10, v11")
        a(f"s_mul_i32 s14, s12, {PART_PITCH}")
        a("s_lshl_b32 s15, s13, 8")
        a("s_add_u32 s14, s14, s15")
        a(f"s_add_u32 s14, s14, {WS_PART}")
        for u in range(9):
            a(f"s_add_u32 s{60+u}, s14, {u*4*8*PART_PITCH}")
        a("v_mov_b32 v80, 0\nv_mov_b32 v81, s43\nv_mov_b32 v82, 0\nv_mov_b32 v83, s43")
        a("s_mul_i32 s14, s12, 1152")
        a("s_lshl_b32 s15, s13, 6")
        a("s_add_u32 s14, s14, s15")
        if o["lay"]:
            a("v_lshrrev_b32 v11, 3, v6\nv_lshlrev_b32 v11, 5, v11")
            a("v_and_b32 v24, 3, v6\nv_lshlrev_b32 v24, 3, v24\nv_add_u32 v11, v11, v24")
            a("v_bfe_u32 v24, v6, 2, 1\nv_lshlrev_b32 v24, 2, v24\nv_add_u32 v11, v11, v24")
        else:
            a("v_lshlrev_b32 v11, 2, v6")
        a("v_add_u32 v11, s14, v11")
        a("s_mov_b32 s52, s36\ns_mov_b32 s53, s37\ns_mov_b32 s54, 9216\ns_mov_b32 s55, 0x00020000")
        a("s_setprio 3")
        a("s_mov_b32 s57, 0\ns_mov_b32 s15, 0")
        a("L_RF:")
        a("s_load_dwordx16 s[16:31], s[92:93], 0 glc")
        a("s_cmp_lg_u32 s15, 0")
        a("s_cbranch_scc1 L_RF_W")
        a("s_load_dwordx16 s[72:87], s[90:91], 0 glc")
        a("s_load_dwordx2 s[88:89], s[90:91], 64 glc")
        a("s_waitcnt lgkmcnt(0)")
        a("s_xor_b64 s[88:89], s[88:89], s[70:71]")
        self.chk16(72, None)
        a("s_or_b64 s[72:73], s[72:73], s[88:89]")
        a("s_cbranch_scc1 L_RF_N")
        self.hloads()
        a("s_mov_b32 s15, 1")
        self.stamp(3)
        if o["pp2"]:
            a("s_waitcnt lgkmcnt(0)")
            self.chk16(16, None)
            a("s_cbranch_scc0 L_RF_D")
            a("s_load_dwordx16 s[16:31], s[92:93], 0 glc")
            a(f"s_sleep {o['pp2']}")
            a("L_RF_P:")
            a("s_load_dwordx16 s[72:87], s[92:93], 0 glc")
            a("s_waitcnt lgkmcnt(1)")
            self.chk16(16, None)
            a("s_cbranch_scc0 L_RF_D")
            a("s_load_dwordx16 s[16:31], s[92:93], 0 glc")
            a("s_waitcnt lgkmcnt(1)")
            self.chk16(72, None)
            a("s_cbranch_scc0 L_RF_D")
            a("s_add_u32 s57, s57, 1")
            a("s_cmp_lt_u32 s57, 0x8000")
            a("s_cbranch_scc1 L_RF_P")
            a("s_branch L_RF_D")
        a("L_RF_W:")
        a("s_waitcnt lgkmcnt(0)")
        self.chk16(16, None)
        a("s_cbranch_scc0 L_RF_D")
        a("L_RF_N:")
        a("s_add_u32 s57, s57, 1")
        a("s_cmp_lt_u32 s57, 0x10000")
        a("s_cbranch_scc1 L_RF")
        a("L_RF_D:")
        self.stamp(5)
        a("s_setprio 3")
        a("s_mov_b32 s57, 0")
        a("s_cmp_lg_u32 s15, 0")
        a("s_cbranch_scc1 L_RP2")
        a("L_RPOLL:")
        self.hloads()
        a("L_RP2:")
        for u in range(4):
            a(f"buffer_load_dwordx4 v[{48+4*u}:{51+4*u}], v10, s[44:47], s{60+u} offen sc1")
        if o["ab"]:
            a(f"s_sleep {o['ab']}")
            for u in range(4):
                a(f"buffer_load_dwordx4 v[{84+4*u}:{87+4*u}], v10, s[44:47], s{60+u} offen sc1")
            a("s_waitcnt vmcnt(8)")
        else:
            a("s_waitcnt vmcnt(4)")
        a("v_min3_u32 v24, v65, v67, v69\nv_max3_u32 v25, v65, v67, v69")
        a("v_min3_u32 v24, v24, v71, v73\nv_max3_u32 v25, v25, v71, v73")
        a("v_min3_u32 v24, v24, v75, v77\nv_max3_u32 v25, v25, v75, v77")
        a("v_min3_u32 v24, v24, v79, v81\nv_max3_u32 v25, v25, v79, v81")
        a("v_min_u32 v24, v24, v83\nv_max_u32 v25, v25, v83")
        a("v_add_f32 v28, v64, v68\nv_add_f32 v29, v66, v70")
        a("v_cmp_ne_u32 vcc, s43, v24")
        a("v_cmp_ne_u32 s[58:59], s43, v25")
        a("v_add_f32 v32, v72, v76\nv_add_f32 v33, v74, v78")
        a("s_or_b64 vcc, vcc, s[58:59]")
        a("v_add_f32 v28, v28, v32\nv_add_f32 v29, v29, v33")
        a("s_cbranch_vccz L_RHOK")
        a("s_add_u32 s57, s57, 1")
        a("s_waitcnt vmcnt(0)")
        a("s_cmp_lt_u32 s57, 0x10000")
        a("s_cbranch_scc1 L_RPOLL")
        a("L_RHOK:")
        a("v_add_f32 v28, v28, v80\nv_add_f32 v29, v29, v82")
        for swap in ("v_permlane32_swap_b32", "v_permlane16_swap_b32"):
            a("v_mov_b32 v30, v28\nv_mov_b32 v31, v29")
            a("s_nop 1")
            a(f"{swap} v28, v30\n{swap} v29, v31")
            a("s_nop 1")
            a("v_add_f32 v28, v28, v30\nv_add_f32 v29, v29, v31")
        a("v_cvt_pk_bf16_f32 v31, v28, v29")
        a("v_lshlrev_b32 v28, 16, v31\nv_and_b32 v29, 0xffff0000, v31")
        a("v_mul_f32 v28, v47, v28\nv_mul_f32 v29, v47, v29")
        a("v_cvt_pk_bf16_f32 v31, v28, v29")
        a("v_lshlrev_b32 v28, 16, v31\nv_and_b32 v29, 0xffff0000, v31")
        a("L_RCHK:")
        a("s_waitcnt vmcnt(4)" if o["ab"] else "s_waitcnt vmcnt(0)")
        a("v_min3_u32 v24, v49, v51, v53\nv_max3_u32 v25, v49, v51, v53")
        a("v_min3_u32 v24, v24, v55, v57\nv_max3_u32 v25, v25, v55, v57")
        a("v_min3_u32 v24, v24, v59, v61\nv_max3_u32 v25, v25, v59, v61")
        a("v_min_u32 v24, v24, v63\nv_max_u32 v25, v25, v63")
        a("v_add_f32 v26, v48, v52\nv_add_f32 v27, v50, v54")
        a("v_cmp_ne_u32 vcc, s43, v24")
        a("v_cmp_ne_u32 s[58:59], s43, v25")
        a("v_add_f32 v30, v56, v60\nv_add_f32 v31, v58, v62")
        a("s_or_b64 vcc, vcc, s[58:59]")
        a("v_add_f32 v26, v26, v30\nv_add_f32 v27, v27, v31")
        a("s_cbranch_vccz L_RGOT")
        a("s_add_u32 s57, s57, 1")
        a("s_cmp_ge_u32 s57, 0x10000")
        a("s_cbranch_scc1 L_RGOT")
        if o["ab"]:
            a("s_waitcnt vmcnt(0)")
            for r in range(16):
                a(f"v_mov_b32 v{48+r}, v{84+r}")
            for u in range(4):
                a(f"buffer_load_dwordx4 v[{84+4*u}:{87+4*u}], v10, s[44:47], s{60+u} offen sc1")
        else:
            for u in range(4):
                a(f"buffer_load_dwordx4 v[{48+4*u}:{51+4*u}], v10, s[44:47], s{60+u} offen sc1")
        a("s_branch L_RCHK")
        a("L_RGOT:")
        self.stamp(6)
        if self.stamps:
            a("v_writelane_b32 v2, s57, 1")
        for swap in ("v_permlane32_swap_b32", "v_permlane16_swap_b32"):
            a("v_mov_b32 v30, v26\nv_mov_b32 v31, v27")
            a("s_nop 1")
            a(f"{swap} v26, v30\n{swap} v27, v31")
            a("s_nop 1")
            a("v_add_f32 v26, v26, v30\nv_add_f32 v27, v27, v31")
        a("v_cvt_pk_bf16_f32 v30, v26, v27")
        a("v_lshlrev_b32 v26, 16, v30\nv_and_b32 v27, 0xffff0000, v30")
        a("v_mul_f32 v26, v46, v26\nv_mul_f32 v27, v46, v27")
        a("v_cvt_pk_bf16_f32 v30, v26, v27")
        a("v_lshlrev_b32 v26, 16, v30\nv_and_b32 v27, 0xffff0000, v30")
        a("v_add_f32 v26, v26, v28\nv_add_f32 v27, v27, v29")
        a("v_cvt_pk_bf16_f32 v30, v26, v27")
        a("s_mov_b64 exec, 0xffff")
        a("buffer_store_dword v30, v11, s[52:55], 0 offen")
        a("s_cmp_eq_u32 s11, 0")
        a("s_cbranch_scc0 L_RDONE")
        a("s_mov_b64 exec, 1")
        a("v_mov_b32 v11, s43")
        a("buffer_store_dword v11, off, s[44:47], 0 sc1")
        a("L_RDONE:")
        a("s_mov_b64 exec, -1")
        self.stamp(7)

    def epilogue(self):
        a = self.a
        a("L_FIN:")
        if self.stamps:
            a("s_lshl_b32 s14, s2, 4")
            a("s_add_u32 s14, s14, s3")
            a("s_lshl_b32 s14, s14, 6")
            a(f"s_add_u32 s14, s14, {STAMP_OFF}")
            a("s_add_u32 s40, s40, s14\ns_addc_u32 s41, s41, 0")
            a("v_mov_b32 v3, 0")
            a("v_and_b32 v4, 63, v0")
            a("v_lshlrev_b32 v4, 3, v4")
            a("s_mov_b64 exec, 0xff")
            a("global_store_dwordx2 v4, v[2:3], s[40:41]")
        a("L_END:")
        a("s_endpgm")

    def build(self):
        self.prologue()
        self.vwave_first = True
        self.vwave()
        self.kwave()
        self.post()
        self.epilogue()
        return wrap(self.a.text(), NWG, 1024, LDS_ALLOC, self.opt["vgpr"], sgpr=102)

if __name__ == "__main__":
    stamps = "--stamps" in sys.argv
    opt = {}
    outs = []
    for x in sys.argv[1:]:
        if x.startswith("--"):
            if "=" in x:
                k, v = x[2:].split("=")
                if v in ("True", "False"): v = (v == "True")
                elif v.lstrip("-").isdigit(): v = int(v)
                opt[k] = v
        else:
            outs.append(x)
    txt = Gen(stamps=stamps, **opt).build()
    open(outs[0] if outs else "k.s", "w").write(txt)
```

```python
import sys
from asmlib import *
import rolemap

NWG = 256
NLIGHT = 48
WD0 = 46
L_W = 0
L_KSCR = 98304
L_SMALL = 131072
L_S1SLOT = 73728
L_OSLOT = L_KSCR
L_Q = L_SMALL + 4096
L_P = L_Q + 512
L_BM = L_P + 2048
BM_PITCH = 528
LDS_BYTES = L_BM + 8 * BM_PITCH
LDS_ALLOC = 143360
D_L = 768
D_CNT_S1 = 776
D_FLAG_Q = 777
D_CNT_M = 778
D_CNT_O = 779
D_CNT_W = 780
D_CNT_HA = 781
D_CNT_VISS = 782
D_FLAG_S1P = 783
D_FLAG_P = 784
D_CNT_KISS = 792
D_CNT_VL = 793
D_ZERO = 800
D_M = 1022
D_LP = 864
def sm(d): return L_SMALL + 4 * d
WS_EPOCH = 0
WS_FO = 0x4000
WS_F2 = 0x8000
WS_F3 = 0x9000
WS_S1 = 0x10000
WS_FO3 = 0x80000
WS_F2R = 0x90000
S1_PITCH = 3328 * 16
WS_O = 0x100000
WS_PART = 0x200000
PART_PITCH = 576 * 8
WS_BYTES = 0x400000
STAMP_OFF = 0x10000000
SCALE_LOG2E = 0.08838834764831845 * 1.4426950408889634

import struct
def f32bits(x): return struct.unpack("<I", struct.pack("<f", x))[0]

class Gen:
    def __init__(self, stamps=False, **opt):
        self.a = Asm()
        self.stamps = stamps
        self.opt = dict(wd="late", gate="all", kiss=True, vgpr=128, red0=0, ofl="cnto", kpost_prio=3, plan="S", viss=8, wo="viss", ngate=6, qf="after", win=12, win3=4, swap=1, cpf=2, ab=0, ab1=0, lay=1, c3u=0, c3w=0, lal=0, bmask=0, numa=0, npol=0, pp=0, pp2=0, fo3=0, f2r=0, dry1=0, tlb=0, osc="")
        self.opt.update(opt)

    def stamp(self, idx):
        if self.stamps:
            self.a("s_memrealtime s[96:97]")
            self.a("s_waitcnt lgkmcnt(0)")
            self.a(f"v_writelane_b32 v2, s96, {idx}")

    def lds_wait_ge(self, dword, value, vt, sleep=1):
        a = self.a
        lab = a.label("L_lw"); done = a.label("L_lwd")
        a(f"v_mov_b32 v{vt+1}, {sm(dword)}")
        a("s_mov_b32 s57, 0")
        a(f"{lab}:")
        a(f"ds_read_b32 v{vt}, v{vt+1}")
        a("s_waitcnt lgkmcnt(0)")
        a(f"v_readfirstlane_b32 s56, v{vt}")
        a("s_add_u32 s57, s57, 1")
        a(f"s_cmp_ge_u32 s56, {value}")
        a(f"s_cbranch_scc1 {done}")
        a(f"s_sleep {sleep}")
        a("s_cmp_lt_u32 s57, 0x40000")
        a(f"s_cbranch_scc1 {lab}")
        a(f"{done}:")

    def lds_inc(self, dword, vt, rtn=False):
        a = self.a
        a("s_mov_b64 s[58:59], exec")
        a("s_mov_b64 exec, 1")
        a(f"v_mov_b32 v{vt}, {sm(dword)}")
        a(f"v_mov_b32 v{vt+1}, 1")
        if rtn:
            a(f"ds_add_rtn_u32 v{vt+2}, v{vt}, v{vt+1}")
            a("s_waitcnt lgkmcnt(0)")
            a(f"v_readfirstlane_b32 s56, v{vt+2}")
        else:
            a(f"ds_add_u32 v{vt}, v{vt+1}")
        a("s_mov_b64 exec, s[58:59]")

    def flag_store(self, soff, vt):
        a = self.a
        a(f"v_mov_b32 v{vt}, s43")
        a("s_mov_b64 exec, 1")
        a(f"buffer_store_dword v{vt}, off, s[44:47], s{soff} sc1")
        a("s_mov_b64 exec, -1")

    def row_reduce(self, op, v):
        a = self.a
        for ctl in ("quad_perm:[1,0,3,2]", "quad_perm:[2,3,0,1]", "row_half_mirror", "row_mirror"):
            a("s_nop 1")
            a(f"{op}_dpp v{v}, v{v}, v{v} {ctl} row_mask:0xf bank_mask:0xf")

    def qfetch(self):
        a = self.a
        lab = a.label("L_qf")
        a(f"s_mul_i32 s14, s4, {S1_PITCH}")
        a("s_lshl_b32 s12, s5, 10")
        a("s_add_u32 s14, s14, s12")
        a("s_lshl_b32 s12, s15, 8")
        a("s_add_u32 s14, s14, s12")
        a(f"s_add_u32 s14, s14, {WS_S1}")
        a("s_add_u32 s12, s40, s14\ns_addc_u32 s13, s41, 0")
        a("s_mov_b32 s11, 0")
        a(f"{lab}:")
        a("s_load_dwordx16 s[16:31], s[12:13], 0 glc")
        a("s_load_dwordx16 s[56:71], s[12:13], 64 glc")
        a("s_load_dwordx16 s[72:87], s[12:13], 128 glc")
        a("s_load_dwordx8 s[32:39], s[12:13], 192 glc")
        a("s_load_dwordx8 s[88:95], s[12:13], 224 glc")
        a("s_add_u32 s11, s11, 1")
        a("s_cmp_ge_u32 s11, 0x8000")
        a(f"s_cbranch_scc1 {lab}_go")
        a("s_waitcnt lgkmcnt(0)")
        a("s_xor_b32 s14, s31, s43\ns_xor_b32 s100, s71, s43\ns_or_b32 s14, s14, s100")
        a("s_xor_b32 s100, s87, s43\ns_or_b32 s14, s14, s100")
        a("s_xor_b32 s100, s39, s43\ns_or_b32 s14, s14, s100")
        a("s_xor_b32 s100, s95, s43\ns_or_b32 s14, s14, s100")
        a(f"s_cbranch_scc1 {lab}")
        regs = list(range(16, 32)) + list(range(56, 72)) + list(range(72, 88)) + list(range(32, 40)) + list(range(88, 96))
        for lane, r in enumerate(regs):
            a(f"v_writelane_b32 v24, s{r}, {lane}")
        a("s_mov_b32 s100, 0xaaaaaaaa\ns_mov_b32 s101, 0xaaaaaaaa")
        a("s_nop 0")
        a("v_cmp_ne_u32 vcc, s43, v24")
        a("s_and_b64 vcc, vcc, s[100:101]")
        a(f"s_cbranch_vccnz {lab}")
        a(f"{lab}_go:")
        a("s_waitcnt lgkmcnt(0)")
        a("v_lshrrev_b32 v25, 1, v1")
        a("v_lshlrev_b32 v25, 2, v25")
        a("s_lshl_b32 s14, s15, 7")
        a(f"s_add_u32 s14, s14, {L_Q}")
        a("v_add_u32 v25, s14, v25")
        a("s_mov_b32 s100, 0x55555555\ns_mov_b32 s101, 0x55555555")
        a("s_mov_b64 exec, s[100:101]")
        a("ds_write_b32 v25, v24")
        a("s_mov_b64 exec, -1")
        a("s_load_dwordx16 s[16:31], s[0:1], 0")
        a("s_load_dwordx8 s[32:39], s[0:1], 64")
        a("s_waitcnt lgkmcnt(0)")
        self.lds_inc(D_FLAG_Q, 25)

    def prologue(self):
        a = self.a
        if self.stamps:
            a("s_memrealtime s[96:97]")
        a(f"s_cmp_ge_u32 s2, {NWG}")
        a("s_cbranch_scc1 L_END")
        a("s_load_dwordx16 s[16:31], s[0:1], 0")
        a("s_load_dwordx8 s[32:39], s[0:1], 64")
        a("s_load_dwordx2 s[40:41], s[0:1], 96")
        T = rolemap.tables(self.opt["plan"])
        a("s_and_b32 s99, s2, 7")
        a("s_lshl_b32 s99, s99, 3")
        def look(tab, dst):
            lo, hi = rolemap.pack(tab)
            a(f"s_mov_b32 s56, 0x{lo:08x}\ns_mov_b32 s57, 0x{hi:08x}")
            a("s_lshr_b64 s[56:57], s[56:57], s99")
            a(f"s_and_b32 s{dst}, s56, 0xff")
        look(T["nL"], 60); look(T["Lbase"], 61); look(T["Sbase"], 62); look(T["nD"], 63); look(T["Dbase"], 64)
        if T["use3"]:
            look(T["n3"], 66); look(T["K3base"], 67)
        a("s_lshr_b32 s65, s2, 3")
        if self.opt["lal"]:
            assert all(n == 6 for n in T["nL"])
            a("s_and_b32 s98, s2, 7")
            a("s_and_b32 s68, s65, 1\ns_lshl_b32 s68, s68, 3\ns_add_u32 s98, s98, s68")
            a("s_lshr_b32 s68, s65, 1\ns_lshl_b32 s68, s68, 4\ns_add_u32 s98, s98, s68")
        else:
            a("s_add_u32 s98, s61, s65")
        a("s_mov_b32 s99, 255")
        a("s_cmp_lt_u32 s65, s60")
        a("s_cbranch_scc1 L_ROLE")
        a("s_sub_u32 s65, s65, s60")
        if T["skip3"]:
            a("s_sub_u32 s69, s65, s66")
            a("s_add_u32 s68, s64, s69")
            a("s_cmp_lt_u32 s69, s63")
        else:
            a("s_add_u32 s68, s64, s65")
            a("s_cmp_lt_u32 s65, s63")
        a("s_cselect_b32 s99, s68, 255")
        if T["use3"]:
            a("s_add_u32 s98, s67, s65\ns_lshl_b32 s98, s98, 3")
            a(f"s_add_u32 s98, s98, {NLIGHT + 3}")
            a("s_cmp_lt_u32 s65, s66")
            a("s_cbranch_scc1 L_ROLE")
            a("s_add_u32 s68, s62, s65\ns_sub_u32 s68, s68, s66")
            a("s_mul_i32 s69, s68, 9363\ns_lshr_b32 s69, s69, 16")
            a("s_mul_i32 s70, s69, 7\ns_sub_u32 s68, s68, s70")
            a("s_lshl_b32 s98, s69, 3\ns_add_u32 s98, s98, s68")
            a("s_cmp_ge_u32 s68, 3")
            a(f"s_addc_u32 s98, s98, {NLIGHT}")
        else:
            a("s_add_u32 s98, s62, s65")
            a(f"s_add_u32 s98, s98, {NLIGHT}")
        a("L_ROLE:")
        a("v_and_b32 v1, 63, v0")
        a("v_lshrrev_b32 v9, 6, v0")
        a("v_lshlrev_b32 v3, 2, v0")
        a(f"v_add_u32 v3, {L_SMALL}, v3")
        a("v_mov_b32 v4, 0")
        a("v_mov_b32 v5, 0xff800000")
        a(f"v_cmp_le_u32 vcc, {D_M}, v0")
        a("v_readfirstlane_b32 s3, v9")
        a("s_nop 0")
        a("v_cndmask_b32 v4, v4, v5, vcc")
        if self.opt["swap"]:
            a("s_xor_b32 s3, s3, 8")
        a("ds_write_b32 v3, v4")
        if self.opt["cpf"] == 1:
            a("s_cmp_eq_u32 s3, 7")
            a("s_cbranch_scc0 L_NOCPF")
            a("s_getpc_b64 s[12:13]")
            a("L_CPFPC:")
            a(f"s_sub_u32 s12, s12, L_CPFPC-{NAME}_kernel")
            a("s_subb_u32 s13, s13, 0")
            a("v_lshlrev_b32 v10, 7, v1")
            a("global_load_dword v48, v10, s[12:13]")
            a("v_add_u32 v10, 0x2000, v10")
            a(f"v_cmp_gt_u32 vcc, L_END-{NAME}_kernel, v10")
            a("s_and_b64 exec, exec, vcc")
            a("global_load_dword v49, v10, s[12:13]")
            a("s_mov_b64 exec, -1")
            a("L_NOCPF:")
        elif self.opt["cpf"] == 2:
            a("s_cmp_eq_u32 s3, 7")
            a("s_cbranch_scc0 L_NOCPF")
            a("s_cmp_lt_u32 s2, 16")
            a("s_cbranch_scc0 L_NOCPF")
            a("s_getpc_b64 s[12:13]")
            a("L_CPFPC:")
            a(f"s_sub_u32 s12, s12, L_CPFPC-{NAME}_kernel")
            a("s_subb_u32 s13, s13, 0")
            a("v_lshlrev_b32 v10, 7, v1")
            a("s_lshr_b32 s14, s2, 3\ns_lshl_b32 s14, s14, 13")
            a("v_add_u32 v10, s14, v10")
            a(f"v_cmp_gt_u32 vcc, L_END-{NAME}_kernel, v10")
            a("s_and_b64 exec, exec, vcc")
            a("global_load_dword v48, v10, s[12:13]")
            a("s_mov_b64 exec, -1")
            a("L_NOCPF:")
        a("v_and_b32 v6, 15, v1")
        a("v_lshrrev_b32 v7, 4, v1")
        a("v_lshlrev_b32 v8, 4, v1")
        if self.opt["numa"]:
            a("s_lshr_b32 s6, s2, 3\ns_lshl_b32 s6, s6, 2\ns_and_b32 s7, s2, 3\ns_or_b32 s6, s6, s7")
            a("s_lshr_b32 s4, s6, 4")
            a("s_and_b32 s5, s6, 15")
            a("s_lshr_b32 s7, s2, 2\ns_lshr_b32 s8, s6, 1\ns_xor_b32 s7, s7, s8")
            a(f"s_xor_b32 s7, s7, {self.opt['npol']}")
            a("s_and_b32 s7, s7, 1")
            a("s_lshl_b32 s6, s6, 20")
            a("s_lshl_b32 s7, s7, 13")
            a("s_add_u32 s6, s6, s7")
            a("s_add_u32 s6, s6, 0xC0000")
            a("s_add_u32 s7, s3, s2")
            a("s_and_b32 s7, s7, 7")
            a("s_lshl_b32 s7, s7, 15")
            a("s_add_u32 s6, s6, s7")
            a("s_add_u32 s7, s6, 4096")
            a("s_add_u32 s8, s6, 16384")
            a("s_add_u32 s9, s6, 20480")
        else:
            a("s_lshr_b32 s4, s2, 5")
            a("s_and_b32 s5, s2, 15")
            a("s_lshl_b32 s6, s4, 4")
            a("s_add_u32 s6, s6, s5")
            a("s_lshl_b32 s6, s6, 20")
            a("s_lshr_b32 s7, s2, 4")
            a("s_and_b32 s7, s7, 1")
            a("s_lshl_b32 s7, s7, 17")
            a("s_add_u32 s6, s6, s7")
            a("s_add_u32 s6, s6, 0xC0000")
            a("s_add_u32 s7, s3, s2")
            a("s_and_b32 s7, s7, 7")
            a("s_lshl_b32 s7, s7, 14")
            a("s_add_u32 s6, s6, s7")
            a("s_add_u32 s7, s6, 4096")
            a("s_add_u32 s8, s6, 8192")
            a("s_add_u32 s9, s6, 12288")
        a("s_and_b32 s10, s3, 7")
        a(f"s_sub_u32 s11, s98, {NLIGHT}")
        a("s_cmp_ge_u32 s3, 8")
        a("s_cbranch_scc1 L_VPRO")
        a("s_waitcnt lgkmcnt(0)")
        self.common_after_args()
        a("s_branch L_KWAVE")
        a("L_VPRO:")
        a("v_and_b32 v10, 7, v6")
        a("v_mul_u32_u24 v10, 1152, v10")
        a("v_lshlrev_b32 v11, 4, v7")
        a("v_add_u32 v10, v10, v11")
        a("s_mul_i32 s14, s10, 192")
        a("v_add_u32 v10, s14, v10")
        a("s_mov_b32 s12, 8192\ns_mov_b32 s13, s11\ns_mov_b32 s54, 4718592")
        a("s_cmp_lt_i32 s11, 64\ns_cbranch_scc1 L_S1SEL0")
        a("s_mov_b32 s54, 5308416\ns_mov_b32 s12, 9216\ns_sub_u32 s13, s11, 64")
        a("s_cmp_lt_u32 s11, 136\ns_cbranch_scc1 L_S1SEL0")
        a("s_sub_u32 s13, s11, 136")
        a("L_S1SEL0:")
        a("s_mov_b32 s55, 0x00020000")
        a("s_lshl_b32 s13, s13, 7")
        self.wtile_lane_offsets(12, 12, 13, 14)
        a("s_mul_i32 s14, s10, 96")
        a("s_mul_i32 s14, s14, s12")
        a("s_add_u32 s14, s14, s13")
        a("s_lshl_b32 s15, s12, 3")
        a("s_mul_i32 s56, s10, 12288")
        a("s_waitcnt lgkmcnt(0)")
        self.common_after_args()

    def common_after_args(self):
        a = self.a
        if self.stamps:
            a("v_mov_b32 v2, 0")
            a("v_writelane_b32 v2, s96, 0")
        a("s_load_dword s42, s[40:41], 0")
        a("s_mov_b32 s44, s40\ns_mov_b32 s45, s41")
        a(f"s_mov_b32 s46, {WS_BYTES}\ns_mov_b32 s47, 0x00020000")

    def setidx(self, d):
        a = self.a
        if self.opt["numa"]:
            a(f"s_lshr_b32 s{d}, s5, 1\ns_lshl_b32 s{d}, s{d}, 2\ns_xor_b32 s{d}, s{d}, s2\ns_lshr_b32 s{d}, s{d}, 2")
            a(f"s_xor_b32 s{d}, s{d}, {self.opt['npol']}\ns_and_b32 s{d}, s{d}, 1")
        else:
            a(f"s_lshr_b32 s{d}, s2, 4\ns_and_b32 s{d}, s{d}, 1")

    def tag_ready(self):
        a = self.a
        a("s_waitcnt lgkmcnt(0)")
        a("s_mul_i32 s43, s42, 0x9E3779B1")
        a("s_add_u32 s43, s43, 0x7F4A7C15")

    def wtile_lane_offsets(self, pitch_sgpr, ve, vo, vt):
        a = self.a
        a(f"v_lshrrev_b32 v{vt}, 3, v1")
        a(f"v_mul_lo_u32 v{ve}, v{vt}, s{pitch_sgpr}")
        a(f"v_and_b32 v{vt}, 1, v7")
        a(f"v_lshlrev_b32 v{vt}, 1, v{vt}")
        a(f"v_and_b32 v{vo}, 7, v1")
        a(f"v_xor_b32 v{vt}, v{vt}, v{vo}")
        a(f"v_lshlrev_b32 v{vo}, 4, v{vt}")
        a(f"v_add_u32 v{ve}, v{ve}, v{vo}")
        a(f"v_xor_b32 v{vo}, 64, v{ve}")

    def tr_addr(self, v0, base_const=None, base_sgpr=None):
        a = self.a
        t = v0 + 3
        a(f"v_lshrrev_b32 v{v0}, 2, v6")
        a(f"v_lshlrev_b32 v{t}, 3, v7")
        a(f"v_add_u32 v{t}, v{t}, v{v0}")
        a(f"v_lshlrev_b32 v{t}, 7, v{t}")
        a(f"v_lshrrev_b32 v{v0}, 1, v{v0}")
        a(f"v_and_b32 v{v0+1}, 1, v7")
        a(f"v_lshlrev_b32 v{v0+1}, 1, v{v0+1}")
        a(f"v_or_b32 v{v0}, v{v0}, v{v0+1}")
        a(f"v_lshlrev_b32 v{v0}, 5, v{v0}")
        a(f"v_add_u32 v{t}, v{t}, v{v0}")
        a(f"v_and_b32 v{v0}, 3, v6")
        a(f"v_lshlrev_b32 v{v0}, 3, v{v0}")
        a(f"v_add_u32 v{v0}, v{t}, v{v0}")
        if base_sgpr is not None:
            a(f"v_add_u32 v{v0}, s{base_sgpr}, v{v0}")
        elif base_const:
            a(f"v_add_u32 v{v0}, {base_const}, v{v0}")
        a(f"v_xor_b32 v{v0+1}, 32, v{v0}")
        a(f"v_xor_b32 v{v0+2}, 64, v{v0}")
        a(f"v_xor_b32 v{v0+3}, 0x60, v{v0}")

    def s1job(self):
        a = self.a
        a("s_setprio 3")
        a("s_mov_b32 s52, s22\ns_mov_b32 s53, s23")
        a("s_cmp_lt_u32 s11, 64\ns_cbranch_scc1 L_S1SEL")
        a("s_mov_b32 s52, s28\ns_mov_b32 s53, s29")
        a("s_cmp_lt_u32 s11, 136\ns_cbranch_scc1 L_S1SEL")
        a("s_mov_b32 s52, s30\ns_mov_b32 s53, s31")
        a("L_S1SEL:")
        def dma(u):
            a(f"s_add_u32 m0, s56, {L_W + u*1024}")
            a("s_add_u32 s14, s14, s15" if u > 0 else "s_nop 0")
            a(f"buffer_load_dwordx4 v{12 + (u & 1)}, s[52:55], s14 offen nt lds")
        def xl():
            for ks in range(3):
                a(f"global_load_dwordx4 v[{16+4*ks}:{19+4*ks}], v10, s[16:17] offset:{64*ks}")
        W, W3 = self.opt["win"], self.opt["win3"]
        if W >= 12 and not self.opt["c3w"]:
            for u in range(12): dma(u)
            xl()
            a("s_barrier")
            self.stamp(1)
        else:
            xl()
            a("s_and_b32 s57, s11, 7")
            a("s_cmp_eq_u32 s57, 3")
            a("s_cbranch_scc0 L_S1WN")
            if self.opt["c3w"] == 1:
                a("s_cmp_ge_u32 s11, 64")
                a("s_cbranch_scc0 L_S1WN")
            for u in range(W3): dma(u)
            a("s_barrier")
            self.stamp(1)
            for u in range(W3, 12):
                a(f"s_waitcnt vmcnt({W3-1})")
                dma(u)
            a("s_branch L_S1WD")
            a("L_S1WN:")
            for u in range(min(W, 12)): dma(u)
            a("s_barrier")
            self.stamp(1)
            for u in range(W, 12):
                a(f"s_waitcnt vmcnt({W-1})")
                dma(u)
            a("L_S1WD:")
        self.tr_addr(28, base_sgpr=56)
        a("s_waitcnt vmcnt(0)")
        def rd(ks):
            for t in range(4):
                for hf in range(2):
                    r = 48 + (ks*4+t)*4 + hf*2
                    a(f"ds_read_b64_tr_b16 v[{r}:{r+1}], v{28+t} offset:{ks*4096 + hf*512}")
        def mm(ks):
            for t in range(4):
                r = 48 + (ks*4+t)*4
                c = "0" if ks == 0 else f"v[{32+4*t}:{35+4*t}]"
                a(f"v_mfma_f32_16x16x32_bf16 v[{32+4*t}:{35+4*t}], v[{r}:{r+3}], v[{16+4*ks}:{19+4*ks}], {c}")
        rd(0)
        a("s_waitcnt lgkmcnt(7)")
        rd(1)
        a("s_waitcnt lgkmcnt(8)")
        mm(0)
        rd(2)
        a("s_waitcnt lgkmcnt(8)")
        mm(1)
        a("s_waitcnt lgkmcnt(0)")
        mm(2)
        a("v_lshlrev_b32 v10, 3, v7")
        a("v_add_u32 v10, v10, v6")
        a("v_lshlrev_b32 v10, 4, v10")
        a("s_lshl_b32 s14, s10, 11")
        a(f"s_add_u32 s14, s14, {L_S1SLOT}")
        a("v_add_u32 v10, s14, v10")
        a("s_mov_b32 s58, 0x00ff00ff\ns_mov_b32 s59, 0x00ff00ff")
        a("s_nop 1")
        a("s_mov_b64 exec, s[58:59]")
        for t in range(4):
            a(f"ds_write_b128 v10, v[{32+4*t}:{35+4*t}] offset:{t*512}")
        a("s_mov_b64 exec, -1")
        a("s_waitcnt lgkmcnt(0)")
        self.lds_inc(D_CNT_S1, 10, rtn=True)
        a("s_cmp_eq_u32 s56, 5")
        a("s_cbranch_scc0 L_S1DONE")
        a("v_and_b32 v10, 31, v1")
        a("v_lshlrev_b32 v10, 4, v10")
        a("v_lshrrev_b32 v11, 5, v1")
        a("v_lshlrev_b32 v12, 9, v11")
        a("v_add_u32 v10, v10, v12")
        a(f"v_add_u32 v10, {L_S1SLOT}, v10")
        for sl in range(6):
            for i in range(2):
                r = 48 + (sl*2+i)*4
                a(f"ds_read_b128 v[{r}:{r+3}], v10 offset:{sl*2048 + i*1024}")
        a("v_and_b32 v12, 7, v1")
        a(f"s_mov_b32 s14, {S1_PITCH}")
        a("v_mul_lo_u32 v12, v12, s14")
        a("v_bfe_u32 v13, v1, 3, 2")
        a("v_lshlrev_b32 v14, 2, v11")
        a("v_add_u32 v13, v13, v14")
        a("v_lshlrev_b32 v13, 4, v13")
        a("v_add_u32 v12, v12, v13")
        a("s_lshl_b32 s14, s11, 8")
        a(f"s_add_u32 s14, s14, {WS_S1}")
        self.tag_ready()
        for i in range(2):
            for c in range(4):
                R = lambda sl: 48 + (sl*2+i)*4 + c
                d = 16 + 4*i + c
                a(f"v_add_f32 v{d}, v{R(0)}, v{R(1)}")
                a(f"v_add_f32 v{R(2)}, v{R(2)}, v{R(3)}")
                a(f"v_add_f32 v{R(4)}, v{R(4)}, v{R(5)}")
                a(f"v_add_f32 v{d}, v{d}, v{R(2)}")
                a(f"v_add_f32 v{d}, v{d}, v{R(4)}")
        a("v_mov_b32 v25, s43\nv_mov_b32 v27, s43\nv_mov_b32 v29, s43\nv_mov_b32 v31, s43")
        a("v_cvt_pk_bf16_f32 v24, v16, v17")
        a("v_cvt_pk_bf16_f32 v26, v18, v19")
        a("v_cvt_pk_bf16_f32 v28, v20, v21")
        a("v_cvt_pk_bf16_f32 v30, v22, v23")
        a("buffer_store_dwordx4 v[24:27], v12, s[44:47], s14 offen sc1")
        a("buffer_store_dwordx4 v[28:31], v12, s[44:47], s14 offen offset:128 sc1")
        self.lds_inc(D_FLAG_S1P, 10)
        a("L_S1DONE:")
        self.stamp(6)

    def kwave(self):
        a = self.a
        o = self.opt
        a("L_KWAVE:")
        a("s_mov_b32 s48, s18\ns_mov_b32 s49, s19\ns_mov_b32 s50, 0x8000000\ns_mov_b32 s51, 0x00020000")
        a("s_setprio 2")
        if o["tlb"]:
            a("v_mov_b32 v10, s6")
            a("s_mov_b64 exec, 1")
            a("global_load_dword v112, v10, s[20:21]")
            a("s_cmp_eq_u32 s10, 0")
            a("s_cbranch_scc0 L_TLB1")
            a("s_lshl_b32 s14, s2, 14")
            a("v_mov_b32 v11, s14")
            a("global_load_dword v113, v11, s[32:33]")
            a("global_load_dword v114, v11, s[24:25]")
            a(f"v_mov_b32 v11, {WS_PART}")
            a("global_load_dword v115, v11, s[40:41]")
            a(f"v_mov_b32 v11, {WS_O}")
            a("global_load_dword v116, v11, s[40:41]")
            a("L_TLB1:")
            a("s_mov_b64 exec, -1")
        a("s_barrier")
        self.stamp(1)
        if o["qf"] == "first":
            a("s_cmp_lt_u32 s10, 6")
            a("s_cbranch_scc1 L_KGATE")
            self.tag_ready()
            a("s_sub_u32 s15, s10, 6")
            self.qfetch()
            a("s_branch L_KLOAD")
            a("L_KGATE:")
        if o["gate"] != "none":
            a(f"s_cmp_ge_u32 s10, {o['ngate']}")
            a("s_cbranch_scc1 L_KLOAD")
            lim = 64 if o["gate"] == "q" else 208
            a(f"s_cmp_ge_u32 s11, {lim}")
            a("s_cbranch_scc1 L_KLOAD")
            if o["c3u"]:
                if o["c3u"] == 1:
                    a("s_cmp_lt_u32 s11, 64")
                    a("s_cbranch_scc1 L_KG2")
                a("s_and_b32 s56, s11, 7")
                a("s_cmp_eq_u32 s56, 3")
                a("s_cbranch_scc1 L_KLOAD")
                a("L_KG2:")
            self.lds_wait_ge(D_FLAG_S1P, 1, 10)
        a("L_KLOAD:")
        KB = 48
        for u in range(16):
            a(f"buffer_load_dwordx4 v[{KB+4*u}:{KB+4*u+3}], v8, s[48:51], s{6 + u//4} offen offset:{(u%4)*1024} nt")
        self.lds_inc(D_CNT_KISS, 10)
        self.stamp(2)
        a("s_mov_b32 s61, 0")
        a("s_cmp_ge_u32 s99, 162")
        a("s_cbranch_scc1 L_NOHP")
        if o["qf"] != "first":
            a("s_cmp_ge_u32 s10, 6")
            a("s_cbranch_scc1 L_NOHP")
        self.haddr()
        a("buffer_load_dwordx4 v[120:123], v8, s[44:47], s14 offen sc1")
        a("buffer_load_dwordx4 v[124:127], v8, s[44:47], s15 offen sc1")
        a("s_mov_b32 s61, 2")
        if o["wd"] == "kearly":
            self.wd_dma_early(waitflag=True)
        a("L_NOHP:")
        a(f"s_lshl_b32 s56, s10, 12")
        a(f"s_add_u32 s56, s56, {L_KSCR}")
        a("v_xor_b32 v10, v6, v7")
        a("v_lshlrev_b32 v10, 4, v10")
        a("v_lshlrev_b32 v11, 8, v7")
        a("v_add_u32 v12, v10, v11")
        a("v_add_u32 v12, s56, v12")
        a("v_xor_b32 v13, 64, v12\nv_xor_b32 v14, 0x80, v12\nv_xor_b32 v15, 0xc0, v12")
        a("v_lshlrev_b32 v11, 8, v6")
        a("v_add_u32 v16, v10, v11")
        a("v_add_u32 v16, s56, v16")
        a("v_xor_b32 v17, 64, v16\nv_xor_b32 v18, 0x80, v16\nv_xor_b32 v19, 0xc0, v16")
        a("v_bfe_u32 v20, v6, 2, 1")
        a("v_lshlrev_b32 v20, 8, v20")
        a("v_lshlrev_b32 v21, 4, v7")
        a("v_add_u32 v20, v20, v21")
        a(f"v_add_u32 v20, {L_Q}, v20")
        self.tag_ready()
        if o["qf"] != "first":
            a("s_cmp_lt_u32 s10, 6")
            a("s_cbranch_scc1 L_QWAIT")
            a("s_sub_u32 s15, s10, 6")
            self.qfetch()
            a("s_mov_b32 s61, 0")
            a("s_cmp_ge_u32 s99, 162")
            a("s_cbranch_scc1 L_QWAIT")
            self.haddr()
            a("buffer_load_dwordx4 v[120:123], v8, s[44:47], s14 offen sc1")
            a("buffer_load_dwordx4 v[124:127], v8, s[44:47], s15 offen sc1")
            a("s_mov_b32 s61, 2")
        a("L_QWAIT:")
        self.lds_wait_ge(D_FLAG_Q, 4, 22)
        self.stamp(4)
        for j in range(4):
            a(f"ds_read_b128 v[{32+4*j}:{35+4*j}], v20 offset:{64*j}")
        a("s_cmp_eq_u32 s61, 0")
        a("s_cbranch_scc1 L_KW0")
        if o["wd"] == "kearly":
            a("s_cmp_eq_u32 s61, 2")
            a("s_cbranch_scc1 L_KW2")
            a("s_waitcnt vmcnt(10)")
            a("s_branch L_KW1")
            a("L_KW2:")
        a("s_waitcnt vmcnt(2)")
        a("s_branch L_KW1")
        a("L_KW0:")
        a("s_waitcnt vmcnt(0)")
        a("L_KW1:")
        self.stamp(5)
        ACC = [112, 116, 24, 28]
        def tile_ops(t):
            Gk, tp = t >> 1, t & 1
            for aa in range(4):
                u = 8*Gk + 2*aa + tp
                a(f"ds_write_b128 v{12+aa}, v[{KB+4*u}:{KB+4*u+3}] offset:{aa*1024}")
            for j in range(4):
                u = 8*Gk + 2*j + tp
                a(f"ds_read_b128 v[{KB+4*u}:{KB+4*u+3}], v{16+j}")
        def tile_mm(t):
            Gk, tp = t >> 1, t & 1
            for j in range(4):
                u = 8*Gk + 2*j + tp
                c = "0" if j == 0 else f"v[{ACC[t]}:{ACC[t]+3}]"
                a(f"v_mfma_f32_16x16x32_bf16 v[{ACC[t]}:{ACC[t]+3}], v[{32+4*j}:{35+4*j}], v[{KB+4*u}:{KB+4*u+3}], {c}")
        tile_ops(0)
        a("s_waitcnt lgkmcnt(6)")
        tile_ops(1)
        a("s_waitcnt lgkmcnt(8)")
        tile_mm(0)
        tile_ops(2)
        a("s_waitcnt lgkmcnt(8)")
        tile_mm(1)
        tile_ops(3)
        a("s_waitcnt lgkmcnt(8)")
        tile_mm(2)
        a("s_waitcnt lgkmcnt(0)")
        tile_mm(3)
        a("v_and_b32 v22, 1, v7")
        a("v_lshlrev_b32 v22, 2, v22")
        a("v_lshlrev_b32 v23, 3, v22")
        a("s_lshl_b32 s14, s10, 2")
        a(f"s_add_u32 s14, s14, {sm(D_LP)}")
        a("v_add_u32 v23, s14, v23")
        a(f"v_add_u32 v22, {sm(D_M)}, v22")
        a("s_mov_b32 s58, 0x00010001\ns_mov_b32 s59, 0")
        a("v_max_f32 v21, v112, v116")
        a("s_nop 3")
        a("v_max3_f32 v21, v21, v24, v28")
        self.row_reduce("v_max_f32", 21)
        a("s_mov_b64 exec, s[58:59]")
        a("ds_max_f32 v22, v21")
        a("s_mov_b64 exec, -1")
        a("s_waitcnt lgkmcnt(0)")
        self.lds_inc(D_CNT_M, 26)
        a("v_and_b32 v30, 3, v6")
        a("v_lshlrev_b32 v30, 2, v30")
        a("v_lshrrev_b32 v31, 2, v6")
        a("v_add_u32 v30, v30, v31")
        a("v_lshlrev_b32 v30, 2, v30")
        a("v_lshlrev_b32 v31, 7, v7")
        a("v_add_u32 v30, v30, v31")
        a("s_lshl_b32 s14, s10, 8")
        a(f"s_add_u32 s14, s14, {L_P}")
        a("v_add_u32 v30, s14, v30")
        a("s_lshl_b32 s15, s10, 2")
        a(f"s_add_u32 s15, s15, {sm(D_FLAG_P)}")
        a(f"s_mov_b32 s14, 0x{f32bits(SCALE_LOG2E):08x}")
        self.lds_wait_ge(D_CNT_M, 8, 26, sleep=0)
        a("ds_read_b32 v21, v22")
        a("s_waitcnt lgkmcnt(0)")
        a("v_mul_f32 v21, s14, v21")
        E = [112, 116, 24, 28]
        for t in range(4):
            a(f"v_fma_f32 v{E[t]}, v{E[t]}, s14, -v21")
        for t in range(4):
            a(f"v_exp_f32 v{E[t]}, v{E[t]}")
        a("s_nop 0")
        a("v_add_f32 v26, v112, v116")
        a("v_add_f32 v27, v24, v28")
        a("v_cvt_pk_bf16_f32 v25, v112, v116")
        a("v_cvt_pk_bf16_f32 v29, v24, v28")
        a("v_add_f32 v26, v26, v27")
        a("s_mov_b32 s58, -1\ns_mov_b32 s59, 0")
        a("s_mov_b64 exec, s[58:59]")
        a("ds_write_b32 v30, v25")
        a("ds_write_b32 v30, v29 offset:64")
        a("s_mov_b64 exec, -1")
        self.row_reduce("v_add_f32", 26)
        a("s_mov_b32 s58, 0x00010001\ns_mov_b32 s59, 0")
        a("s_mov_b64 exec, s[58:59]")
        a("ds_write_b32 v23, v26")
        a("s_mov_b64 exec, -1")
        a("v_mov_b32 v30, s15\nv_mov_b32 v31, 1")
        a("s_waitcnt lgkmcnt(0)")
        a("s_mov_b64 exec, 1")
        a("ds_write_b32 v30, v31")
        a("s_mov_b64 exec, -1")
        self.stamp(6)
        a("s_branch L_KPOST")

    def haddr(self):
        a = self.a
        a("s_mov_b32 s11, s99")
        a("s_mul_i32 s12, s11, 7282")
        a("s_lshr_b32 s12, s12, 16")
        a("s_mul_i32 s13, s12, 9")
        a("s_sub_u32 s13, s11, s13")
        a(f"s_mul_i32 s14, s10, {S1_PITCH}")
        a("s_lshl_b32 s15, s12, 10")
        a("s_add_u32 s14, s14, s15")
        a(f"s_add_u32 s14, s14, {WS_S1 + 1024*16}")
        a(f"s_add_u32 s15, s14, {1152*16}")

    def wd_dma_early(self, waitflag=False):
        a = self.a
        a("s_cmp_ge_u32 s99, 162")
        a("s_cbranch_scc1 L_NOWD")
        a("s_cmp_ge_u32 s10, 4")
        a("s_cbranch_scc1 L_NOWD")
        if waitflag:
            self.lds_wait_ge(D_FLAG_S1P, 1, 10)
        a("s_mov_b32 s11, s99")
        a("s_mul_i32 s12, s11, 7282")
        a("s_lshr_b32 s12, s12, 16")
        a("s_mul_i32 s13, s12, 9")
        a("s_sub_u32 s13, s11, s13")
        a("s_mov_b32 s52, s32\ns_mov_b32 s53, s33\ns_mov_b32 s54, 5308416\ns_mov_b32 s55, 0x00020000")
        a("s_mov_b32 s56, 1152")
        self.wtile_lane_offsets(56, 12, 13, 14)
        a("s_lshl_b32 s14, s12, 8")
        a("s_lshl_b32 s15, s10, 6")
        a("s_add_u32 s14, s14, s15")
        a("s_mul_i32 s14, s14, 1152")
        a("s_lshl_b32 s15, s13, 7")
        a("s_add_u32 s14, s14, s15")
        a("s_mul_i32 s15, s10, 12288")
        for u in range(8):
            a(f"s_add_u32 m0, s15, {L_W + u*1024}")
            a(f"s_add_u32 s14, s14, {8*1152}" if u > 0 else "s_nop 0")
            a(f"buffer_load_dwordx4 v{12 + (u & 1)}, s[52:55], s14 offen nt lds")
        a("s_mov_b32 s61, 10" if waitflag else "s_mov_b32 s61, 1")
        a("L_NOWD:")

    def vwave(self):
        a = self.a
        o = self.opt
        a("L_VWAVE:")
        a("s_mov_b32 s48, s20\ns_mov_b32 s49, s21\ns_mov_b32 s50, 0x8000000\ns_mov_b32 s51, 0x00020000")
        a(f"s_cmp_lt_u32 s98, {NLIGHT}")
        a("s_cbranch_scc1 L_VBAR")
        a("s_cmp_ge_u32 s10, 6")
        a("s_cbranch_scc1 L_VBAR")
        self.s1job()
        a("s_setprio 1")
        a("s_branch L_VGATE")
        a("L_VBAR:")
        a("s_setprio 1")
        a("s_barrier")
        self.stamp(1)
        VB = 48
        a("s_cmp_lt_u32 s3, 14")
        a("s_cbranch_scc1 L_VGATE")
        self.tag_ready()
        a("s_sub_u32 s15, s3, 12")
        self.qfetch()
        self.stamp(7)
        a("L_VGATE:")
        if o["kiss"]:
            self.lds_wait_ge(D_CNT_KISS, 8, 22)
        a("s_mov_b32 s61, 0")
        if o["wd"] == "early":
            self.wd_dma_early()
        for u in range(16):
            a(f"buffer_load_dwordx4 v[{VB+4*u}:{VB+4*u+3}], v8, s[48:51], s{6 + u//4} offen offset:{(u%4)*1024} nt")
        self.lds_inc(D_CNT_VISS, 22)
        self.stamp(2)
        a("s_lshl_b32 s14, s10, 8")
        a(f"s_add_u32 s14, s14, {L_P}")
        a("v_and_b32 v10, 1, v6")
        a("v_lshlrev_b32 v10, 7, v10")
        a("v_lshlrev_b32 v11, 4, v7")
        a("v_add_u32 v10, v10, v11")
        a("v_add_u32 v10, s14, v10")
        a(f"v_mov_b32 v11, {sm(D_ZERO)}")
        a("v_and_b32 v16, 14, v6")
        for gp in range(4):
            a(f"v_cmp_eq_u32 vcc, {4*gp}, v16")
            a("s_nop 1")
            a(f"v_cndmask_b32 v{12+gp}, v11, v10, vcc")
        a("v_lshlrev_b32 v10, 3, v6")
        a("v_add_u32 v10, v10, v7")
        a("v_lshlrev_b32 v10, 2, v10")
        a("s_lshl_b32 s14, s10, 10")
        a(f"s_add_u32 s14, s14, {L_OSLOT}")
        a("v_add_u32 v10, s14, v10")
        a("s_mov_b32 s12, 0x05040100\ns_mov_b32 s13, 0x07060302")
        a("s_lshl_b32 s60, s5, 10")
        a("s_lshl_b32 s14, s4, 7")
        a("s_add_u32 s60, s60, s14")
        self.setidx(14)
        a("s_lshl_b32 s14, s14, 2")
        a("s_add_u32 s60, s60, s14")
        a(f"s_add_u32 s60, s60, {WS_FO3 if o['fo3'] else WS_FO}")
        self.tag_ready()
        a("v_mov_b32 v11, s43")
        if o["fo3"]:
            a("v_lshlrev_b32 v9, 14, v1")
        lab = a.label("L_pw")
        a("s_lshl_b32 s14, s10, 2")
        a(f"s_add_u32 s14, s14, {sm(D_FLAG_P)}")
        a("v_mov_b32 v18, s14")
        a("s_mov_b32 s57, 0")
        a(f"{lab}:")
        a("ds_read_b32 v17, v18")
        a("s_waitcnt lgkmcnt(0)")
        a("v_readfirstlane_b32 s56, v17")
        a("s_add_u32 s57, s57, 1")
        a("s_cmp_ge_u32 s56, 1")
        a(f"s_cbranch_scc1 {lab}_d")
        a("s_sleep 2")
        a("s_cmp_lt_u32 s57, 0x40000")
        a(f"s_cbranch_scc1 {lab}")
        a(f"{lab}_d:")
        self.stamp(3)
        for gp in range(4):
            a(f"ds_read_b128 v[{28+4*gp}:{31+4*gp}], v{12+gp}")
        a("s_waitcnt vmcnt(8)")
        if o["wd"] == "early":
            a("s_cmp_eq_u32 s61, 0")
            a("s_cbranch_scc1 L_NOWINC")
            self.lds_inc(D_CNT_W, 16)
            a("L_NOWINC:")
        T = [112, 116, 44, 16]
        def L(G, i, d): return VB + 32*G + 4*i + d
        for ph in range(2):
            for dd in range(2):
                d = 2*ph + dd
                for e in range(2):
                    for rp in range(4):
                        a(f"v_perm_b32 v{T[2*dd+e]+rp}, v{L(0,2*rp+1,d)}, v{L(0,2*rp,d)}, s{12+e}")
            if ph == 0:
                a("s_waitcnt lgkmcnt(0)")
            else:
                a("s_nop 1")
            for jj in range(4):
                c = "0" if jj == 0 else f"v[{20+4*ph}:{23+4*ph}]"
                a(f"v_mfma_f32_16x16x32_bf16 v[{20+4*ph}:{23+4*ph}], v[{28+4*jj}:{31+4*jj}], v[{T[jj]}:{T[jj]+3}], {c}")
        a("s_nop 7")
        for gp in range(4):
            a(f"ds_read_b128 v[{28+4*gp}:{31+4*gp}], v{12+gp} offset:64")
        for rp in range(4):
            a(f"s_waitcnt vmcnt({6 - 2*rp})")
            if rp == 3 and o["ofl"] == "land":
                a("s_mov_b64 exec, 1")
                a(f"v_mov_b32 v16, {sm(D_CNT_VL)}\nv_mov_b32 v17, 1")
                a("ds_add_rtn_u32 v18, v16, v17")
                a("s_mov_b64 exec, -1")
            for d in range(4):
                for e in range(2):
                    a(f"v_perm_b32 v{VB+4*(2*d+e)+rp}, v{L(1,2*rp+1,d)}, v{L(1,2*rp,d)}, s{12+e}")
        self.stamp(4)
        a("s_waitcnt lgkmcnt(0)")
        if o["ofl"] == "land":
            a("v_readfirstlane_b32 s56, v18")
            a("s_cmp_eq_u32 s56, 7")
            a("s_cbranch_scc0 L_NOFL")
            a("s_mov_b64 exec, 1")
            a("buffer_store_dword v11, off, s[44:47], s60 sc1")
            a("s_mov_b64 exec, -1")
            a("L_NOFL:")
        for jj in range(4):
            for ph in range(2):
                j = 4*ph + jj
                a(f"v_mfma_f32_16x16x32_bf16 v[{20+4*ph}:{23+4*ph}], v[{28+4*jj}:{31+4*jj}], v[{VB+4*j}:{VB+4*j+3}], v[{20+4*ph}:{23+4*ph}]")
        a("s_nop 7")
        for r in range(2):
            a(f"ds_write2_b32 v10, v{20+r}, v{24+r} offset0:{r*128} offset1:{r*128+4}")
        a("s_waitcnt lgkmcnt(0)")
        self.lds_inc(D_CNT_O, 28, rtn=True)
        a("s_cmp_eq_u32 s56, 7")
        a("s_cbranch_scc0 L_VPOST")
        if o["ofl"] == "cnto":
            if o["fo3"]:
                a("s_mov_b64 exec, 7")
                a("buffer_store_dword v11, v9, s[44:47], s60 offen sc1")
            else:
                a("s_mov_b64 exec, 1")
                a("buffer_store_dword v11, off, s[44:47], s60 sc1")
            a("s_mov_b64 exec, -1")
        a(f"v_add_u32 v28, {L_OSLOT}, v8")
        for sl in range(8):
            a(f"ds_read_b128 v[{48+4*sl}:{51+4*sl}], v28 offset:{sl*1024}")
        a("v_lshrrev_b32 v29, 5, v1")
        a("v_lshlrev_b32 v29, 2, v29")
        a(f"v_add_u32 v30, {sm(D_M)}, v29")
        a("v_lshlrev_b32 v31, 3, v29")
        a(f"v_add_u32 v31, {sm(D_LP)}, v31")
        a("ds_read_b32 v44, v30")
        a("ds_read_b128 v[80:83], v31")
        a("ds_read_b128 v[84:87], v31 offset:16")
        self.setidx(15)
        a("s_lshl_b32 s14, s4, 5\ns_lshl_b32 s15, s15, 4\ns_or_b32 s14, s14, s15\ns_or_b32 s14, s14, s5")
        a("s_lshl_b32 s14, s14, 12")
        a(f"s_add_u32 s14, s14, {WS_O}")
        a("v_lshlrev_b32 v28, 4, v1" if o["lay"] else "v_lshlrev_b32 v28, 5, v1")
        a("v_mov_b32 v37, s43\nv_mov_b32 v39, s43\nv_mov_b32 v41, s43\nv_mov_b32 v43, s43\nv_mov_b32 v45, s43\nv_mov_b32 v47, s43")
        a(f"s_mov_b32 s15, 0x{f32bits(SCALE_LOG2E):08x}")
        a("v_lshlrev_b32 v29, 2, v29")
        a("s_mov_b32 s58, 1\ns_mov_b32 s59, 1")
        a("s_waitcnt lgkmcnt(0)")
        for c in range(4):
            R = lambda sl: 48 + 4*sl + c
            a(f"v_add_f32 v{R(0)}, v{R(0)}, v{R(1)}")
            a(f"v_add_f32 v{R(2)}, v{R(2)}, v{R(3)}")
            a(f"v_add_f32 v{R(4)}, v{R(4)}, v{R(5)}")
            a(f"v_add_f32 v{R(6)}, v{R(6)}, v{R(7)}")
            a(f"v_add_f32 v{R(0)}, v{R(0)}, v{R(2)}")
            a(f"v_add_f32 v{R(4)}, v{R(4)}, v{R(6)}")
            a(f"v_add_f32 v{36+2*c}, v{R(0)}, v{R(4)}")
            if c == 1:
                a("buffer_store_dwordx4 v[36:39], v28, s[44:47], s14 offen sc1")
        a(f"buffer_store_dwordx4 v[40:43], v28, s[44:47], s14 offen offset:{1024 if o['lay'] else 16} sc1")
        a("v_add_f32 v80, v80, v81\nv_add_f32 v82, v82, v83\nv_add_f32 v84, v84, v85\nv_add_f32 v86, v86, v87")
        a("v_mul_f32 v44, s15, v44")
        a("v_add_f32 v80, v80, v82\nv_add_f32 v84, v84, v86")
        a("v_add_f32 v46, v80, v84")
        a("s_mov_b64 exec, s[58:59]")
        a("buffer_store_dwordx4 v[44:47], v29, s[44:47], s14 offen offset:2048 sc1")
        a("s_mov_b64 exec, -1")
        self.stamp(5)
        a("s_branch L_VPOST")

    def post(self):
        a = self.a
        o = self.opt
        early = o["wd"] in ("early", "kearly")
        a("L_KPOST:")
        a(f"s_setprio {o['kpost_prio']}")
        a(f"s_cmp_lt_u32 s98, {NLIGHT}")
        a("s_cbranch_scc1 L_KPOST_LIGHT")
        a("s_cmp_ge_u32 s99, 162")
        a("s_cbranch_scc1 L_HDONE")
        self.haddr()
        a("s_mov_b32 s57, 0")
        a("s_branch L_HCHK")
        a("L_HPOLL:")
        a("s_sleep 8")
        a("buffer_load_dwordx4 v[120:123], v8, s[44:47], s14 offen sc1")
        a("buffer_load_dwordx4 v[124:127], v8, s[44:47], s15 offen sc1")
        a("L_HCHK:")
        a("s_add_u32 s57, s57, 1")
        a("s_waitcnt vmcnt(0)")
        a("v_min3_u32 v32, v121, v123, v125\nv_max3_u32 v33, v121, v123, v125")
        a("v_min_u32 v32, v32, v127\nv_max_u32 v33, v33, v127")
        a("v_cmp_ne_u32 vcc, s43, v32")
        a("v_cmp_ne_u32 s[58:59], s43, v33")
        a("s_or_b64 vcc, vcc, s[58:59]")
        a("s_cbranch_vccz L_HGOT")
        a("s_cmp_lt_u32 s57, 0x10000")
        a("s_cbranch_scc1 L_HPOLL")
        a("L_HGOT:")
        a("s_cmp_eq_u32 s10, 7")
        a("s_cbranch_scc1 L_HG2")
        self.stamp(3)
        a("L_HG2:")
        a("v_lshlrev_b32 v32, 16, v120\nv_and_b32 v33, 0xffff0000, v120\nv_lshlrev_b32 v34, 16, v122\nv_and_b32 v35, 0xffff0000, v122")
        a("v_lshlrev_b32 v36, 16, v124\nv_and_b32 v37, 0xffff0000, v124\nv_lshlrev_b32 v38, 16, v126\nv_and_b32 v39, 0xffff0000, v126")
        a("s_mov_b32 s14, 0xbfb8aa3b")
        for i in range(4):
            a(f"v_mul_f32 v{40+i}, s14, v{32+i}")
        for i in range(4):
            a(f"v_exp_f32 v{40+i}, v{40+i}")
        a("s_nop 0")
        for i in range(4):
            a(f"v_add_f32 v{40+i}, 1.0, v{40+i}")
        for i in range(4):
            a(f"v_rcp_f32 v{40+i}, v{40+i}")
        a("s_nop 0")
        for i in range(4):
            a(f"v_mul_f32 v{40+i}, v{32+i}, v{40+i}")
        a("v_cvt_pk_bf16_f32 v44, v40, v41\nv_cvt_pk_bf16_f32 v45, v42, v43")
        a("v_lshlrev_b32 v40, 16, v44\nv_and_b32 v41, 0xffff0000, v44\nv_lshlrev_b32 v42, 16, v45\nv_and_b32 v43, 0xffff0000, v45")
        for i in range(4):
            a(f"v_mul_f32 v{40+i}, v{40+i}, v{36+i}")
        a("v_cvt_pk_bf16_f32 v44, v40, v41\nv_cvt_pk_bf16_f32 v45, v42, v43")
        a(f"s_mul_i32 s14, s10, {BM_PITCH}")
        a(f"s_add_u32 s14, s14, {L_BM}")
        a("v_lshlrev_b32 v46, 3, v1")
        a("v_add_u32 v46, s14, v46")
        a("ds_write_b64 v46, v[44:45]")
        if not early:
            self.lds_wait_ge(D_CNT_VISS if o["wd"] == "late" else D_CNT_O, o["viss"] if o["wd"] == "late" else 8, 32)
            self.lds_wait_ge(D_FLAG_S1P, 1, 32)
            a("s_mov_b32 s52, s32\ns_mov_b32 s53, s33\ns_mov_b32 s54, 5308416\ns_mov_b32 s55, 0x00020000")
            a("s_mov_b32 s56, 1152")
            self.wtile_lane_offsets(56, 12, 13, 14)
            a("s_lshl_b32 s14, s12, 8")
            a("s_lshl_b32 s15, s10, 5")
            a("s_add_u32 s14, s14, s15")
            a("s_mul_i32 s14, s14, 1152")
            a("s_lshl_b32 s15, s13, 7")
            a("s_add_u32 s14, s14, s15")
            a("s_lshl_b32 s15, s10, 12")
            for u in range(4):
                a(f"s_add_u32 m0, s15, {L_W + u*1024}")
                a(f"s_add_u32 s14, s14, {8*1152}" if u > 0 else "s_nop 0")
                if not o.get("nowd"):
                    a(f"buffer_load_dwordx4 v{12 + (u & 1)}, s[52:55], s14 offen nt lds")
        a("s_waitcnt vmcnt(0) lgkmcnt(0)")
        self.lds_inc(D_CNT_W, 32)
        a("s_cmp_ge_u32 s10, 4")
        a("s_cbranch_scc1 L_HDONE")
        a("s_lshl_b32 s63, s13, 10")
        a("s_lshl_b32 s14, s12, 2")
        a("s_add_u32 s63, s63, s14")
        a(f"s_add_u32 s63, s63, {WS_F3}")
        a("s_add_u32 s12, s12, 16")
        a("s_lshl_b32 s13, s13, 6")
        a("s_mov_b32 s15, 0")
        a("s_mov_b32 s14, s10")
        if early:
            self.tile_pre(wait=12 if o["wd"] == "early" else 8, ksoff=lambda ks: (ks >> 1) * 12288 + (ks & 1) * 4096)
        else:
            self.tile_pre(wait=8)
        self.stamp(1)
        self.tile_post()
        self.stamp(7)
        self.lds_inc(D_CNT_HA, 32, rtn=True)
        a("s_cmp_eq_u32 s56, 3")
        a("s_cbranch_scc0 L_HDONE")
        a("v_mov_b32 v32, s43")
        a("v_lshlrev_b32 v33, 7, v1")
        a("s_mov_b64 exec, 0xff")
        a("buffer_store_dword v32, v33, s[44:47], s63 offen sc1")
        a("s_mov_b64 exec, -1")
        a("L_HDONE:")
        a("s_cmp_eq_u32 s10, 7")
        a("s_cbranch_scc0 L_FIN")
        a(f"s_sub_u32 s11, s98, {NLIGHT + o['red0']}")
        a("s_cmp_ge_u32 s11, 144")
        a("s_cbranch_scc1 L_FIN")
        a("s_setprio 0")
        self.reducer()
        a("s_branch L_FIN")

        a("L_KPOST_LIGHT:")
        if o["dry1"]:
            a("s_mov_b32 s74, 0")
        a("s_and_b32 s12, s98, 15")
        a("s_lshr_b32 s13, s98, 4")
        self.lds_wait_ge(D_CNT_VISS if o["wo"] == "viss" else D_CNT_O, 8, 32)
        a("s_mov_b32 s52, s24\ns_mov_b32 s53, s25\ns_mov_b32 s54, 4718592\ns_mov_b32 s55, 0x00020000")
        a("s_mov_b32 s56, 1152")
        self.wtile_lane_offsets(56, 12, 13, 14)
        a("s_lshl_b32 s14, s12, 8")
        a("s_lshl_b32 s15, s10, 5")
        a("s_add_u32 s14, s14, s15")
        a("s_mul_i32 s14, s14, 1152")
        a("s_mul_i32 s15, s13, 384")
        a("s_add_u32 s14, s14, s15")
        a("s_lshl_b32 s15, s10, 12")
        for u in range(4):
            for st in range(3):
                a(f"s_add_u32 m0, s15, {L_W + st*32768 + u*1024}")
                a(f"s_add_u32 s56, s14, {st*128}")
                if not o.get("nowo"):
                    a(f"buffer_load_dwordx4 v{12 + (u & 1)}, s[52:55], s56 offen nt lds")
            a(f"s_add_u32 s14, s14, {8*1152}")
        a("s_waitcnt vmcnt(0)")
        self.lds_inc(D_CNT_W, 32)
        a("L_VPOST_LIGHT:")
        a("s_cmp_ge_u32 s3, 12")
        a("s_cbranch_scc1 L_LPRE_D")
        a("s_and_b32 s12, s98, 15")
        a("s_lshr_b32 s13, s98, 4")
        a("s_mul_i32 s13, s13, 192")
        a("s_lshr_b32 s15, s3, 2")
        a("s_lshl_b32 s14, s15, 6")
        a("s_add_u32 s13, s13, s14")
        a("s_lshl_b32 s15, s15, 15")
        a("s_and_b32 s14, s3, 3")
        self.tile_pre(wait=8)
        a("L_LPRE_D:")
        a("s_lshr_b32 s4, s3, 1")
        a("s_and_b32 s5, s3, 1")
        a("s_and_b32 s12, s98, 15")
        a("s_lshl_b32 s14, s4, 5")
        a("s_add_u32 s14, s14, s12")
        a("s_lshl_b32 s14, s14, 12")
        a(f"s_add_u32 s14, s14, {WS_O}")
        a("s_lshl_b32 s15, s5, 9" if o["lay"] else "s_lshl_b32 s15, s5, 10")
        a("s_add_u32 s6, s14, s15")
        a("s_add_u32 s7, s6, 0x10000")
        a("s_lshl_b32 s15, s5, 4")
        a("s_add_u32 s8, s14, s15")
        a("s_add_u32 s8, s8, 2048")
        a("s_add_u32 s9, s8, 0x10000")
        a("s_lshl_b32 s60, s12, 10")
        a("s_lshl_b32 s14, s4, 7")
        a("s_add_u32 s60, s60, s14")
        if o["fo3"]:
            a("s_lshr_b32 s14, s98, 4\ns_lshl_b32 s14, s14, 14\ns_add_u32 s60, s60, s14")
        a(f"s_add_u32 s60, s60, {WS_FO3 if o['fo3'] else WS_FO}")
        a("s_add_u32 s66, s40, s60\ns_addc_u32 s67, s41, 0")
        a("v_lshlrev_b32 v5, 7, v1")
        if o["f2r"]:
            a("s_lshr_b32 s63, s98, 4\ns_mul_i32 s63, s63, 6144")
        else:
            a("s_lshr_b32 s63, s98, 4\ns_lshl_b32 s63, s63, 10")
        a("s_lshl_b32 s14, s12, 2")
        a("s_add_u32 s63, s63, s14")
        a(f"s_add_u32 s63, s63, {WS_F2R if o['f2r'] else WS_F2}")
        a(f"s_mul_i32 s14, s4, {BM_PITCH}")
        a("s_lshl_b32 s15, s5, 8")
        a("s_add_u32 s14, s14, s15")
        a(f"s_add_u32 s14, s14, {L_BM}")
        if o["lay"]:
            a("v_and_b32 v4, 31, v1\nv_lshrrev_b32 v3, 5, v1")
            a("v_lshlrev_b32 v11, 3, v4\nv_lshlrev_b32 v10, 2, v3\nv_add_u32 v11, v11, v10")
            a("v_lshlrev_b32 v4, 4, v4\nv_lshlrev_b32 v3, 10, v3\nv_add_u32 v4, v4, v3")
        else:
            a("v_lshlrev_b32 v11, 2, v1")
            a("v_mov_b32 v4, v8")
        a("v_add_u32 v11, s14, v11")
        a("v_mov_b32 v10, 0")
        a("v_mov_b32 v9, s43")
        a("s_mov_b32 s68, s43\ns_mov_b32 s69, s43")
        a("s_mov_b32 s57, 0")
        if o["dry1"]:
            if o["f2r"]: a("s_mov_b32 s76, -1\ns_mov_b32 s77, 0xffff")
            else: a("s_mov_b64 s[76:77], 0xff")
        if o["pp"]:
            n = o["pp"] + 1
            regs = [60, 70, 72, 74][:n]
            for r in regs: a(f"s_mov_b64 s[{r}:{r+1}], 0")
            a("s_waitcnt lgkmcnt(0)")
            for r in regs[:-1]:
                a(f"s_load_dwordx2 s[{r}:{r+1}], s[66:67], 0 glc")
                a(f"s_sleep {max(1, 12 // n)}")
            a("L_OPRE:")
            for i in range(n):
                a(f"s_load_dwordx2 s[{regs[(i-1) % n]}:{regs[(i-1) % n]+1}], s[66:67], 0 glc")
                a(f"s_waitcnt lgkmcnt({n-1})")
                a(f"s_cmp_eq_u64 s[{regs[i]}:{regs[i]+1}], s[68:69]")
                a("s_cbranch_scc1 L_OPRE_D")
            a("s_add_u32 s57, s57, 1")
            a("s_cmp_lt_u32 s57, 0x8000")
            a("s_cbranch_scc1 L_OPRE")
        else:
            a("L_OPRE:")
            a("s_load_dwordx2 s[60:61], s[66:67], 0 glc")
            a("s_add_u32 s57, s57, 1")
            a("s_waitcnt lgkmcnt(0)")
            a("s_cmp_eq_u64 s[60:61], s[68:69]")
            a("s_cbranch_scc1 L_OPRE_D")
            a("s_cmp_lt_u32 s57, 0x10000")
            a("s_cbranch_scc1 L_OPRE")
        a("L_OPRE_D:")
        self.stamp(3)
        a("s_mov_b32 s57, 0")
        def oloads(st0, st1, o0, o1):
            a(f"buffer_load_dwordx4 v[{st0}:{st0+3}], v10, s[44:47], s8 offen sc1")
            a(f"buffer_load_dwordx4 v[{st1}:{st1+3}], v10, s[44:47], s9 offen sc1")
            a(f"buffer_load_dwordx4 v[{o0}:{o0+3}], v4, s[44:47], s6 offen sc1")
            a(f"buffer_load_dwordx4 v[{o1}:{o1+3}], v4, s[44:47], s7 offen sc1")
        oloads(32, 36, 24, 28)
        if o["ab1"]:
            a(f"s_sleep {o['ab1']}")
            oloads(104, 108, 96, 100)
        a("L_OPOLL:")
        a("s_waitcnt vmcnt(6)" if o["ab1"] else "s_waitcnt vmcnt(2)")
        a("v_max_f32 v40, v32, v36")
        a("v_sub_f32 v42, v32, v40")
        a("v_sub_f32 v43, v36, v40")
        a("v_exp_f32 v42, v42")
        a("v_exp_f32 v43, v43")
        a("v_min3_u32 v44, v33, v35, v37\nv_max3_u32 v45, v33, v35, v37")
        a("v_mul_f32 v40, v42, v34")
        a("v_fma_f32 v40, v43, v38, v40")
        a("v_rcp_f32 v40, v40")
        a("v_min_u32 v44, v44, v39\nv_max_u32 v45, v45, v39")
        a("v_mul_f32 v42, v42, v40")
        a("v_mul_f32 v43, v43, v40")
        a("s_waitcnt vmcnt(4)" if o["ab1"] else "s_waitcnt vmcnt(0)")
        a("v_min3_u32 v44, v44, v25, v27\nv_max3_u32 v45, v45, v25, v27")
        a("v_min3_u32 v44, v44, v29, v31\nv_max3_u32 v45, v45, v29, v31")
        a("v_mul_f32 v24, v24, v42")
        a("v_mul_f32 v26, v26, v42")
        a("v_cmp_ne_u32 vcc, s43, v44")
        a("v_cmp_ne_u32 s[58:59], s43, v45")
        a("v_fma_f32 v24, v28, v43, v24")
        a("v_fma_f32 v26, v30, v43, v26")
        a("s_or_b64 vcc, vcc, s[58:59]")
        a("v_cvt_pk_bf16_f32 v24, v24, v26")
        a("s_cbranch_vccz L_OGOT")
        a("s_add_u32 s57, s57, 1")
        a("s_cmp_ge_u32 s57, 0x10000")
        a("s_cbranch_scc1 L_OGOT")
        if o["ab1"]:
            a("s_waitcnt vmcnt(0)")
            for r in range(8):
                a(f"v_mov_b32 v{32+r}, v{104+r}")
            for r in range(8):
                a(f"v_mov_b32 v{24+r}, v{96+r}")
            oloads(104, 108, 96, 100)
        else:
            oloads(32, 36, 24, 28)
        a("s_branch L_OPOLL")
        a("L_OGOT:")
        a("ds_write_b32 v11, v24")
        self.stamp(6)
        if self.stamps:
            a("v_writelane_b32 v2, s57, 1")
        a("s_waitcnt lgkmcnt(0)")
        if o["dry1"]:
            a("s_cbranch_execz L_LNOBAR")
        a("s_barrier")
        a("L_LNOBAR:")
        if o.get("fst"): self.stamp(5)
        a("s_cmp_ge_u32 s3, 12")
        a("s_cbranch_scc1 L_LFLAG")
        self.tile_post(fst=o.get("fst"))
        self.stamp(7)
        EX = "L_LEXIT" if o["dry1"] else "L_FIN"
        a(f"s_branch {EX}")
        a("L_LFLAG:")
        a("s_cmp_eq_u32 s3, 12")
        a(f"s_cbranch_scc0 {EX}")
        if o["dry1"]:
            a("s_mov_b64 exec, s[76:77]")
        elif o["f2r"]:
            a("s_mov_b32 s58, -1\ns_mov_b32 s59, 0xffff")
            a("s_mov_b64 exec, s[58:59]")
        else:
            a("s_mov_b64 exec, 0xff")
        a("buffer_store_dword v9, v5, s[44:47], s63 offen sc1")
        a("s_mov_b64 exec, -1")
        if o["dry1"]:
            a("L_LEXIT:")
            a("s_cmp_eq_u32 s74, 0")
            a("s_cbranch_scc1 L_FIN")
            a("s_mov_b32 s74, 0")
            a("s_mov_b64 exec, -1")
            a("s_branch L_VPOST_LIGHT")
        else:
            a("s_branch L_FIN")
        a("L_VPOST:")
        a(f"s_cmp_lt_u32 s98, {NLIGHT}")
        if o["dry1"]:
            a("s_cbranch_scc0 L_FIN")
            a("s_mov_b32 s74, 1")
            a("s_mov_b64 s[64:65], 0\ns_mov_b64 s[76:77], 0")
            a("s_mov_b32 s6, 0\ns_mov_b32 s7, 0\ns_mov_b32 s8, 0\ns_mov_b32 s9, 0\ns_mov_b32 s62, 0\ns_mov_b32 s63, 0")
            a("s_mov_b64 exec, 0")
            a("s_branch L_OPRE_D")
        else:
            a("s_cbranch_scc1 L_VPOST_LIGHT")
            a("s_branch L_FIN")

    def tile_pre(self, wait=8, ksoff=lambda ks: ks * 4096):
        a = self.a
        self.tr_addr(28, base_sgpr=15)
        a("s_lshl_b32 s56, s14, 5")
        a("v_xor_b32 v28, s56, v28")
        a("v_and_b32 v12, 7, v6")
        a(f"v_mul_u32_u24 v13, {PART_PITCH}, v12")
        a(f"v_mul_u32_u24 v12, {BM_PITCH}, v12")
        a("v_lshlrev_b32 v30, 4, v7")
        a("v_add_u32 v12, v12, v30")
        a(f"v_add_u32 v12, {L_BM}, v12")
        a("v_lshlrev_b32 v30, 4, v7" if self.opt["lay"] else "v_lshlrev_b32 v30, 5, v7")
        a("v_add_u32 v13, v13, v30")
        a(f"s_mul_i32 s62, s12, {8*PART_PITCH}")
        a("s_lshl_b32 s57, s14, 4")
        a("s_add_u32 s57, s57, s13")
        a("s_lshl_b32 s57, s57, 3")
        a("s_add_u32 s62, s62, s57")
        a(f"s_add_u32 s62, s62, {WS_PART}")
        self.lds_wait_ge(D_CNT_W, wait, 30)
        for ks in range(8):
            a(f"ds_read_b64_tr_b16 v[{48+4*ks}:{49+4*ks}], v28 offset:{ksoff(ks)}")
            a(f"ds_read_b64_tr_b16 v[{50+4*ks}:{51+4*ks}], v28 offset:{ksoff(ks)+512}")
            if ks == 3: a("s_waitcnt lgkmcnt(4)")
        a("v_mov_b32 v113, s43\nv_mov_b32 v115, s43\nv_mov_b32 v117, s43\nv_mov_b32 v119, s43")
        a("s_mov_b32 s64, 0x00ff00ff\ns_mov_b32 s65, 0x00ff00ff")

    def tile_post(self, fst=False):
        a = self.a
        if self.opt["bmask"]:
            a("s_mov_b64 exec, s[64:65]")
        for ks in range(8):
            if ks == 4 and not self.opt["bmask"]: a("s_waitcnt vmcnt(0)")
            if self.opt.get("bx") and ks >= self.opt["bx"]:
                a("s_nop 0"); continue
            a(f"ds_read_b128 v[{80+4*ks}:{83+4*ks}], v12 offset:{ks*64}")
        if self.opt["bmask"]:
            a("s_mov_b64 exec, -1")
        for ks in range(8):
            nb = self.opt.get("bx") or 8
            a(f"s_waitcnt lgkmcnt({max(nb-1-ks, 0)})")
            acc = 20 if ks % 2 == 0 else 24
            c = "0" if ks < 2 else f"v[{acc}:{acc+3}]"
            a(f"v_mfma_f32_16x16x32_bf16 v[{acc}:{acc+3}], v[{48+4*ks}:{51+4*ks}], v[{80+4*ks}:{83+4*ks}], {c}")
        if fst: self.stamp(4)
        a("s_mov_b64 exec, s[64:65]")
        a("s_nop 6")
        a("v_add_f32 v112, v20, v24\nv_add_f32 v114, v21, v25\nv_add_f32 v116, v22, v26\nv_add_f32 v118, v23, v27")
        a("buffer_store_dwordx4 v[112:115], v13, s[44:47], s62 offen sc1")
        a(f"buffer_store_dwordx4 v[116:119], v13, s[44:47], s62 offen offset:{64 if self.opt['lay'] else 16} sc1")
        a("s_mov_b64 exec, -1")

    def chk16(self, base, dst):
        a = self.a
        for i in range(8):
            a(f"s_xor_b64 s[{base+2*i}:{base+2*i+1}], s[{base+2*i}:{base+2*i+1}], s[70:71]")
        for i in range(4):
            a(f"s_or_b64 s[{base+4*i}:{base+4*i+1}], s[{base+4*i}:{base+4*i+1}], s[{base+4*i+2}:{base+4*i+3}]")
        a(f"s_or_b64 s[{base}:{base+1}], s[{base}:{base+1}], s[{base+4}:{base+5}]")
        a(f"s_or_b64 s[{base+8}:{base+9}], s[{base+8}:{base+9}], s[{base+12}:{base+13}]")
        a(f"s_or_b64 s[{base}:{base+1}], s[{base}:{base+1}], s[{base+8}:{base+9}]")

    def hloads(self):
        a = self.a
        for u in range(4, 8):
            a(f"buffer_load_dwordx4 v[{48+4*u}:{51+4*u}], v10, s[44:47], s{60+u} offen sc1")
        a("s_mov_b32 s58, -1\ns_mov_b32 s59, 0")
        a("s_mov_b64 exec, s[58:59]")
        a("buffer_load_dwordx4 v[80:83], v10, s[44:47], s68 offen sc1")
        a("s_mov_b64 exec, -1")

    def reducer(self):
        a = self.a
        o = self.opt
        a("s_mul_i32 s12, s11, 3641")
        a("s_lshr_b32 s12, s12, 16")
        a("s_mul_i32 s13, s12, 18")
        a("s_sub_u32 s13, s11, s13")
        a("v_lshlrev_b32 v10, 1, v1")
        a("s_mul_i32 s14, s12, 1152")
        a("v_add_u32 v11, s14, v10")
        for i in range(9):
            a(f"global_load_ushort v{24+i}, v11, s[16:17] offset:{128*i}")
            a(f"global_load_ushort v{36+i}, v10, s[34:35] offset:{128*i}")
        a("s_lshr_b32 s14, s13, 1")
        a("s_lshl_b32 s14, s14, 10")
        a("s_lshl_b32 s15, s12, 7")
        a("s_add_u32 s14, s14, s15")
        a(f"s_add_u32 s14, s14, {WS_F3}")
        a("s_add_u32 s90, s40, s14\ns_addc_u32 s91, s41, 0")
        if o["f2r"]:
            a("s_lshl_b32 s14, s13, 10")
        else:
            a("s_mul_i32 s14, s13, 43")
            a("s_lshr_b32 s14, s14, 8")
            a("s_lshl_b32 s14, s14, 10")
        a("s_add_u32 s14, s14, s15")
        a(f"s_add_u32 s14, s14, {WS_F2R if o['f2r'] else WS_F2}")
        a("s_add_u32 s92, s40, s14\ns_addc_u32 s93, s41, 0")
        a("s_mov_b32 s70, s43\ns_mov_b32 s71, s43")
        a("s_waitcnt vmcnt(0)")
        for i in range(9):
            a(f"v_lshlrev_b32 v{24+i}, 16, v{24+i}")
            a(f"v_lshlrev_b32 v{36+i}, 16, v{36+i}")
        for i in range(9):
            a(f"v_mul_f32 v{24+i}, v{24+i}, v{36+i}")
        for i in range(0, 8, 2):
            a(f"v_cvt_pk_bf16_f32 v{36+i}, v{24+i}, v{25+i}")
        a("v_cvt_pk_bf16_f32 v44, v32, v32")
        a("v_mov_b32 v46, 0")
        for i in range(0, 8, 2):
            a(f"v_lshlrev_b32 v24, 16, v{36+i}\nv_and_b32 v25, 0xffff0000, v{36+i}")
            a("v_add_f32 v46, v46, v24\nv_add_f32 v46, v46, v25")
        a("v_lshlrev_b32 v24, 16, v44\nv_add_f32 v46, v46, v24")
        self.row_reduce("v_add_f32", 46)
        a("s_nop 1")
        a("v_readlane_b32 s14, v46, 0\nv_readlane_b32 s15, v46, 16\nv_readlane_b32 s56, v46, 32\nv_readlane_b32 s57, v46, 48")
        a("s_nop 1")
        a("v_mov_b32 v46, s14\nv_add_f32 v46, s15, v46\nv_add_f32 v46, s56, v46\nv_add_f32 v46, s57, v46")
        a("v_cvt_pk_bf16_f32 v46, v46, v46")
        a("v_lshlrev_b32 v46, 16, v46")
        a("v_mul_f32 v46, 0xbfb8aa3b, v46")
        a("v_exp_f32 v46, v46")
        a("s_nop 0")
        a("v_add_f32 v46, 1.0, v46")
        a("v_rcp_f32 v46, v46")
        a("s_nop 0")
        a("v_cvt_pk_bf16_f32 v46, v46, v46")
        a("v_lshlrev_b32 v46, 16, v46")
        a("v_sub_f32 v47, 1.0, v46")
        a("v_cvt_pk_bf16_f32 v47, v47, v47")
        a("v_lshlrev_b32 v47, 16, v47")
        a(f"v_mul_u32_u24 v10, {8*PART_PITCH}, v7")
        a("v_lshlrev_b32 v11, 4, v6")
        a("v_add_u32 v10, v10, v11")
        a(f"s_mul_i32 s14, s12, {PART_PITCH}")
        a("s_lshl_b32 s15, s13, 8")
        a("s_add_u32 s14, s14, s15")
        a(f"s_add_u32 s14, s14, {WS_PART}")
        for u in range(9):
            a(f"s_add_u32 s{60+u}, s14, {u*4*8*PART_PITCH}")
        a("v_mov_b32 v80, 0\nv_mov_b32 v81, s43\nv_mov_b32 v82, 0\nv_mov_b32 v83, s43")
        a("s_mul_i32 s14, s12, 1152")
        a("s_lshl_b32 s15, s13, 6")
        a("s_add_u32 s14, s14, s15")
        if o["lay"]:
            a("v_lshrrev_b32 v11, 3, v6\nv_lshlrev_b32 v11, 5, v11")
            a("v_and_b32 v24, 3, v6\nv_lshlrev_b32 v24, 3, v24\nv_add_u32 v11, v11, v24")
            a("v_bfe_u32 v24, v6, 2, 1\nv_lshlrev_b32 v24, 2, v24\nv_add_u32 v11, v11, v24")
        else:
            a("v_lshlrev_b32 v11, 2, v6")
        a("v_add_u32 v11, s14, v11")
        a("s_mov_b32 s52, s36\ns_mov_b32 s53, s37\ns_mov_b32 s54, 9216\ns_mov_b32 s55, 0x00020000")
        a("s_setprio 3")
        a("s_mov_b32 s57, 0\ns_mov_b32 s15, 0")
        a("L_RF:")
        a("s_load_dwordx16 s[16:31], s[92:93], 0 glc")
        a("s_cmp_lg_u32 s15, 0")
        a("s_cbranch_scc1 L_RF_W")
        a("s_load_dwordx16 s[72:87], s[90:91], 0 glc")
        a("s_load_dwordx2 s[88:89], s[90:91], 64 glc")
        a("s_waitcnt lgkmcnt(0)")
        a("s_xor_b64 s[88:89], s[88:89], s[70:71]")
        self.chk16(72, None)
        a("s_or_b64 s[72:73], s[72:73], s[88:89]")
        a("s_cbranch_scc1 L_RF_N")
        self.hloads()
        a("s_mov_b32 s15, 1")
        self.stamp(3)
        if o["pp2"]:
            a("s_waitcnt lgkmcnt(0)")
            self.chk16(16, None)
            a("s_cbranch_scc0 L_RF_D")
            a("s_load_dwordx16 s[16:31], s[92:93], 0 glc")
            a(f"s_sleep {o['pp2']}")
            a("L_RF_P:")
            a("s_load_dwordx16 s[72:87], s[92:93], 0 glc")
            a("s_waitcnt lgkmcnt(1)")
            self.chk16(16, None)
            a("s_cbranch_scc0 L_RF_D")
            a("s_load_dwordx16 s[16:31], s[92:93], 0 glc")
            a("s_waitcnt lgkmcnt(1)")
            self.chk16(72, None)
            a("s_cbranch_scc0 L_RF_D")
            a("s_add_u32 s57, s57, 1")
            a("s_cmp_lt_u32 s57, 0x8000")
            a("s_cbranch_scc1 L_RF_P")
            a("s_branch L_RF_D")
        a("L_RF_W:")
        a("s_waitcnt lgkmcnt(0)")
        self.chk16(16, None)
        a("s_cbranch_scc0 L_RF_D")
        a("L_RF_N:")
        a("s_add_u32 s57, s57, 1")
        a("s_cmp_lt_u32 s57, 0x10000")
        a("s_cbranch_scc1 L_RF")
        a("L_RF_D:")
        self.stamp(5)
        a("s_setprio 3")
        a("s_mov_b32 s57, 0")
        a("s_cmp_lg_u32 s15, 0")
        a("s_cbranch_scc1 L_RP2")
        a("L_RPOLL:")
        self.hloads()
        a("L_RP2:")
        for u in range(4):
            a(f"buffer_load_dwordx4 v[{48+4*u}:{51+4*u}], v10, s[44:47], s{60+u} offen sc1")
        if o["ab"]:
            a(f"s_sleep {o['ab']}")
            for u in range(4):
                a(f"buffer_load_dwordx4 v[{84+4*u}:{87+4*u}], v10, s[44:47], s{60+u} offen sc1")
            a("s_waitcnt vmcnt(8)")
        else:
            a("s_waitcnt vmcnt(4)")
        a("v_min3_u32 v24, v65, v67, v69\nv_max3_u32 v25, v65, v67, v69")
        a("v_min3_u32 v24, v24, v71, v73\nv_max3_u32 v25, v25, v71, v73")
        a("v_min3_u32 v24, v24, v75, v77\nv_max3_u32 v25, v25, v75, v77")
        a("v_min3_u32 v24, v24, v79, v81\nv_max3_u32 v25, v25, v79, v81")
        a("v_min_u32 v24, v24, v83\nv_max_u32 v25, v25, v83")
        a("v_add_f32 v28, v64, v68\nv_add_f32 v29, v66, v70")
        a("v_cmp_ne_u32 vcc, s43, v24")
        a("v_cmp_ne_u32 s[58:59], s43, v25")
        a("v_add_f32 v32, v72, v76\nv_add_f32 v33, v74, v78")
        a("s_or_b64 vcc, vcc, s[58:59]")
        a("v_add_f32 v28, v28, v32\nv_add_f32 v29, v29, v33")
        a("s_cbranch_vccz L_RHOK")
        a("s_add_u32 s57, s57, 1")
        a("s_waitcnt vmcnt(0)")
        a("s_cmp_lt_u32 s57, 0x10000")
        a("s_cbranch_scc1 L_RPOLL")
        a("L_RHOK:")
        a("v_add_f32 v28, v28, v80\nv_add_f32 v29, v29, v82")
        for swap in ("v_permlane32_swap_b32", "v_permlane16_swap_b32"):
            a("v_mov_b32 v30, v28\nv_mov_b32 v31, v29")
            a("s_nop 1")
            a(f"{swap} v28, v30\n{swap} v29, v31")
            a("s_nop 1")
            a("v_add_f32 v28, v28, v30\nv_add_f32 v29, v29, v31")
        a("v_cvt_pk_bf16_f32 v31, v28, v29")
        a("v_lshlrev_b32 v28, 16, v31\nv_and_b32 v29, 0xffff0000, v31")
        a("v_mul_f32 v28, v47, v28\nv_mul_f32 v29, v47, v29")
        a("v_cvt_pk_bf16_f32 v31, v28, v29")
        a("v_lshlrev_b32 v28, 16, v31\nv_and_b32 v29, 0xffff0000, v31")
        a("L_RCHK:")
        a("s_waitcnt vmcnt(4)" if o["ab"] else "s_waitcnt vmcnt(0)")
        a("v_min3_u32 v24, v49, v51, v53\nv_max3_u32 v25, v49, v51, v53")
        a("v_min3_u32 v24, v24, v55, v57\nv_max3_u32 v25, v25, v55, v57")
        a("v_min3_u32 v24, v24, v59, v61\nv_max3_u32 v25, v25, v59, v61")
        a("v_min_u32 v24, v24, v63\nv_max_u32 v25, v25, v63")
        a("v_add_f32 v26, v48, v52\nv_add_f32 v27, v50, v54")
        a("v_cmp_ne_u32 vcc, s43, v24")
        a("v_cmp_ne_u32 s[58:59], s43, v25")
        a("v_add_f32 v30, v56, v60\nv_add_f32 v31, v58, v62")
        a("s_or_b64 vcc, vcc, s[58:59]")
        a("v_add_f32 v26, v26, v30\nv_add_f32 v27, v27, v31")
        a("s_cbranch_vccz L_RGOT")
        a("s_add_u32 s57, s57, 1")
        a("s_cmp_ge_u32 s57, 0x10000")
        a("s_cbranch_scc1 L_RGOT")
        if o["ab"]:
            a("s_waitcnt vmcnt(0)")
            for r in range(16):
                a(f"v_mov_b32 v{48+r}, v{84+r}")
            for u in range(4):
                a(f"buffer_load_dwordx4 v[{84+4*u}:{87+4*u}], v10, s[44:47], s{60+u} offen sc1")
        else:
            for u in range(4):
                a(f"buffer_load_dwordx4 v[{48+4*u}:{51+4*u}], v10, s[44:47], s{60+u} offen sc1")
        a("s_branch L_RCHK")
        a("L_RGOT:")
        self.stamp(6)
        if self.stamps:
            a("v_writelane_b32 v2, s57, 1")
        for swap in ("v_permlane32_swap_b32", "v_permlane16_swap_b32"):
            a("v_mov_b32 v30, v26\nv_mov_b32 v31, v27")
            a("s_nop 1")
            a(f"{swap} v26, v30\n{swap} v27, v31")
            a("s_nop 1")
            a("v_add_f32 v26, v26, v30\nv_add_f32 v27, v27, v31")
        a("v_cvt_pk_bf16_f32 v30, v26, v27")
        a("v_lshlrev_b32 v26, 16, v30\nv_and_b32 v27, 0xffff0000, v30")
        a("v_mul_f32 v26, v46, v26\nv_mul_f32 v27, v46, v27")
        a("v_cvt_pk_bf16_f32 v30, v26, v27")
        a("v_lshlrev_b32 v26, 16, v30\nv_and_b32 v27, 0xffff0000, v30")
        a("v_add_f32 v26, v26, v28\nv_add_f32 v27, v27, v29")
        a("v_cvt_pk_bf16_f32 v30, v26, v27")
        a("s_mov_b64 exec, 0xffff")
        a(f"buffer_store_dword v30, v11, s[52:55], 0 offen {o['osc']}".rstrip())
        a("s_cmp_eq_u32 s11, 0")
        a("s_cbranch_scc0 L_RDONE")
        a("s_mov_b64 exec, 1")
        a("v_mov_b32 v11, s43")
        a("buffer_store_dword v11, off, s[44:47], 0 sc1")
        a("L_RDONE:")
        a("s_mov_b64 exec, -1")
        self.stamp(7)

    def epilogue(self):
        a = self.a
        a("L_FIN:")
        if self.stamps:
            a("s_lshl_b32 s14, s2, 4")
            a("s_add_u32 s14, s14, s3")
            a("s_lshl_b32 s14, s14, 6")
            a(f"s_add_u32 s14, s14, {STAMP_OFF}")
            a("s_add_u32 s40, s40, s14\ns_addc_u32 s41, s41, 0")
            a("v_mov_b32 v3, 0")
            a("v_and_b32 v4, 63, v0")
            a("v_lshlrev_b32 v4, 3, v4")
            a("s_mov_b64 exec, 0xff")
            a("global_store_dwordx2 v4, v[2:3], s[40:41]")
        a("L_END:")
        a("s_endpgm")

    def build(self):
        self.prologue()
        self.vwave_first = True
        self.vwave()
        self.kwave()
        self.post()
        self.epilogue()
        return wrap(self.a.text(), NWG, 1024, LDS_ALLOC, self.opt["vgpr"], sgpr=102)

if __name__ == "__main__":
    stamps = "--stamps" in sys.argv
    opt = {}
    outs = []
    for x in sys.argv[1:]:
        if x.startswith("--"):
            if "=" in x:
                k, v = x[2:].split("=")
                if v in ("True", "False"): v = (v == "True")
                elif v.lstrip("-").isdigit(): v = int(v)
                opt[k] = v
        else:
            outs.append(x)
    txt = Gen(stamps=stamps, **opt).build()
    open(outs[0] if outs else "k.s", "w").write(txt)
```

```python
import sys
from asmlib import *
import rolemap

NWG = 256
NLIGHT = 48
WD0 = 46
L_W = 0
L_KSCR = 98304
L_SMALL = 131072
L_S1SLOT = 73728
L_OSLOT = L_KSCR
L_Q = L_SMALL + 4096
L_P = L_Q + 512
L_BM = L_P + 2048
BM_PITCH = 528
LDS_BYTES = L_BM + 8 * BM_PITCH
LDS_ALLOC = 143360
D_L = 768
D_CNT_S1 = 776
D_FLAG_Q = 777
D_CNT_M = 778
D_CNT_O = 779
D_CNT_W = 780
D_CNT_HA = 781
D_CNT_VISS = 782
D_FLAG_S1P = 783
D_FLAG_P = 784
D_CNT_KISS = 792
D_CNT_VL = 793
D_ZERO = 800
D_M = 1022
D_LP = 864
def sm(d): return L_SMALL + 4 * d
WS_EPOCH = 0
WS_FO = 0x4000
WS_F2 = 0x8000
WS_F3 = 0x9000
WS_S1 = 0x10000
WS_FO3 = 0x80000
WS_F2R = 0x90000
S1_PITCH = 3328 * 16
WS_O = 0x100000
WS_PART = 0x200000
PART_PITCH = 576 * 8
WS_BYTES = 0x400000
STAMP_OFF = 0x10000000
SCALE_LOG2E = 0.08838834764831845 * 1.4426950408889634

import struct
def f32bits(x): return struct.unpack("<I", struct.pack("<f", x))[0]

class Gen:
    def __init__(self, stamps=False, **opt):
        self.a = Asm()
        self.stamps = stamps
        self.opt = dict(wd="late", gate="all", kiss=True, vgpr=128, red0=0, ofl="cnto", kpost_prio=3, plan="Y", viss=8, wo="viss", ngate=6, qf="after", win=12, win3=4, swap=1, cpf=2, ab=0, ab1=0, lay=1, c3u=0, c3w=0, lal=0, bmask=0, numa=0, npol=0, pp=0, pp2=0, fo3=0, f2r=0, dry1=0, tlb=0, osc="", kvp=1, hx=0)
        self.opt.update(opt)

    def stamp(self, idx):
        if self.stamps:
            self.a("s_memrealtime s[96:97]")
            self.a("s_waitcnt lgkmcnt(0)")
            self.a(f"v_writelane_b32 v2, s96, {idx}")

    def lds_wait_ge(self, dword, value, vt, sleep=1):
        a = self.a
        lab = a.label("L_lw"); done = a.label("L_lwd")
        a(f"v_mov_b32 v{vt+1}, {sm(dword)}")
        a("s_mov_b32 s57, 0")
        a(f"{lab}:")
        a(f"ds_read_b32 v{vt}, v{vt+1}")
        a("s_waitcnt lgkmcnt(0)")
        a(f"v_readfirstlane_b32 s56, v{vt}")
        a("s_add_u32 s57, s57, 1")
        a(f"s_cmp_ge_u32 s56, {value}")
        a(f"s_cbranch_scc1 {done}")
        a(f"s_sleep {sleep}")
        a("s_cmp_lt_u32 s57, 0x40000")
        a(f"s_cbranch_scc1 {lab}")
        a(f"{done}:")

    def lds_inc(self, dword, vt, rtn=False):
        a = self.a
        a("s_mov_b64 s[58:59], exec")
        a("s_mov_b64 exec, 1")
        a(f"v_mov_b32 v{vt}, {sm(dword)}")
        a(f"v_mov_b32 v{vt+1}, 1")
        if rtn:
            a(f"ds_add_rtn_u32 v{vt+2}, v{vt}, v{vt+1}")
            a("s_waitcnt lgkmcnt(0)")
            a(f"v_readfirstlane_b32 s56, v{vt+2}")
        else:
            a(f"ds_add_u32 v{vt}, v{vt+1}")
        a("s_mov_b64 exec, s[58:59]")

    def flag_store(self, soff, vt):
        a = self.a
        a(f"v_mov_b32 v{vt}, s43")
        a("s_mov_b64 exec, 1")
        a(f"buffer_store_dword v{vt}, off, s[44:47], s{soff} sc1")
        a("s_mov_b64 exec, -1")

    def row_reduce(self, op, v):
        a = self.a
        for ctl in ("quad_perm:[1,0,3,2]", "quad_perm:[2,3,0,1]", "row_half_mirror", "row_mirror"):
            a("s_nop 1")
            a(f"{op}_dpp v{v}, v{v}, v{v} {ctl} row_mask:0xf bank_mask:0xf")

    def qfetch(self):
        a = self.a
        lab = a.label("L_qf")
        a(f"s_mul_i32 s14, s4, {S1_PITCH}")
        a("s_lshl_b32 s12, s5, 10")
        a("s_add_u32 s14, s14, s12")
        a("s_lshl_b32 s12, s15, 8")
        a("s_add_u32 s14, s14, s12")
        a(f"s_add_u32 s14, s14, {WS_S1}")
        a("s_add_u32 s12, s40, s14\ns_addc_u32 s13, s41, 0")
        a("s_mov_b32 s11, 0")
        a(f"{lab}:")
        a("s_load_dwordx16 s[16:31], s[12:13], 0 glc")
        a("s_load_dwordx16 s[56:71], s[12:13], 64 glc")
        a("s_load_dwordx16 s[72:87], s[12:13], 128 glc")
        a("s_load_dwordx8 s[32:39], s[12:13], 192 glc")
        a("s_load_dwordx8 s[88:95], s[12:13], 224 glc")
        a("s_add_u32 s11, s11, 1")
        a("s_cmp_ge_u32 s11, 0x8000")
        a(f"s_cbranch_scc1 {lab}_go")
        a("s_waitcnt lgkmcnt(0)")
        a("s_xor_b32 s14, s31, s43\ns_xor_b32 s100, s71, s43\ns_or_b32 s14, s14, s100")
        a("s_xor_b32 s100, s87, s43\ns_or_b32 s14, s14, s100")
        a("s_xor_b32 s100, s39, s43\ns_or_b32 s14, s14, s100")
        a("s_xor_b32 s100, s95, s43\ns_or_b32 s14, s14, s100")
        a(f"s_cbranch_scc1 {lab}")
        regs = list(range(16, 32)) + list(range(56, 72)) + list(range(72, 88)) + list(range(32, 40)) + list(range(88, 96))
        for lane, r in enumerate(regs):
            a(f"v_writelane_b32 v24, s{r}, {lane}")
        a("s_mov_b32 s100, 0xaaaaaaaa\ns_mov_b32 s101, 0xaaaaaaaa")
        a("s_nop 0")
        a("v_cmp_ne_u32 vcc, s43, v24")
        a("s_and_b64 vcc, vcc, s[100:101]")
        a(f"s_cbranch_vccnz {lab}")
        a(f"{lab}_go:")
        a("s_waitcnt lgkmcnt(0)")
        a("v_lshrrev_b32 v25, 1, v1")
        a("v_lshlrev_b32 v25, 2, v25")
        a("s_lshl_b32 s14, s15, 7")
        a(f"s_add_u32 s14, s14, {L_Q}")
        a("v_add_u32 v25, s14, v25")
        a("s_mov_b32 s100, 0x55555555\ns_mov_b32 s101, 0x55555555")
        a("s_mov_b64 exec, s[100:101]")
        a("ds_write_b32 v25, v24")
        a("s_mov_b64 exec, -1")
        a("s_load_dwordx16 s[16:31], s[0:1], 0")
        a("s_load_dwordx8 s[32:39], s[0:1], 64")
        a("s_waitcnt lgkmcnt(0)")
        self.lds_inc(D_FLAG_Q, 25)

    def prologue(self):
        a = self.a
        if self.stamps:
            a("s_memrealtime s[96:97]")
        a(f"s_cmp_ge_u32 s2, {NWG}")
        a("s_cbranch_scc1 L_END")
        a("s_load_dwordx16 s[16:31], s[0:1], 0")
        a("s_load_dwordx8 s[32:39], s[0:1], 64")
        a("s_load_dwordx2 s[40:41], s[0:1], 96")
        T = rolemap.tables(self.opt["plan"])
        a("s_and_b32 s99, s2, 7")
        a("s_lshl_b32 s99, s99, 3")
        def look(tab, dst):
            lo, hi = rolemap.pack(tab)
            a(f"s_mov_b32 s56, 0x{lo:08x}\ns_mov_b32 s57, 0x{hi:08x}")
            a("s_lshr_b64 s[56:57], s[56:57], s99")
            a(f"s_and_b32 s{dst}, s56, 0xff")
        look(T["nL"], 60); look(T["Lbase"], 61); look(T["Sbase"], 62); look(T["nD"], 63); look(T["Dbase"], 64)
        if T["use3"]:
            look(T["n3"], 66); look(T["K3base"], 67)
        a("s_lshr_b32 s65, s2, 3")
        if self.opt["lal"]:
            assert all(n == 6 for n in T["nL"])
            a("s_and_b32 s98, s2, 7")
            a("s_and_b32 s68, s65, 1\ns_lshl_b32 s68, s68, 3\ns_add_u32 s98, s98, s68")
            a("s_lshr_b32 s68, s65, 1\ns_lshl_b32 s68, s68, 4\ns_add_u32 s98, s98, s68")
        else:
            a("s_add_u32 s98, s61, s65")
        a("s_mov_b32 s99, 255")
        a("s_cmp_lt_u32 s65, s60")
        a("s_cbranch_scc1 L_ROLE")
        a("s_sub_u32 s65, s65, s60")
        if T["skip3"]:
            a("s_sub_u32 s69, s65, s66")
            a("s_add_u32 s68, s64, s69")
            a("s_cmp_lt_u32 s69, s63")
        else:
            a("s_add_u32 s68, s64, s65")
            a("s_cmp_lt_u32 s65, s63")
        a("s_cselect_b32 s99, s68, 255")
        if T["use3"]:
            a("s_add_u32 s98, s67, s65\ns_lshl_b32 s98, s98, 3")
            a(f"s_add_u32 s98, s98, {NLIGHT + 3}")
            a("s_cmp_lt_u32 s65, s66")
            a("s_cbranch_scc1 L_ROLE")
            a("s_add_u32 s68, s62, s65\ns_sub_u32 s68, s68, s66")
            a("s_mul_i32 s69, s68, 9363\ns_lshr_b32 s69, s69, 16")
            a("s_mul_i32 s70, s69, 7\ns_sub_u32 s68, s68, s70")
            a("s_lshl_b32 s98, s69, 3\ns_add_u32 s98, s98, s68")
            a("s_cmp_ge_u32 s68, 3")
            a(f"s_addc_u32 s98, s98, {NLIGHT}")
        else:
            a("s_add_u32 s98, s62, s65")
            a(f"s_add_u32 s98, s98, {NLIGHT}")
        a("L_ROLE:")
        a("v_and_b32 v1, 63, v0")
        a("v_lshrrev_b32 v9, 6, v0")
        a("v_lshlrev_b32 v3, 2, v0")
        a(f"v_add_u32 v3, {L_SMALL}, v3")
        a("v_mov_b32 v4, 0")
        a("v_mov_b32 v5, 0xff800000")
        a(f"v_cmp_le_u32 vcc, {D_M}, v0")
        a("v_readfirstlane_b32 s3, v9")
        a("s_nop 0")
        a("v_cndmask_b32 v4, v4, v5, vcc")
        if self.opt["swap"]:
            a("s_xor_b32 s3, s3, 8")
        a("ds_write_b32 v3, v4")
        if self.opt["cpf"] == 1:
            a("s_cmp_eq_u32 s3, 7")
            a("s_cbranch_scc0 L_NOCPF")
            a("s_getpc_b64 s[12:13]")
            a("L_CPFPC:")
            a(f"s_sub_u32 s12, s12, L_CPFPC-{NAME}_kernel")
            a("s_subb_u32 s13, s13, 0")
            a("v_lshlrev_b32 v10, 7, v1")
            a("global_load_dword v48, v10, s[12:13]")
            a("v_add_u32 v10, 0x2000, v10")
            a(f"v_cmp_gt_u32 vcc, L_END-{NAME}_kernel, v10")
            a("s_and_b64 exec, exec, vcc")
            a("global_load_dword v49, v10, s[12:13]")
            a("s_mov_b64 exec, -1")
            a("L_NOCPF:")
        elif self.opt["cpf"] == 2:
            a("s_cmp_eq_u32 s3, 7")
            a("s_cbranch_scc0 L_NOCPF")
            a("s_cmp_lt_u32 s2, 16")
            a("s_cbranch_scc0 L_NOCPF")
            a("s_getpc_b64 s[12:13]")
            a("L_CPFPC:")
            a(f"s_sub_u32 s12, s12, L_CPFPC-{NAME}_kernel")
            a("s_subb_u32 s13, s13, 0")
            a("v_lshlrev_b32 v10, 7, v1")
            a("s_lshr_b32 s14, s2, 3\ns_lshl_b32 s14, s14, 13")
            a("v_add_u32 v10, s14, v10")
            a(f"v_cmp_gt_u32 vcc, L_END-{NAME}_kernel, v10")
            a("s_and_b64 exec, exec, vcc")
            a("global_load_dword v48, v10, s[12:13]")
            a("s_mov_b64 exec, -1")
            a("L_NOCPF:")
        a("v_and_b32 v6, 15, v1")
        a("v_lshrrev_b32 v7, 4, v1")
        a("v_lshlrev_b32 v8, 4, v1")
        if self.opt["kvp"]:
            a("v_lshlrev_b32 v9, 12, v7")
            a("v_lshl_add_u32 v9, v6, 4, v9")
        if self.opt["numa"]:
            a("s_lshr_b32 s6, s2, 3\ns_lshl_b32 s6, s6, 2\ns_and_b32 s7, s2, 3\ns_or_b32 s6, s6, s7")
            a("s_lshr_b32 s4, s6, 4")
            a("s_and_b32 s5, s6, 15")
            a("s_lshr_b32 s7, s2, 2\ns_lshr_b32 s8, s6, 1\ns_xor_b32 s7, s7, s8")
            a(f"s_xor_b32 s7, s7, {self.opt['npol']}")
            a("s_and_b32 s7, s7, 1")
            a("s_lshl_b32 s6, s6, 20")
            a("s_lshl_b32 s7, s7, 13")
            a("s_add_u32 s6, s6, s7")
            a("s_add_u32 s6, s6, 0xC0000")
            a("s_add_u32 s7, s3, s2")
            a("s_and_b32 s7, s7, 7")
            a("s_lshl_b32 s7, s7, 15")
            a("s_add_u32 s6, s6, s7")
            a("s_add_u32 s7, s6, 4096")
            a("s_add_u32 s8, s6, 16384")
            a("s_add_u32 s9, s6, 20480")
        else:
            a("s_lshr_b32 s4, s2, 5")
            a("s_and_b32 s5, s2, 15")
            if self.opt["hx"]:
                a(f"s_xor_b32 s5, s5, {self.opt['hx']}")
            a("s_lshl_b32 s6, s4, 4")
            a("s_add_u32 s6, s6, s5")
            a("s_lshl_b32 s6, s6, 20")
            a("s_lshr_b32 s7, s2, 4")
            a("s_and_b32 s7, s7, 1")
            a("s_lshl_b32 s7, s7, 17")
            a("s_add_u32 s6, s6, s7")
            a("s_add_u32 s6, s6, 0xC0000")
            a("s_add_u32 s7, s3, s2")
            a("s_and_b32 s7, s7, 7")
            a("s_lshl_b32 s7, s7, 14")
            a("s_add_u32 s6, s6, s7")
            a("s_add_u32 s7, s6, 4096")
            a("s_add_u32 s8, s6, 8192")
            a("s_add_u32 s9, s6, 12288")
        a("s_and_b32 s10, s3, 7")
        a(f"s_sub_u32 s11, s98, {NLIGHT}")
        a("s_cmp_ge_u32 s3, 8")
        a("s_cbranch_scc1 L_VPRO")
        a("s_waitcnt lgkmcnt(0)")
        self.common_after_args()
        a("s_branch L_KWAVE")
        a("L_VPRO:")
        a("v_and_b32 v10, 7, v6")
        a("v_mul_u32_u24 v10, 1152, v10")
        a("v_lshlrev_b32 v11, 4, v7")
        a("v_add_u32 v10, v10, v11")
        a("s_mul_i32 s14, s10, 192")
        a("v_add_u32 v10, s14, v10")
        a("s_mov_b32 s12, 8192\ns_mov_b32 s13, s11\ns_mov_b32 s54, 4718592")
        a("s_cmp_lt_i32 s11, 64\ns_cbranch_scc1 L_S1SEL0")
        a("s_mov_b32 s54, 5308416\ns_mov_b32 s12, 9216\ns_sub_u32 s13, s11, 64")
        a("s_cmp_lt_u32 s11, 136\ns_cbranch_scc1 L_S1SEL0")
        a("s_sub_u32 s13, s11, 136")
        a("L_S1SEL0:")
        a("s_mov_b32 s55, 0x00020000")
        a("s_lshl_b32 s13, s13, 7")
        self.wtile_lane_offsets(12, 12, 13, 14)
        a("s_mul_i32 s14, s10, 96")
        a("s_mul_i32 s14, s14, s12")
        a("s_add_u32 s14, s14, s13")
        a("s_lshl_b32 s15, s12, 3")
        a("s_mul_i32 s56, s10, 12288")
        a("s_waitcnt lgkmcnt(0)")
        self.common_after_args()

    def common_after_args(self):
        a = self.a
        if self.stamps:
            a("v_mov_b32 v2, 0")
            a("v_writelane_b32 v2, s96, 0")
        a("s_load_dword s42, s[40:41], 0")
        a("s_mov_b32 s44, s40\ns_mov_b32 s45, s41")
        a(f"s_mov_b32 s46, {WS_BYTES}\ns_mov_b32 s47, 0x00020000")

    def setidx(self, d):
        a = self.a
        if self.opt["numa"]:
            a(f"s_lshr_b32 s{d}, s5, 1\ns_lshl_b32 s{d}, s{d}, 2\ns_xor_b32 s{d}, s{d}, s2\ns_lshr_b32 s{d}, s{d}, 2")
            a(f"s_xor_b32 s{d}, s{d}, {self.opt['npol']}\ns_and_b32 s{d}, s{d}, 1")
        else:
            a(f"s_lshr_b32 s{d}, s2, 4\ns_and_b32 s{d}, s{d}, 1")

    def tag_ready(self):
        a = self.a
        a("s_waitcnt lgkmcnt(0)")
        a("s_mul_i32 s43, s42, 0x9E3779B1")
        a("s_add_u32 s43, s43, 0x7F4A7C15")

    def wtile_lane_offsets(self, pitch_sgpr, ve, vo, vt):
        a = self.a
        a(f"v_lshrrev_b32 v{vt}, 3, v1")
        a(f"v_mul_lo_u32 v{ve}, v{vt}, s{pitch_sgpr}")
        a(f"v_and_b32 v{vt}, 1, v7")
        a(f"v_lshlrev_b32 v{vt}, 1, v{vt}")
        a(f"v_and_b32 v{vo}, 7, v1")
        a(f"v_xor_b32 v{vt}, v{vt}, v{vo}")
        a(f"v_lshlrev_b32 v{vo}, 4, v{vt}")
        a(f"v_add_u32 v{ve}, v{ve}, v{vo}")
        a(f"v_xor_b32 v{vo}, 64, v{ve}")

    def tr_addr(self, v0, base_const=None, base_sgpr=None):
        a = self.a
        t = v0 + 3
        a(f"v_lshrrev_b32 v{v0}, 2, v6")
        a(f"v_lshlrev_b32 v{t}, 3, v7")
        a(f"v_add_u32 v{t}, v{t}, v{v0}")
        a(f"v_lshlrev_b32 v{t}, 7, v{t}")
        a(f"v_lshrrev_b32 v{v0}, 1, v{v0}")
        a(f"v_and_b32 v{v0+1}, 1, v7")
        a(f"v_lshlrev_b32 v{v0+1}, 1, v{v0+1}")
        a(f"v_or_b32 v{v0}, v{v0}, v{v0+1}")
        a(f"v_lshlrev_b32 v{v0}, 5, v{v0}")
        a(f"v_add_u32 v{t}, v{t}, v{v0}")
        a(f"v_and_b32 v{v0}, 3, v6")
        a(f"v_lshlrev_b32 v{v0}, 3, v{v0}")
        a(f"v_add_u32 v{v0}, v{t}, v{v0}")
        if base_sgpr is not None:
            a(f"v_add_u32 v{v0}, s{base_sgpr}, v{v0}")
        elif base_const:
            a(f"v_add_u32 v{v0}, {base_const}, v{v0}")
        a(f"v_xor_b32 v{v0+1}, 32, v{v0}")
        a(f"v_xor_b32 v{v0+2}, 64, v{v0}")
        a(f"v_xor_b32 v{v0+3}, 0x60, v{v0}")

    def s1job(self):
        a = self.a
        a("s_setprio 3")
        a("s_mov_b32 s52, s22\ns_mov_b32 s53, s23")
        a("s_cmp_lt_u32 s11, 64\ns_cbranch_scc1 L_S1SEL")
        a("s_mov_b32 s52, s28\ns_mov_b32 s53, s29")
        a("s_cmp_lt_u32 s11, 136\ns_cbranch_scc1 L_S1SEL")
        a("s_mov_b32 s52, s30\ns_mov_b32 s53, s31")
        a("L_S1SEL:")
        def dma(u):
            a(f"s_add_u32 m0, s56, {L_W + u*1024}")
            a("s_add_u32 s14, s14, s15" if u > 0 else "s_nop 0")
            a(f"buffer_load_dwordx4 v{12 + (u & 1)}, s[52:55], s14 offen nt lds")
        def xl():
            for ks in range(3):
                a(f"global_load_dwordx4 v[{16+4*ks}:{19+4*ks}], v10, s[16:17] offset:{64*ks}")
        W, W3 = self.opt["win"], self.opt["win3"]
        if W >= 12 and not self.opt["c3w"]:
            for u in range(12): dma(u)
            xl()
            a("s_barrier")
            self.stamp(1)
        else:
            xl()
            a("s_and_b32 s57, s11, 7")
            a("s_cmp_eq_u32 s57, 3")
            a("s_cbranch_scc0 L_S1WN")
            if self.opt["c3w"] == 1:
                a("s_cmp_ge_u32 s11, 64")
                a("s_cbranch_scc0 L_S1WN")
            for u in range(W3): dma(u)
            a("s_barrier")
            self.stamp(1)
            for u in range(W3, 12):
                a(f"s_waitcnt vmcnt({W3-1})")
                dma(u)
            a("s_branch L_S1WD")
            a("L_S1WN:")
            for u in range(min(W, 12)): dma(u)
            a("s_barrier")
            self.stamp(1)
            for u in range(W, 12):
                a(f"s_waitcnt vmcnt({W-1})")
                dma(u)
            a("L_S1WD:")
        self.tr_addr(28, base_sgpr=56)
        a("s_waitcnt vmcnt(0)")
        def rd(ks):
            for t in range(4):
                for hf in range(2):
                    r = 48 + (ks*4+t)*4 + hf*2
                    a(f"ds_read_b64_tr_b16 v[{r}:{r+1}], v{28+t} offset:{ks*4096 + hf*512}")
        def mm(ks):
            for t in range(4):
                r = 48 + (ks*4+t)*4
                c = "0" if ks == 0 else f"v[{32+4*t}:{35+4*t}]"
                a(f"v_mfma_f32_16x16x32_bf16 v[{32+4*t}:{35+4*t}], v[{r}:{r+3}], v[{16+4*ks}:{19+4*ks}], {c}")
        rd(0)
        a("s_waitcnt lgkmcnt(7)")
        rd(1)
        a("s_waitcnt lgkmcnt(8)")
        mm(0)
        rd(2)
        a("s_waitcnt lgkmcnt(8)")
        mm(1)
        a("s_waitcnt lgkmcnt(0)")
        mm(2)
        a("v_lshlrev_b32 v10, 3, v7")
        a("v_add_u32 v10, v10, v6")
        a("v_lshlrev_b32 v10, 4, v10")
        a("s_lshl_b32 s14, s10, 11")
        a(f"s_add_u32 s14, s14, {L_S1SLOT}")
        a("v_add_u32 v10, s14, v10")
        a("s_mov_b32 s58, 0x00ff00ff\ns_mov_b32 s59, 0x00ff00ff")
        a("s_nop 1")
        a("s_mov_b64 exec, s[58:59]")
        for t in range(4):
            a(f"ds_write_b128 v10, v[{32+4*t}:{35+4*t}] offset:{t*512}")
        a("s_mov_b64 exec, -1")
        a("s_waitcnt lgkmcnt(0)")
        self.lds_inc(D_CNT_S1, 10, rtn=True)
        a("s_cmp_eq_u32 s56, 5")
        a("s_cbranch_scc0 L_S1DONE")
        a("v_and_b32 v10, 31, v1")
        a("v_lshlrev_b32 v10, 4, v10")
        a("v_lshrrev_b32 v11, 5, v1")
        a("v_lshlrev_b32 v12, 9, v11")
        a("v_add_u32 v10, v10, v12")
        a(f"v_add_u32 v10, {L_S1SLOT}, v10")
        for sl in range(6):
            for i in range(2):
                r = 48 + (sl*2+i)*4
                a(f"ds_read_b128 v[{r}:{r+3}], v10 offset:{sl*2048 + i*1024}")
        a("v_and_b32 v12, 7, v1")
        a(f"s_mov_b32 s14, {S1_PITCH}")
        a("v_mul_lo_u32 v12, v12, s14")
        a("v_bfe_u32 v13, v1, 3, 2")
        a("v_lshlrev_b32 v14, 2, v11")
        a("v_add_u32 v13, v13, v14")
        a("v_lshlrev_b32 v13, 4, v13")
        a("v_add_u32 v12, v12, v13")
        a("s_lshl_b32 s14, s11, 8")
        a(f"s_add_u32 s14, s14, {WS_S1}")
        self.tag_ready()
        for i in range(2):
            for c in range(4):
                R = lambda sl: 48 + (sl*2+i)*4 + c
                d = 16 + 4*i + c
                a(f"v_add_f32 v{d}, v{R(0)}, v{R(1)}")
                a(f"v_add_f32 v{R(2)}, v{R(2)}, v{R(3)}")
                a(f"v_add_f32 v{R(4)}, v{R(4)}, v{R(5)}")
                a(f"v_add_f32 v{d}, v{d}, v{R(2)}")
                a(f"v_add_f32 v{d}, v{d}, v{R(4)}")
        a("v_mov_b32 v25, s43\nv_mov_b32 v27, s43\nv_mov_b32 v29, s43\nv_mov_b32 v31, s43")
        a("v_cvt_pk_bf16_f32 v24, v16, v17")
        a("v_cvt_pk_bf16_f32 v26, v18, v19")
        a("v_cvt_pk_bf16_f32 v28, v20, v21")
        a("v_cvt_pk_bf16_f32 v30, v22, v23")
        a("buffer_store_dwordx4 v[24:27], v12, s[44:47], s14 offen sc1")
        a("buffer_store_dwordx4 v[28:31], v12, s[44:47], s14 offen offset:128 sc1")
        self.lds_inc(D_FLAG_S1P, 10)
        a("L_S1DONE:")
        self.stamp(6)

    def kwave(self):
        a = self.a
        o = self.opt
        a("L_KWAVE:")
        a("s_mov_b32 s48, s18\ns_mov_b32 s49, s19\ns_mov_b32 s50, 0x8000000\ns_mov_b32 s51, 0x00020000")
        a("s_setprio 2")
        if o["tlb"]:
            a("v_mov_b32 v10, s6")
            a("s_mov_b64 exec, 1")
            a("global_load_dword v112, v10, s[20:21]")
            a("s_cmp_eq_u32 s10, 0")
            a("s_cbranch_scc0 L_TLB1")
            a("s_lshl_b32 s14, s2, 14")
            a("v_mov_b32 v11, s14")
            a("global_load_dword v113, v11, s[32:33]")
            a("global_load_dword v114, v11, s[24:25]")
            a(f"v_mov_b32 v11, {WS_PART}")
            a("global_load_dword v115, v11, s[40:41]")
            a(f"v_mov_b32 v11, {WS_O}")
            a("global_load_dword v116, v11, s[40:41]")
            a("L_TLB1:")
            a("s_mov_b64 exec, -1")
        a("s_barrier")
        self.stamp(1)
        if o["qf"] == "first":
            a("s_cmp_lt_u32 s10, 6")
            a("s_cbranch_scc1 L_KGATE")
            self.tag_ready()
            a("s_sub_u32 s15, s10, 6")
            self.qfetch()
            a("s_branch L_KLOAD")
            a("L_KGATE:")
        if o["gate"] != "none":
            a(f"s_cmp_ge_u32 s10, {o['ngate']}")
            a("s_cbranch_scc1 L_KLOAD")
            lim = 64 if o["gate"] == "q" else 208
            a(f"s_cmp_ge_u32 s11, {lim}")
            a("s_cbranch_scc1 L_KLOAD")
            if o["c3u"]:
                if o["c3u"] == 1:
                    a("s_cmp_lt_u32 s11, 64")
                    a("s_cbranch_scc1 L_KG2")
                a("s_and_b32 s56, s11, 7")
                a("s_cmp_eq_u32 s56, 3")
                a("s_cbranch_scc1 L_KLOAD")
                a("L_KG2:")
            self.lds_wait_ge(D_FLAG_S1P, 1, 10)
        a("L_KLOAD:")
        KB = 48
        for u in range(16):
            if o["kvp"]:
                a(f"buffer_load_dwordx4 v[{KB+4*u}:{KB+4*u+3}], v9, s[48:51], s6 offen offset:{u*256} nt")
            else:
                a(f"buffer_load_dwordx4 v[{KB+4*u}:{KB+4*u+3}], v8, s[48:51], s{6 + u//4} offen offset:{(u%4)*1024} nt")
        self.lds_inc(D_CNT_KISS, 10)
        self.stamp(2)
        a("s_mov_b32 s61, 0")
        a("s_cmp_ge_u32 s99, 162")
        a("s_cbranch_scc1 L_NOHP")
        if o["qf"] != "first":
            a("s_cmp_ge_u32 s10, 6")
            a("s_cbranch_scc1 L_NOHP")
        self.haddr()
        a("buffer_load_dwordx4 v[120:123], v8, s[44:47], s14 offen sc1")
        a("buffer_load_dwordx4 v[124:127], v8, s[44:47], s15 offen sc1")
        a("s_mov_b32 s61, 2")
        if o["wd"] == "kearly":
            self.wd_dma_early(waitflag=True)
        a("L_NOHP:")
        a(f"s_lshl_b32 s56, s10, 12")
        a(f"s_add_u32 s56, s56, {L_KSCR}")
        a("v_xor_b32 v10, v6, v7")
        a("v_lshlrev_b32 v10, 4, v10")
        a("v_lshlrev_b32 v11, 8, v7")
        a("v_add_u32 v12, v10, v11")
        a("v_add_u32 v12, s56, v12")
        a("v_xor_b32 v13, 64, v12\nv_xor_b32 v14, 0x80, v12\nv_xor_b32 v15, 0xc0, v12")
        a("v_lshlrev_b32 v11, 8, v6")
        a("v_add_u32 v16, v10, v11")
        a("v_add_u32 v16, s56, v16")
        a("v_xor_b32 v17, 64, v16\nv_xor_b32 v18, 0x80, v16\nv_xor_b32 v19, 0xc0, v16")
        a("v_bfe_u32 v20, v6, 2, 1")
        a("v_lshlrev_b32 v20, 8, v20")
        a("v_lshlrev_b32 v21, 4, v7")
        a("v_add_u32 v20, v20, v21")
        a(f"v_add_u32 v20, {L_Q}, v20")
        self.tag_ready()
        if o["qf"] != "first":
            a("s_cmp_lt_u32 s10, 6")
            a("s_cbranch_scc1 L_QWAIT")
            a("s_sub_u32 s15, s10, 6")
            self.qfetch()
            a("s_mov_b32 s61, 0")
            a("s_cmp_ge_u32 s99, 162")
            a("s_cbranch_scc1 L_QWAIT")
            self.haddr()
            a("buffer_load_dwordx4 v[120:123], v8, s[44:47], s14 offen sc1")
            a("buffer_load_dwordx4 v[124:127], v8, s[44:47], s15 offen sc1")
            a("s_mov_b32 s61, 2")
        a("L_QWAIT:")
        self.lds_wait_ge(D_FLAG_Q, 4, 22)
        self.stamp(4)
        for j in range(4):
            a(f"ds_read_b128 v[{32+4*j}:{35+4*j}], v20 offset:{64*j}")
        a("s_cmp_eq_u32 s61, 0")
        a("s_cbranch_scc1 L_KW0")
        if o["wd"] == "kearly":
            a("s_cmp_eq_u32 s61, 2")
            a("s_cbranch_scc1 L_KW2")
            a("s_waitcnt vmcnt(10)")
            a("s_branch L_KW1")
            a("L_KW2:")
        a("s_waitcnt vmcnt(2)")
        a("s_branch L_KW1")
        a("L_KW0:")
        a("s_waitcnt vmcnt(0)")
        a("L_KW1:")
        self.stamp(5)
        ACC = [112, 116, 24, 28]
        def tile_ops(t):
            Gk, tp = t >> 1, t & 1
            for aa in range(4):
                u = 8*Gk + 2*aa + tp
                a(f"ds_write_b128 v{12+aa}, v[{KB+4*u}:{KB+4*u+3}] offset:{aa*1024}")
            for j in range(4):
                u = 8*Gk + 2*j + tp
                a(f"ds_read_b128 v[{KB+4*u}:{KB+4*u+3}], v{16+j}")
        def tile_mm(t):
            Gk, tp = t >> 1, t & 1
            for j in range(4):
                u = 8*Gk + 2*j + tp
                c = "0" if j == 0 else f"v[{ACC[t]}:{ACC[t]+3}]"
                a(f"v_mfma_f32_16x16x32_bf16 v[{ACC[t]}:{ACC[t]+3}], v[{32+4*j}:{35+4*j}], v[{KB+4*u}:{KB+4*u+3}], {c}")
        tile_ops(0)
        a("s_waitcnt lgkmcnt(6)")
        tile_ops(1)
        a("s_waitcnt lgkmcnt(8)")
        tile_mm(0)
        tile_ops(2)
        a("s_waitcnt lgkmcnt(8)")
        tile_mm(1)
        tile_ops(3)
        a("s_waitcnt lgkmcnt(8)")
        tile_mm(2)
        a("s_waitcnt lgkmcnt(0)")
        tile_mm(3)
        a("v_and_b32 v22, 1, v7")
        a("v_lshlrev_b32 v22, 2, v22")
        a("v_lshlrev_b32 v23, 3, v22")
        a("s_lshl_b32 s14, s10, 2")
        a(f"s_add_u32 s14, s14, {sm(D_LP)}")
        a("v_add_u32 v23, s14, v23")
        a(f"v_add_u32 v22, {sm(D_M)}, v22")
        a("s_mov_b32 s58, 0x00010001\ns_mov_b32 s59, 0")
        a("v_max_f32 v21, v112, v116")
        a("s_nop 3")
        a("v_max3_f32 v21, v21, v24, v28")
        self.row_reduce("v_max_f32", 21)
        a("s_mov_b64 exec, s[58:59]")
        a("ds_max_f32 v22, v21")
        a("s_mov_b64 exec, -1")
        a("s_waitcnt lgkmcnt(0)")
        self.lds_inc(D_CNT_M, 26)
        a("v_and_b32 v30, 3, v6")
        a("v_lshlrev_b32 v30, 2, v30")
        a("v_lshrrev_b32 v31, 2, v6")
        a("v_add_u32 v30, v30, v31")
        a("v_lshlrev_b32 v30, 2, v30")
        a("v_lshlrev_b32 v31, 7, v7")
        a("v_add_u32 v30, v30, v31")
        a("s_lshl_b32 s14, s10, 8")
        a(f"s_add_u32 s14, s14, {L_P}")
        a("v_add_u32 v30, s14, v30")
        a("s_lshl_b32 s15, s10, 2")
        a(f"s_add_u32 s15, s15, {sm(D_FLAG_P)}")
        a(f"s_mov_b32 s14, 0x{f32bits(SCALE_LOG2E):08x}")
        self.lds_wait_ge(D_CNT_M, 8, 26, sleep=0)
        a("ds_read_b32 v21, v22")
        a("s_waitcnt lgkmcnt(0)")
        a("v_mul_f32 v21, s14, v21")
        E = [112, 116, 24, 28]
        for t in range(4):
            a(f"v_fma_f32 v{E[t]}, v{E[t]}, s14, -v21")
        for t in range(4):
            a(f"v_exp_f32 v{E[t]}, v{E[t]}")
        a("s_nop 0")
        a("v_add_f32 v26, v112, v116")
        a("v_add_f32 v27, v24, v28")
        a("v_cvt_pk_bf16_f32 v25, v112, v116")
        a("v_cvt_pk_bf16_f32 v29, v24, v28")
        a("v_add_f32 v26, v26, v27")
        a("s_mov_b32 s58, -1\ns_mov_b32 s59, 0")
        a("s_mov_b64 exec, s[58:59]")
        a("ds_write_b32 v30, v25")
        a("ds_write_b32 v30, v29 offset:64")
        a("s_mov_b64 exec, -1")
        self.row_reduce("v_add_f32", 26)
        a("s_mov_b32 s58, 0x00010001\ns_mov_b32 s59, 0")
        a("s_mov_b64 exec, s[58:59]")
        a("ds_write_b32 v23, v26")
        a("s_mov_b64 exec, -1")
        a("v_mov_b32 v30, s15\nv_mov_b32 v31, 1")
        a("s_waitcnt lgkmcnt(0)")
        a("s_mov_b64 exec, 1")
        a("ds_write_b32 v30, v31")
        a("s_mov_b64 exec, -1")
        self.stamp(6)
        a("s_branch L_KPOST")

    def haddr(self):
        a = self.a
        a("s_mov_b32 s11, s99")
        a("s_mul_i32 s12, s11, 7282")
        a("s_lshr_b32 s12, s12, 16")
        a("s_mul_i32 s13, s12, 9")
        a("s_sub_u32 s13, s11, s13")
        a(f"s_mul_i32 s14, s10, {S1_PITCH}")
        a("s_lshl_b32 s15, s12, 10")
        a("s_add_u32 s14, s14, s15")
        a(f"s_add_u32 s14, s14, {WS_S1 + 1024*16}")
        a(f"s_add_u32 s15, s14, {1152*16}")

    def wd_dma_early(self, waitflag=False):
        a = self.a
        a("s_cmp_ge_u32 s99, 162")
        a("s_cbranch_scc1 L_NOWD")
        a("s_cmp_ge_u32 s10, 4")
        a("s_cbranch_scc1 L_NOWD")
        if waitflag:
            self.lds_wait_ge(D_FLAG_S1P, 1, 10)
        a("s_mov_b32 s11, s99")
        a("s_mul_i32 s12, s11, 7282")
        a("s_lshr_b32 s12, s12, 16")
        a("s_mul_i32 s13, s12, 9")
        a("s_sub_u32 s13, s11, s13")
        a("s_mov_b32 s52, s32\ns_mov_b32 s53, s33\ns_mov_b32 s54, 5308416\ns_mov_b32 s55, 0x00020000")
        a("s_mov_b32 s56, 1152")
        self.wtile_lane_offsets(56, 12, 13, 14)
        a("s_lshl_b32 s14, s12, 8")
        a("s_lshl_b32 s15, s10, 6")
        a("s_add_u32 s14, s14, s15")
        a("s_mul_i32 s14, s14, 1152")
        a("s_lshl_b32 s15, s13, 7")
        a("s_add_u32 s14, s14, s15")
        a("s_mul_i32 s15, s10, 12288")
        for u in range(8):
            a(f"s_add_u32 m0, s15, {L_W + u*1024}")
            a(f"s_add_u32 s14, s14, {8*1152}" if u > 0 else "s_nop 0")
            a(f"buffer_load_dwordx4 v{12 + (u & 1)}, s[52:55], s14 offen nt lds")
        a("s_mov_b32 s61, 10" if waitflag else "s_mov_b32 s61, 1")
        a("L_NOWD:")

    def vwave(self):
        a = self.a
        o = self.opt
        a("L_VWAVE:")
        a("s_mov_b32 s48, s20\ns_mov_b32 s49, s21\ns_mov_b32 s50, 0x8000000\ns_mov_b32 s51, 0x00020000")
        a(f"s_cmp_lt_u32 s98, {NLIGHT}")
        a("s_cbranch_scc1 L_VBAR")
        a("s_cmp_ge_u32 s10, 6")
        a("s_cbranch_scc1 L_VBAR")
        self.s1job()
        a("s_setprio 1")
        a("s_branch L_VGATE")
        a("L_VBAR:")
        a("s_setprio 1")
        a("s_barrier")
        self.stamp(1)
        VB = 48
        a("s_cmp_lt_u32 s3, 14")
        a("s_cbranch_scc1 L_VGATE")
        self.tag_ready()
        a("s_sub_u32 s15, s3, 12")
        self.qfetch()
        self.stamp(7)
        a("L_VGATE:")
        if o["kiss"]:
            self.lds_wait_ge(D_CNT_KISS, 8, 22)
        a("s_mov_b32 s61, 0")
        if o["wd"] == "early":
            self.wd_dma_early()
        for u in range(16):
            if o["kvp"]:
                a(f"buffer_load_dwordx4 v[{VB+4*u}:{VB+4*u+3}], v9, s[48:51], s6 offen offset:{u*256} nt")
            else:
                a(f"buffer_load_dwordx4 v[{VB+4*u}:{VB+4*u+3}], v8, s[48:51], s{6 + u//4} offen offset:{(u%4)*1024} nt")
        self.lds_inc(D_CNT_VISS, 22)
        self.stamp(2)
        a("s_lshl_b32 s14, s10, 8")
        a(f"s_add_u32 s14, s14, {L_P}")
        a("v_and_b32 v10, 1, v6")
        a("v_lshlrev_b32 v10, 7, v10")
        a("v_lshlrev_b32 v11, 4, v7")
        a("v_add_u32 v10, v10, v11")
        a("v_add_u32 v10, s14, v10")
        a(f"v_mov_b32 v11, {sm(D_ZERO)}")
        a("v_and_b32 v16, 14, v6")
        for gp in range(4):
            a(f"v_cmp_eq_u32 vcc, {4*gp}, v16")
            a("s_nop 1")
            a(f"v_cndmask_b32 v{12+gp}, v11, v10, vcc")
        a("v_lshlrev_b32 v10, 3, v6")
        a("v_add_u32 v10, v10, v7")
        a("v_lshlrev_b32 v10, 2, v10")
        a("s_lshl_b32 s14, s10, 10")
        a(f"s_add_u32 s14, s14, {L_OSLOT}")
        a("v_add_u32 v10, s14, v10")
        a("s_mov_b32 s12, 0x05040100\ns_mov_b32 s13, 0x07060302")
        a("s_lshl_b32 s60, s5, 10")
        a("s_lshl_b32 s14, s4, 7")
        a("s_add_u32 s60, s60, s14")
        self.setidx(14)
        a("s_lshl_b32 s14, s14, 2")
        a("s_add_u32 s60, s60, s14")
        a(f"s_add_u32 s60, s60, {WS_FO3 if o['fo3'] else WS_FO}")
        self.tag_ready()
        a("v_mov_b32 v11, s43")
        if o["fo3"]:
            a("v_lshlrev_b32 v9, 14, v1")
        lab = a.label("L_pw")
        a("s_lshl_b32 s14, s10, 2")
        a(f"s_add_u32 s14, s14, {sm(D_FLAG_P)}")
        a("v_mov_b32 v18, s14")
        a("s_mov_b32 s57, 0")
        a(f"{lab}:")
        a("ds_read_b32 v17, v18")
        a("s_waitcnt lgkmcnt(0)")
        a("v_readfirstlane_b32 s56, v17")
        a("s_add_u32 s57, s57, 1")
        a("s_cmp_ge_u32 s56, 1")
        a(f"s_cbranch_scc1 {lab}_d")
        a("s_sleep 2")
        a("s_cmp_lt_u32 s57, 0x40000")
        a(f"s_cbranch_scc1 {lab}")
        a(f"{lab}_d:")
        self.stamp(3)
        for gp in range(4):
            a(f"ds_read_b128 v[{28+4*gp}:{31+4*gp}], v{12+gp}")
        a("s_waitcnt vmcnt(8)")
        if o["wd"] == "early":
            a("s_cmp_eq_u32 s61, 0")
            a("s_cbranch_scc1 L_NOWINC")
            self.lds_inc(D_CNT_W, 16)
            a("L_NOWINC:")
        T = [112, 116, 44, 16]
        def L(G, i, d): return VB + 32*G + 4*i + d
        for ph in range(2):
            for dd in range(2):
                d = 2*ph + dd
                for e in range(2):
                    for rp in range(4):
                        a(f"v_perm_b32 v{T[2*dd+e]+rp}, v{L(0,2*rp+1,d)}, v{L(0,2*rp,d)}, s{12+e}")
            if ph == 0:
                a("s_waitcnt lgkmcnt(0)")
            else:
                a("s_nop 1")
            for jj in range(4):
                c = "0" if jj == 0 else f"v[{20+4*ph}:{23+4*ph}]"
                a(f"v_mfma_f32_16x16x32_bf16 v[{20+4*ph}:{23+4*ph}], v[{28+4*jj}:{31+4*jj}], v[{T[jj]}:{T[jj]+3}], {c}")
        a("s_nop 7")
        for gp in range(4):
            a(f"ds_read_b128 v[{28+4*gp}:{31+4*gp}], v{12+gp} offset:64")
        for rp in range(4):
            a(f"s_waitcnt vmcnt({6 - 2*rp})")
            if rp == 3 and o["ofl"] == "land":
                a("s_mov_b64 exec, 1")
                a(f"v_mov_b32 v16, {sm(D_CNT_VL)}\nv_mov_b32 v17, 1")
                a("ds_add_rtn_u32 v18, v16, v17")
                a("s_mov_b64 exec, -1")
            for d in range(4):
                for e in range(2):
                    a(f"v_perm_b32 v{VB+4*(2*d+e)+rp}, v{L(1,2*rp+1,d)}, v{L(1,2*rp,d)}, s{12+e}")
        self.stamp(4)
        a("s_waitcnt lgkmcnt(0)")
        if o["ofl"] == "land":
            a("v_readfirstlane_b32 s56, v18")
            a("s_cmp_eq_u32 s56, 7")
            a("s_cbranch_scc0 L_NOFL")
            a("s_mov_b64 exec, 1")
            a("buffer_store_dword v11, off, s[44:47], s60 sc1")
            a("s_mov_b64 exec, -1")
            a("L_NOFL:")
        for jj in range(4):
            for ph in range(2):
                j = 4*ph + jj
                a(f"v_mfma_f32_16x16x32_bf16 v[{20+4*ph}:{23+4*ph}], v[{28+4*jj}:{31+4*jj}], v[{VB+4*j}:{VB+4*j+3}], v[{20+4*ph}:{23+4*ph}]")
        a("s_nop 7")
        for r in range(2):
            a(f"ds_write2_b32 v10, v{20+r}, v{24+r} offset0:{r*128} offset1:{r*128+4}")
        a("s_waitcnt lgkmcnt(0)")
        self.lds_inc(D_CNT_O, 28, rtn=True)
        a("s_cmp_eq_u32 s56, 7")
        a("s_cbranch_scc0 L_VPOST")
        if o["ofl"] == "cnto":
            if o["fo3"]:
                a("s_mov_b64 exec, 7")
                a("buffer_store_dword v11, v9, s[44:47], s60 offen sc1")
            else:
                a("s_mov_b64 exec, 1")
                a("buffer_store_dword v11, off, s[44:47], s60 sc1")
            a("s_mov_b64 exec, -1")
        a(f"v_add_u32 v28, {L_OSLOT}, v8")
        for sl in range(8):
            a(f"ds_read_b128 v[{48+4*sl}:{51+4*sl}], v28 offset:{sl*1024}")
        a("v_lshrrev_b32 v29, 5, v1")
        a("v_lshlrev_b32 v29, 2, v29")
        a(f"v_add_u32 v30, {sm(D_M)}, v29")
        a("v_lshlrev_b32 v31, 3, v29")
        a(f"v_add_u32 v31, {sm(D_LP)}, v31")
        a("ds_read_b32 v44, v30")
        a("ds_read_b128 v[80:83], v31")
        a("ds_read_b128 v[84:87], v31 offset:16")
        self.setidx(15)
        a("s_lshl_b32 s14, s4, 5\ns_lshl_b32 s15, s15, 4\ns_or_b32 s14, s14, s15\ns_or_b32 s14, s14, s5")
        a("s_lshl_b32 s14, s14, 12")
        a(f"s_add_u32 s14, s14, {WS_O}")
        a("v_lshlrev_b32 v28, 4, v1" if o["lay"] else "v_lshlrev_b32 v28, 5, v1")
        a("v_mov_b32 v37, s43\nv_mov_b32 v39, s43\nv_mov_b32 v41, s43\nv_mov_b32 v43, s43\nv_mov_b32 v45, s43\nv_mov_b32 v47, s43")
        a(f"s_mov_b32 s15, 0x{f32bits(SCALE_LOG2E):08x}")
        a("v_lshlrev_b32 v29, 2, v29")
        a("s_mov_b32 s58, 1\ns_mov_b32 s59, 1")
        a("s_waitcnt lgkmcnt(0)")
        for c in range(4):
            R = lambda sl: 48 + 4*sl + c
            a(f"v_add_f32 v{R(0)}, v{R(0)}, v{R(1)}")
            a(f"v_add_f32 v{R(2)}, v{R(2)}, v{R(3)}")
            a(f"v_add_f32 v{R(4)}, v{R(4)}, v{R(5)}")
            a(f"v_add_f32 v{R(6)}, v{R(6)}, v{R(7)}")
            a(f"v_add_f32 v{R(0)}, v{R(0)}, v{R(2)}")
            a(f"v_add_f32 v{R(4)}, v{R(4)}, v{R(6)}")
            a(f"v_add_f32 v{36+2*c}, v{R(0)}, v{R(4)}")
            if c == 1:
                a("buffer_store_dwordx4 v[36:39], v28, s[44:47], s14 offen sc1")
        a(f"buffer_store_dwordx4 v[40:43], v28, s[44:47], s14 offen offset:{1024 if o['lay'] else 16} sc1")
        a("v_add_f32 v80, v80, v81\nv_add_f32 v82, v82, v83\nv_add_f32 v84, v84, v85\nv_add_f32 v86, v86, v87")
        a("v_mul_f32 v44, s15, v44")
        a("v_add_f32 v80, v80, v82\nv_add_f32 v84, v84, v86")
        a("v_add_f32 v46, v80, v84")
        a("s_mov_b64 exec, s[58:59]")
        a("buffer_store_dwordx4 v[44:47], v29, s[44:47], s14 offen offset:2048 sc1")
        a("s_mov_b64 exec, -1")
        self.stamp(5)
        a("s_branch L_VPOST")

    def post(self):
        a = self.a
        o = self.opt
        early = o["wd"] in ("early", "kearly")
        a("L_KPOST:")
        a(f"s_setprio {o['kpost_prio']}")
        a(f"s_cmp_lt_u32 s98, {NLIGHT}")
        a("s_cbranch_scc1 L_KPOST_LIGHT")
        a("s_cmp_ge_u32 s99, 162")
        a("s_cbranch_scc1 L_HDONE")
        self.haddr()
        a("s_mov_b32 s57, 0")
        a("s_branch L_HCHK")
        a("L_HPOLL:")
        a("s_sleep 8")
        a("buffer_load_dwordx4 v[120:123], v8, s[44:47], s14 offen sc1")
        a("buffer_load_dwordx4 v[124:127], v8, s[44:47], s15 offen sc1")
        a("L_HCHK:")
        a("s_add_u32 s57, s57, 1")
        a("s_waitcnt vmcnt(0)")
        a("v_min3_u32 v32, v121, v123, v125\nv_max3_u32 v33, v121, v123, v125")
        a("v_min_u32 v32, v32, v127\nv_max_u32 v33, v33, v127")
        a("v_cmp_ne_u32 vcc, s43, v32")
        a("v_cmp_ne_u32 s[58:59], s43, v33")
        a("s_or_b64 vcc, vcc, s[58:59]")
        a("s_cbranch_vccz L_HGOT")
        a("s_cmp_lt_u32 s57, 0x10000")
        a("s_cbranch_scc1 L_HPOLL")
        a("L_HGOT:")
        a("s_cmp_eq_u32 s10, 7")
        a("s_cbranch_scc1 L_HG2")
        self.stamp(3)
        a("L_HG2:")
        a("v_lshlrev_b32 v32, 16, v120\nv_and_b32 v33, 0xffff0000, v120\nv_lshlrev_b32 v34, 16, v122\nv_and_b32 v35, 0xffff0000, v122")
        a("v_lshlrev_b32 v36, 16, v124\nv_and_b32 v37, 0xffff0000, v124\nv_lshlrev_b32 v38, 16, v126\nv_and_b32 v39, 0xffff0000, v126")
        a("s_mov_b32 s14, 0xbfb8aa3b")
        for i in range(4):
            a(f"v_mul_f32 v{40+i}, s14, v{32+i}")
        for i in range(4):
            a(f"v_exp_f32 v{40+i}, v{40+i}")
        a("s_nop 0")
        for i in range(4):
            a(f"v_add_f32 v{40+i}, 1.0, v{40+i}")
        for i in range(4):
            a(f"v_rcp_f32 v{40+i}, v{40+i}")
        a("s_nop 0")
        for i in range(4):
            a(f"v_mul_f32 v{40+i}, v{32+i}, v{40+i}")
        a("v_cvt_pk_bf16_f32 v44, v40, v41\nv_cvt_pk_bf16_f32 v45, v42, v43")
        a("v_lshlrev_b32 v40, 16, v44\nv_and_b32 v41, 0xffff0000, v44\nv_lshlrev_b32 v42, 16, v45\nv_and_b32 v43, 0xffff0000, v45")
        for i in range(4):
            a(f"v_mul_f32 v{40+i}, v{40+i}, v{36+i}")
        a("v_cvt_pk_bf16_f32 v44, v40, v41\nv_cvt_pk_bf16_f32 v45, v42, v43")
        a(f"s_mul_i32 s14, s10, {BM_PITCH}")
        a(f"s_add_u32 s14, s14, {L_BM}")
        a("v_lshlrev_b32 v46, 3, v1")
        a("v_add_u32 v46, s14, v46")
        a("ds_write_b64 v46, v[44:45]")
        if not early:
            self.lds_wait_ge(D_CNT_VISS if o["wd"] == "late" else D_CNT_O, o["viss"] if o["wd"] == "late" else 8, 32)
            self.lds_wait_ge(D_FLAG_S1P, 1, 32)
            a("s_mov_b32 s52, s32\ns_mov_b32 s53, s33\ns_mov_b32 s54, 5308416\ns_mov_b32 s55, 0x00020000")
            a("s_mov_b32 s56, 1152")
            self.wtile_lane_offsets(56, 12, 13, 14)
            a("s_lshl_b32 s14, s12, 8")
            a("s_lshl_b32 s15, s10, 5")
            a("s_add_u32 s14, s14, s15")
            a("s_mul_i32 s14, s14, 1152")
            a("s_lshl_b32 s15, s13, 7")
            a("s_add_u32 s14, s14, s15")
            a("s_lshl_b32 s15, s10, 12")
            for u in range(4):
                a(f"s_add_u32 m0, s15, {L_W + u*1024}")
                a(f"s_add_u32 s14, s14, {8*1152}" if u > 0 else "s_nop 0")
                if not o.get("nowd"):
                    a(f"buffer_load_dwordx4 v{12 + (u & 1)}, s[52:55], s14 offen nt lds")
        a("s_waitcnt vmcnt(0) lgkmcnt(0)")
        self.lds_inc(D_CNT_W, 32)
        a("s_cmp_ge_u32 s10, 4")
        a("s_cbranch_scc1 L_HDONE")
        a("s_lshl_b32 s63, s13, 10")
        a("s_lshl_b32 s14, s12, 2")
        a("s_add_u32 s63, s63, s14")
        a(f"s_add_u32 s63, s63, {WS_F3}")
        a("s_add_u32 s12, s12, 16")
        a("s_lshl_b32 s13, s13, 6")
        a("s_mov_b32 s15, 0")
        a("s_mov_b32 s14, s10")
        if early:
            self.tile_pre(wait=12 if o["wd"] == "early" else 8, ksoff=lambda ks: (ks >> 1) * 12288 + (ks & 1) * 4096)
        else:
            self.tile_pre(wait=8)
        self.stamp(1)
        self.tile_post()
        self.stamp(7)
        self.lds_inc(D_CNT_HA, 32, rtn=True)
        a("s_cmp_eq_u32 s56, 3")
        a("s_cbranch_scc0 L_HDONE")
        a("v_mov_b32 v32, s43")
        a("v_lshlrev_b32 v33, 7, v1")
        a("s_mov_b64 exec, 0xff")
        a("buffer_store_dword v32, v33, s[44:47], s63 offen sc1")
        a("s_mov_b64 exec, -1")
        a("L_HDONE:")
        a("s_cmp_eq_u32 s10, 7")
        a("s_cbranch_scc0 L_FIN")
        a(f"s_sub_u32 s11, s98, {NLIGHT + o['red0']}")
        a("s_cmp_ge_u32 s11, 144")
        a("s_cbranch_scc1 L_FIN")
        a("s_setprio 0")
        self.reducer()
        a("s_branch L_FIN")

        a("L_KPOST_LIGHT:")
        if o["dry1"]:
            a("s_mov_b32 s74, 0")
        a("s_and_b32 s12, s98, 15")
        a("s_lshr_b32 s13, s98, 4")
        self.lds_wait_ge(D_CNT_VISS if o["wo"] == "viss" else D_CNT_O, 8, 32)
        a("s_mov_b32 s52, s24\ns_mov_b32 s53, s25\ns_mov_b32 s54, 4718592\ns_mov_b32 s55, 0x00020000")
        a("s_mov_b32 s56, 1152")
        self.wtile_lane_offsets(56, 12, 13, 14)
        a("s_lshl_b32 s14, s12, 8")
        a("s_lshl_b32 s15, s10, 5")
        a("s_add_u32 s14, s14, s15")
        a("s_mul_i32 s14, s14, 1152")
        a("s_mul_i32 s15, s13, 384")
        a("s_add_u32 s14, s14, s15")
        a("s_lshl_b32 s15, s10, 12")
        for u in range(4):
            for st in range(3):
                a(f"s_add_u32 m0, s15, {L_W + st*32768 + u*1024}")
                a(f"s_add_u32 s56, s14, {st*128}")
                if not o.get("nowo"):
                    a(f"buffer_load_dwordx4 v{12 + (u & 1)}, s[52:55], s56 offen nt lds")
            a(f"s_add_u32 s14, s14, {8*1152}")
        a("s_waitcnt vmcnt(0)")
        self.lds_inc(D_CNT_W, 32)
        a("L_VPOST_LIGHT:")
        a("s_cmp_ge_u32 s3, 12")
        a("s_cbranch_scc1 L_LPRE_D")
        a("s_and_b32 s12, s98, 15")
        a("s_lshr_b32 s13, s98, 4")
        a("s_mul_i32 s13, s13, 192")
        a("s_lshr_b32 s15, s3, 2")
        a("s_lshl_b32 s14, s15, 6")
        a("s_add_u32 s13, s13, s14")
        a("s_lshl_b32 s15, s15, 15")
        a("s_and_b32 s14, s3, 3")
        self.tile_pre(wait=8)
        a("L_LPRE_D:")
        a("s_lshr_b32 s4, s3, 1")
        a("s_and_b32 s5, s3, 1")
        a("s_and_b32 s12, s98, 15")
        a("s_lshl_b32 s14, s4, 5")
        a("s_add_u32 s14, s14, s12")
        a("s_lshl_b32 s14, s14, 12")
        a(f"s_add_u32 s14, s14, {WS_O}")
        a("s_lshl_b32 s15, s5, 9" if o["lay"] else "s_lshl_b32 s15, s5, 10")
        a("s_add_u32 s6, s14, s15")
        a("s_add_u32 s7, s6, 0x10000")
        a("s_lshl_b32 s15, s5, 4")
        a("s_add_u32 s8, s14, s15")
        a("s_add_u32 s8, s8, 2048")
        a("s_add_u32 s9, s8, 0x10000")
        a("s_lshl_b32 s60, s12, 10")
        a("s_lshl_b32 s14, s4, 7")
        a("s_add_u32 s60, s60, s14")
        if o["fo3"]:
            a("s_lshr_b32 s14, s98, 4\ns_lshl_b32 s14, s14, 14\ns_add_u32 s60, s60, s14")
        a(f"s_add_u32 s60, s60, {WS_FO3 if o['fo3'] else WS_FO}")
        a("s_add_u32 s66, s40, s60\ns_addc_u32 s67, s41, 0")
        a("v_lshlrev_b32 v5, 7, v1")
        if o["f2r"]:
            a("s_lshr_b32 s63, s98, 4\ns_mul_i32 s63, s63, 6144")
        else:
            a("s_lshr_b32 s63, s98, 4\ns_lshl_b32 s63, s63, 10")
        a("s_lshl_b32 s14, s12, 2")
        a("s_add_u32 s63, s63, s14")
        a(f"s_add_u32 s63, s63, {WS_F2R if o['f2r'] else WS_F2}")
        a(f"s_mul_i32 s14, s4, {BM_PITCH}")
        a("s_lshl_b32 s15, s5, 8")
        a("s_add_u32 s14, s14, s15")
        a(f"s_add_u32 s14, s14, {L_BM}")
        if o["lay"]:
            a("v_and_b32 v4, 31, v1\nv_lshrrev_b32 v3, 5, v1")
            a("v_lshlrev_b32 v11, 3, v4\nv_lshlrev_b32 v10, 2, v3\nv_add_u32 v11, v11, v10")
            a("v_lshlrev_b32 v4, 4, v4\nv_lshlrev_b32 v3, 10, v3\nv_add_u32 v4, v4, v3")
        else:
            a("v_lshlrev_b32 v11, 2, v1")
            a("v_mov_b32 v4, v8")
        a("v_add_u32 v11, s14, v11")
        a("v_mov_b32 v10, 0")
        a("v_mov_b32 v9, s43")
        a("s_mov_b32 s68, s43\ns_mov_b32 s69, s43")
        a("s_mov_b32 s57, 0")
        if o["dry1"]:
            if o["f2r"]: a("s_mov_b32 s76, -1\ns_mov_b32 s77, 0xffff")
            else: a("s_mov_b64 s[76:77], 0xff")
        if o["pp"]:
            n = o["pp"] + 1
            regs = [60, 70, 72, 74][:n]
            for r in regs: a(f"s_mov_b64 s[{r}:{r+1}], 0")
            a("s_waitcnt lgkmcnt(0)")
            for r in regs[:-1]:
                a(f"s_load_dwordx2 s[{r}:{r+1}], s[66:67], 0 glc")
                a(f"s_sleep {max(1, 12 // n)}")
            a("L_OPRE:")
            for i in range(n):
                a(f"s_load_dwordx2 s[{regs[(i-1) % n]}:{regs[(i-1) % n]+1}], s[66:67], 0 glc")
                a(f"s_waitcnt lgkmcnt({n-1})")
                a(f"s_cmp_eq_u64 s[{regs[i]}:{regs[i]+1}], s[68:69]")
                a("s_cbranch_scc1 L_OPRE_D")
            a("s_add_u32 s57, s57, 1")
            a("s_cmp_lt_u32 s57, 0x8000")
            a("s_cbranch_scc1 L_OPRE")
        else:
            a("L_OPRE:")
            a("s_load_dwordx2 s[60:61], s[66:67], 0 glc")
            a("s_add_u32 s57, s57, 1")
            a("s_waitcnt lgkmcnt(0)")
            a("s_cmp_eq_u64 s[60:61], s[68:69]")
            a("s_cbranch_scc1 L_OPRE_D")
            a("s_cmp_lt_u32 s57, 0x10000")
            a("s_cbranch_scc1 L_OPRE")
        a("L_OPRE_D:")
        self.stamp(3)
        a("s_mov_b32 s57, 0")
        def oloads(st0, st1, o0, o1):
            a(f"buffer_load_dwordx4 v[{st0}:{st0+3}], v10, s[44:47], s8 offen sc1")
            a(f"buffer_load_dwordx4 v[{st1}:{st1+3}], v10, s[44:47], s9 offen sc1")
            a(f"buffer_load_dwordx4 v[{o0}:{o0+3}], v4, s[44:47], s6 offen sc1")
            a(f"buffer_load_dwordx4 v[{o1}:{o1+3}], v4, s[44:47], s7 offen sc1")
        oloads(32, 36, 24, 28)
        if o["ab1"]:
            a(f"s_sleep {o['ab1']}")
            oloads(104, 108, 96, 100)
        a("L_OPOLL:")
        a("s_waitcnt vmcnt(6)" if o["ab1"] else "s_waitcnt vmcnt(2)")
        a("v_max_f32 v40, v32, v36")
        a("v_sub_f32 v42, v32, v40")
        a("v_sub_f32 v43, v36, v40")
        a("v_exp_f32 v42, v42")
        a("v_exp_f32 v43, v43")
        a("v_min3_u32 v44, v33, v35, v37\nv_max3_u32 v45, v33, v35, v37")
        a("v_mul_f32 v40, v42, v34")
        a("v_fma_f32 v40, v43, v38, v40")
        a("v_rcp_f32 v40, v40")
        a("v_min_u32 v44, v44, v39\nv_max_u32 v45, v45, v39")
        a("v_mul_f32 v42, v42, v40")
        a("v_mul_f32 v43, v43, v40")
        a("s_waitcnt vmcnt(4)" if o["ab1"] else "s_waitcnt vmcnt(0)")
        a("v_min3_u32 v44, v44, v25, v27\nv_max3_u32 v45, v45, v25, v27")
        a("v_min3_u32 v44, v44, v29, v31\nv_max3_u32 v45, v45, v29, v31")
        a("v_mul_f32 v24, v24, v42")
        a("v_mul_f32 v26, v26, v42")
        a("v_cmp_ne_u32 vcc, s43, v44")
        a("v_cmp_ne_u32 s[58:59], s43, v45")
        a("v_fma_f32 v24, v28, v43, v24")
        a("v_fma_f32 v26, v30, v43, v26")
        a("s_or_b64 vcc, vcc, s[58:59]")
        a("v_cvt_pk_bf16_f32 v24, v24, v26")
        a("s_cbranch_vccz L_OGOT")
        a("s_add_u32 s57, s57, 1")
        a("s_cmp_ge_u32 s57, 0x10000")
        a("s_cbranch_scc1 L_OGOT")
        if o["ab1"]:
            a("s_waitcnt vmcnt(0)")
            for r in range(8):
                a(f"v_mov_b32 v{32+r}, v{104+r}")
            for r in range(8):
                a(f"v_mov_b32 v{24+r}, v{96+r}")
            oloads(104, 108, 96, 100)
        else:
            oloads(32, 36, 24, 28)
        a("s_branch L_OPOLL")
        a("L_OGOT:")
        a("ds_write_b32 v11, v24")
        self.stamp(6)
        if self.stamps:
            a("v_writelane_b32 v2, s57, 1")
        a("s_waitcnt lgkmcnt(0)")
        if o["dry1"]:
            a("s_cbranch_execz L_LNOBAR")
        a("s_barrier")
        a("L_LNOBAR:")
        if o.get("fst"): self.stamp(5)
        a("s_cmp_ge_u32 s3, 12")
        a("s_cbranch_scc1 L_LFLAG")
        self.tile_post(fst=o.get("fst"))
        self.stamp(7)
        EX = "L_LEXIT" if o["dry1"] else "L_FIN"
        a(f"s_branch {EX}")
        a("L_LFLAG:")
        a("s_cmp_eq_u32 s3, 12")
        a(f"s_cbranch_scc0 {EX}")
        if o["dry1"]:
            a("s_mov_b64 exec, s[76:77]")
        elif o["f2r"]:
            a("s_mov_b32 s58, -1\ns_mov_b32 s59, 0xffff")
            a("s_mov_b64 exec, s[58:59]")
        else:
            a("s_mov_b64 exec, 0xff")
        a("buffer_store_dword v9, v5, s[44:47], s63 offen sc1")
        a("s_mov_b64 exec, -1")
        if o["dry1"]:
            a("L_LEXIT:")
            a("s_cmp_eq_u32 s74, 0")
            a("s_cbranch_scc1 L_FIN")
            a("s_mov_b32 s74, 0")
            a("s_mov_b64 exec, -1")
            a("s_branch L_VPOST_LIGHT")
        else:
            a("s_branch L_FIN")
        a("L_VPOST:")
        a(f"s_cmp_lt_u32 s98, {NLIGHT}")
        if o["dry1"]:
            a("s_cbranch_scc0 L_FIN")
            a("s_mov_b32 s74, 1")
            a("s_mov_b64 s[64:65], 0\ns_mov_b64 s[76:77], 0")
            a("s_mov_b32 s6, 0\ns_mov_b32 s7, 0\ns_mov_b32 s8, 0\ns_mov_b32 s9, 0\ns_mov_b32 s62, 0\ns_mov_b32 s63, 0")
            a("s_mov_b64 exec, 0")
            a("s_branch L_OPRE_D")
        else:
            a("s_cbranch_scc1 L_VPOST_LIGHT")
            a("s_branch L_FIN")

    def tile_pre(self, wait=8, ksoff=lambda ks: ks * 4096):
        a = self.a
        self.tr_addr(28, base_sgpr=15)
        a("s_lshl_b32 s56, s14, 5")
        a("v_xor_b32 v28, s56, v28")
        a("v_and_b32 v12, 7, v6")
        a(f"v_mul_u32_u24 v13, {PART_PITCH}, v12")
        a(f"v_mul_u32_u24 v12, {BM_PITCH}, v12")
        a("v_lshlrev_b32 v30, 4, v7")
        a("v_add_u32 v12, v12, v30")
        a(f"v_add_u32 v12, {L_BM}, v12")
        a("v_lshlrev_b32 v30, 4, v7" if self.opt["lay"] else "v_lshlrev_b32 v30, 5, v7")
        a("v_add_u32 v13, v13, v30")
        a(f"s_mul_i32 s62, s12, {8*PART_PITCH}")
        a("s_lshl_b32 s57, s14, 4")
        a("s_add_u32 s57, s57, s13")
        a("s_lshl_b32 s57, s57, 3")
        a("s_add_u32 s62, s62, s57")
        a(f"s_add_u32 s62, s62, {WS_PART}")
        self.lds_wait_ge(D_CNT_W, wait, 30)
        for ks in range(8):
            a(f"ds_read_b64_tr_b16 v[{48+4*ks}:{49+4*ks}], v28 offset:{ksoff(ks)}")
            a(f"ds_read_b64_tr_b16 v[{50+4*ks}:{51+4*ks}], v28 offset:{ksoff(ks)+512}")
            if ks == 3: a("s_waitcnt lgkmcnt(4)")
        a("v_mov_b32 v113, s43\nv_mov_b32 v115, s43\nv_mov_b32 v117, s43\nv_mov_b32 v119, s43")
        a("s_mov_b32 s64, 0x00ff00ff\ns_mov_b32 s65, 0x00ff00ff")

    def tile_post(self, fst=False):
        a = self.a
        if self.opt["bmask"]:
            a("s_mov_b64 exec, s[64:65]")
        for ks in range(8):
            if ks == 4 and not self.opt["bmask"]: a("s_waitcnt vmcnt(0)")
            if self.opt.get("bx") and ks >= self.opt["bx"]:
                a("s_nop 0"); continue
            a(f"ds_read_b128 v[{80+4*ks}:{83+4*ks}], v12 offset:{ks*64}")
        if self.opt["bmask"]:
            a("s_mov_b64 exec, -1")
        for ks in range(8):
            nb = self.opt.get("bx") or 8
            a(f"s_waitcnt lgkmcnt({max(nb-1-ks, 0)})")
            acc = 20 if ks % 2 == 0 else 24
            c = "0" if ks < 2 else f"v[{acc}:{acc+3}]"
            a(f"v_mfma_f32_16x16x32_bf16 v[{acc}:{acc+3}], v[{48+4*ks}:{51+4*ks}], v[{80+4*ks}:{83+4*ks}], {c}")
        if fst: self.stamp(4)
        a("s_mov_b64 exec, s[64:65]")
        a("s_nop 6")
        a("v_add_f32 v112, v20, v24\nv_add_f32 v114, v21, v25\nv_add_f32 v116, v22, v26\nv_add_f32 v118, v23, v27")
        a("buffer_store_dwordx4 v[112:115], v13, s[44:47], s62 offen sc1")
        a(f"buffer_store_dwordx4 v[116:119], v13, s[44:47], s62 offen offset:{64 if self.opt['lay'] else 16} sc1")
        a("s_mov_b64 exec, -1")

    def chk16(self, base, dst):
        a = self.a
        for i in range(8):
            a(f"s_xor_b64 s[{base+2*i}:{base+2*i+1}], s[{base+2*i}:{base+2*i+1}], s[70:71]")
        for i in range(4):
            a(f"s_or_b64 s[{base+4*i}:{base+4*i+1}], s[{base+4*i}:{base+4*i+1}], s[{base+4*i+2}:{base+4*i+3}]")
        a(f"s_or_b64 s[{base}:{base+1}], s[{base}:{base+1}], s[{base+4}:{base+5}]")
        a(f"s_or_b64 s[{base+8}:{base+9}], s[{base+8}:{base+9}], s[{base+12}:{base+13}]")
        a(f"s_or_b64 s[{base}:{base+1}], s[{base}:{base+1}], s[{base+8}:{base+9}]")

    def hloads(self):
        a = self.a
        for u in range(4, 8):
            a(f"buffer_load_dwordx4 v[{48+4*u}:{51+4*u}], v10, s[44:47], s{60+u} offen sc1")
        a("s_mov_b32 s58, -1\ns_mov_b32 s59, 0")
        a("s_mov_b64 exec, s[58:59]")
        a("buffer_load_dwordx4 v[80:83], v10, s[44:47], s68 offen sc1")
        a("s_mov_b64 exec, -1")

    def reducer(self):
        a = self.a
        o = self.opt
        a("s_mul_i32 s12, s11, 3641")
        a("s_lshr_b32 s12, s12, 16")
        a("s_mul_i32 s13, s12, 18")
        a("s_sub_u32 s13, s11, s13")
        a("v_lshlrev_b32 v10, 1, v1")
        a("s_mul_i32 s14, s12, 1152")
        a("v_add_u32 v11, s14, v10")
        for i in range(9):
            a(f"global_load_ushort v{24+i}, v11, s[16:17] offset:{128*i}")
            a(f"global_load_ushort v{36+i}, v10, s[34:35] offset:{128*i}")
        a("s_lshr_b32 s14, s13, 1")
        a("s_lshl_b32 s14, s14, 10")
        a("s_lshl_b32 s15, s12, 7")
        a("s_add_u32 s14, s14, s15")
        a(f"s_add_u32 s14, s14, {WS_F3}")
        a("s_add_u32 s90, s40, s14\ns_addc_u32 s91, s41, 0")
        if o["f2r"]:
            a("s_lshl_b32 s14, s13, 10")
        else:
            a("s_mul_i32 s14, s13, 43")
            a("s_lshr_b32 s14, s14, 8")
            a("s_lshl_b32 s14, s14, 10")
        a("s_add_u32 s14, s14, s15")
        a(f"s_add_u32 s14, s14, {WS_F2R if o['f2r'] else WS_F2}")
        a("s_add_u32 s92, s40, s14\ns_addc_u32 s93, s41, 0")
        a("s_mov_b32 s70, s43\ns_mov_b32 s71, s43")
        a("s_waitcnt vmcnt(0)")
        for i in range(9):
            a(f"v_lshlrev_b32 v{24+i}, 16, v{24+i}")
            a(f"v_lshlrev_b32 v{36+i}, 16, v{36+i}")
        for i in range(9):
            a(f"v_mul_f32 v{24+i}, v{24+i}, v{36+i}")
        for i in range(0, 8, 2):
            a(f"v_cvt_pk_bf16_f32 v{36+i}, v{24+i}, v{25+i}")
        a("v_cvt_pk_bf16_f32 v44, v32, v32")
        a("v_mov_b32 v46, 0")
        for i in range(0, 8, 2):
            a(f"v_lshlrev_b32 v24, 16, v{36+i}\nv_and_b32 v25, 0xffff0000, v{36+i}")
            a("v_add_f32 v46, v46, v24\nv_add_f32 v46, v46, v25")
        a("v_lshlrev_b32 v24, 16, v44\nv_add_f32 v46, v46, v24")
        self.row_reduce("v_add_f32", 46)
        a("s_nop 1")
        a("v_readlane_b32 s14, v46, 0\nv_readlane_b32 s15, v46, 16\nv_readlane_b32 s56, v46, 32\nv_readlane_b32 s57, v46, 48")
        a("s_nop 1")
        a("v_mov_b32 v46, s14\nv_add_f32 v46, s15, v46\nv_add_f32 v46, s56, v46\nv_add_f32 v46, s57, v46")
        a("v_cvt_pk_bf16_f32 v46, v46, v46")
        a("v_lshlrev_b32 v46, 16, v46")
        a("v_mul_f32 v46, 0xbfb8aa3b, v46")
        a("v_exp_f32 v46, v46")
        a("s_nop 0")
        a("v_add_f32 v46, 1.0, v46")
        a("v_rcp_f32 v46, v46")
        a("s_nop 0")
        a("v_cvt_pk_bf16_f32 v46, v46, v46")
        a("v_lshlrev_b32 v46, 16, v46")
        a("v_sub_f32 v47, 1.0, v46")
        a("v_cvt_pk_bf16_f32 v47, v47, v47")
        a("v_lshlrev_b32 v47, 16, v47")
        a(f"v_mul_u32_u24 v10, {8*PART_PITCH}, v7")
        a("v_lshlrev_b32 v11, 4, v6")
        a("v_add_u32 v10, v10, v11")
        a(f"s_mul_i32 s14, s12, {PART_PITCH}")
        a("s_lshl_b32 s15, s13, 8")
        a("s_add_u32 s14, s14, s15")
        a(f"s_add_u32 s14, s14, {WS_PART}")
        for u in range(9):
            a(f"s_add_u32 s{60+u}, s14, {u*4*8*PART_PITCH}")
        a("v_mov_b32 v80, 0\nv_mov_b32 v81, s43\nv_mov_b32 v82, 0\nv_mov_b32 v83, s43")
        a("s_mul_i32 s14, s12, 1152")
        a("s_lshl_b32 s15, s13, 6")
        a("s_add_u32 s14, s14, s15")
        if o["lay"]:
            a("v_lshrrev_b32 v11, 3, v6\nv_lshlrev_b32 v11, 5, v11")
            a("v_and_b32 v24, 3, v6\nv_lshlrev_b32 v24, 3, v24\nv_add_u32 v11, v11, v24")
            a("v_bfe_u32 v24, v6, 2, 1\nv_lshlrev_b32 v24, 2, v24\nv_add_u32 v11, v11, v24")
        else:
            a("v_lshlrev_b32 v11, 2, v6")
        a("v_add_u32 v11, s14, v11")
        a("s_mov_b32 s52, s36\ns_mov_b32 s53, s37\ns_mov_b32 s54, 9216\ns_mov_b32 s55, 0x00020000")
        a("s_setprio 3")
        a("s_mov_b32 s57, 0\ns_mov_b32 s15, 0")
        a("L_RF:")
        a("s_load_dwordx16 s[16:31], s[92:93], 0 glc")
        a("s_cmp_lg_u32 s15, 0")
        a("s_cbranch_scc1 L_RF_W")
        a("s_load_dwordx16 s[72:87], s[90:91], 0 glc")
        a("s_load_dwordx2 s[88:89], s[90:91], 64 glc")
        a("s_waitcnt lgkmcnt(0)")
        a("s_xor_b64 s[88:89], s[88:89], s[70:71]")
        self.chk16(72, None)
        a("s_or_b64 s[72:73], s[72:73], s[88:89]")
        a("s_cbranch_scc1 L_RF_N")
        self.hloads()
        a("s_mov_b32 s15, 1")
        self.stamp(3)
        if o["pp2"]:
            a("s_waitcnt lgkmcnt(0)")
            self.chk16(16, None)
            a("s_cbranch_scc0 L_RF_D")
            a("s_load_dwordx16 s[16:31], s[92:93], 0 glc")
            a(f"s_sleep {o['pp2']}")
            a("L_RF_P:")
            a("s_load_dwordx16 s[72:87], s[92:93], 0 glc")
            a("s_waitcnt lgkmcnt(1)")
            self.chk16(16, None)
            a("s_cbranch_scc0 L_RF_D")
            a("s_load_dwordx16 s[16:31], s[92:93], 0 glc")
            a("s_waitcnt lgkmcnt(1)")
            self.chk16(72, None)
            a("s_cbranch_scc0 L_RF_D")
            a("s_add_u32 s57, s57, 1")
            a("s_cmp_lt_u32 s57, 0x8000")
            a("s_cbranch_scc1 L_RF_P")
            a("s_branch L_RF_D")
        a("L_RF_W:")
        a("s_waitcnt lgkmcnt(0)")
        self.chk16(16, None)
        a("s_cbranch_scc0 L_RF_D")
        a("L_RF_N:")
        a("s_add_u32 s57, s57, 1")
        a("s_cmp_lt_u32 s57, 0x10000")
        a("s_cbranch_scc1 L_RF")
        a("L_RF_D:")
        self.stamp(5)
        a("s_setprio 3")
        a("s_mov_b32 s57, 0")
        a("s_cmp_lg_u32 s15, 0")
        a("s_cbranch_scc1 L_RP2")
        a("L_RPOLL:")
        self.hloads()
        a("L_RP2:")
        for u in range(4):
            a(f"buffer_load_dwordx4 v[{48+4*u}:{51+4*u}], v10, s[44:47], s{60+u} offen sc1")
        if o["ab"]:
            a(f"s_sleep {o['ab']}")
            for u in range(4):
                a(f"buffer_load_dwordx4 v[{84+4*u}:{87+4*u}], v10, s[44:47], s{60+u} offen sc1")
            a("s_waitcnt vmcnt(8)")
        else:
            a("s_waitcnt vmcnt(4)")
        a("v_min3_u32 v24, v65, v67, v69\nv_max3_u32 v25, v65, v67, v69")
        a("v_min3_u32 v24, v24, v71, v73\nv_max3_u32 v25, v25, v71, v73")
        a("v_min3_u32 v24, v24, v75, v77\nv_max3_u32 v25, v25, v75, v77")
        a("v_min3_u32 v24, v24, v79, v81\nv_max3_u32 v25, v25, v79, v81")
        a("v_min_u32 v24, v24, v83\nv_max_u32 v25, v25, v83")
        a("v_add_f32 v28, v64, v68\nv_add_f32 v29, v66, v70")
        a("v_cmp_ne_u32 vcc, s43, v24")
        a("v_cmp_ne_u32 s[58:59], s43, v25")
        a("v_add_f32 v32, v72, v76\nv_add_f32 v33, v74, v78")
        a("s_or_b64 vcc, vcc, s[58:59]")
        a("v_add_f32 v28, v28, v32\nv_add_f32 v29, v29, v33")
        a("s_cbranch_vccz L_RHOK")
        a("s_add_u32 s57, s57, 1")
        a("s_waitcnt vmcnt(0)")
        a("s_cmp_lt_u32 s57, 0x10000")
        a("s_cbranch_scc1 L_RPOLL")
        a("L_RHOK:")
        a("v_add_f32 v28, v28, v80\nv_add_f32 v29, v29, v82")
        for swap in ("v_permlane32_swap_b32", "v_permlane16_swap_b32"):
            a("v_mov_b32 v30, v28\nv_mov_b32 v31, v29")
            a("s_nop 1")
            a(f"{swap} v28, v30\n{swap} v29, v31")
            a("s_nop 1")
            a("v_add_f32 v28, v28, v30\nv_add_f32 v29, v29, v31")
        a("v_cvt_pk_bf16_f32 v31, v28, v29")
        a("v_lshlrev_b32 v28, 16, v31\nv_and_b32 v29, 0xffff0000, v31")
        a("v_mul_f32 v28, v47, v28\nv_mul_f32 v29, v47, v29")
        a("v_cvt_pk_bf16_f32 v31, v28, v29")
        a("v_lshlrev_b32 v28, 16, v31\nv_and_b32 v29, 0xffff0000, v31")
        a("L_RCHK:")
        a("s_waitcnt vmcnt(4)" if o["ab"] else "s_waitcnt vmcnt(0)")
        a("v_min3_u32 v24, v49, v51, v53\nv_max3_u32 v25, v49, v51, v53")
        a("v_min3_u32 v24, v24, v55, v57\nv_max3_u32 v25, v25, v55, v57")
        a("v_min3_u32 v24, v24, v59, v61\nv_max3_u32 v25, v25, v59, v61")
        a("v_min_u32 v24, v24, v63\nv_max_u32 v25, v25, v63")
        a("v_add_f32 v26, v48, v52\nv_add_f32 v27, v50, v54")
        a("v_cmp_ne_u32 vcc, s43, v24")
        a("v_cmp_ne_u32 s[58:59], s43, v25")
        a("v_add_f32 v30, v56, v60\nv_add_f32 v31, v58, v62")
        a("s_or_b64 vcc, vcc, s[58:59]")
        a("v_add_f32 v26, v26, v30\nv_add_f32 v27, v27, v31")
        a("s_cbranch_vccz L_RGOT")
        a("s_add_u32 s57, s57, 1")
        a("s_cmp_ge_u32 s57, 0x10000")
        a("s_cbranch_scc1 L_RGOT")
        if o["ab"]:
            a("s_waitcnt vmcnt(0)")
            for r in range(16):
                a(f"v_mov_b32 v{48+r}, v{84+r}")
            for u in range(4):
                a(f"buffer_load_dwordx4 v[{84+4*u}:{87+4*u}], v10, s[44:47], s{60+u} offen sc1")
        else:
            for u in range(4):
                a(f"buffer_load_dwordx4 v[{48+4*u}:{51+4*u}], v10, s[44:47], s{60+u} offen sc1")
        a("s_branch L_RCHK")
        a("L_RGOT:")
        self.stamp(6)
        if self.stamps:
            a("v_writelane_b32 v2, s57, 1")
        for swap in ("v_permlane32_swap_b32", "v_permlane16_swap_b32"):
            a("v_mov_b32 v30, v26\nv_mov_b32 v31, v27")
            a("s_nop 1")
            a(f"{swap} v26, v30\n{swap} v27, v31")
            a("s_nop 1")
            a("v_add_f32 v26, v26, v30\nv_add_f32 v27, v27, v31")
        a("v_cvt_pk_bf16_f32 v30, v26, v27")
        a("v_lshlrev_b32 v26, 16, v30\nv_and_b32 v27, 0xffff0000, v30")
        a("v_mul_f32 v26, v46, v26\nv_mul_f32 v27, v46, v27")
        a("v_cvt_pk_bf16_f32 v30, v26, v27")
        a("v_lshlrev_b32 v26, 16, v30\nv_and_b32 v27, 0xffff0000, v30")
        a("v_add_f32 v26, v26, v28\nv_add_f32 v27, v27, v29")
        a("v_cvt_pk_bf16_f32 v30, v26, v27")
        a("s_mov_b64 exec, 0xffff")
        a(f"buffer_store_dword v30, v11, s[52:55], 0 offen {o['osc']}".rstrip())
        a("s_cmp_eq_u32 s11, 0")
        a("s_cbranch_scc0 L_RDONE")
        a("s_mov_b64 exec, 1")
        a("v_mov_b32 v11, s43")
        a("buffer_store_dword v11, off, s[44:47], 0 sc1")
        a("L_RDONE:")
        a("s_mov_b64 exec, -1")
        self.stamp(7)

    def epilogue(self):
        a = self.a
        a("L_FIN:")
        if self.stamps:
            a("s_lshl_b32 s14, s2, 4")
            a("s_add_u32 s14, s14, s3")
            a("s_lshl_b32 s14, s14, 6")
            a(f"s_add_u32 s14, s14, {STAMP_OFF}")
            a("s_add_u32 s40, s40, s14\ns_addc_u32 s41, s41, 0")
            a("v_mov_b32 v3, 0")
            a("v_and_b32 v4, 63, v0")
            a("v_lshlrev_b32 v4, 3, v4")
            a("s_mov_b64 exec, 0xff")
            a("global_store_dwordx2 v4, v[2:3], s[40:41]")
        a("L_END:")
        a("s_endpgm")

    def build(self):
        self.prologue()
        self.vwave_first = True
        self.vwave()
        self.kwave()
        self.post()
        self.epilogue()
        return wrap(self.a.text(), NWG, 1024, LDS_ALLOC, self.opt["vgpr"], sgpr=102)

if __name__ == "__main__":
    stamps = "--stamps" in sys.argv
    opt = {}
    outs = []
    for x in sys.argv[1:]:
        if x.startswith("--"):
            if "=" in x:
                k, v = x[2:].split("=")
                if v in ("True", "False"): v = (v == "True")
                elif v.lstrip("-").isdigit(): v = int(v)
                opt[k] = v
        else:
            outs.append(x)
    txt = Gen(stamps=stamps, **opt).build()
    open(outs[0] if outs else "k.s", "w").write(txt)
```

```python
PLANS = {
    "A": dict(nL=[0, 2, 0, 14, 2, 13, 4, 13], sorder=[0, 2, 1, 3, 4, 5, 6, 7], nD=[32, 30, 32, 4, 30, 3, 28, 3]),
    "B": dict(nL=[0, 0, 0, 16, 0, 16, 0, 16], sorder=[0, 2, 1, 3, 4, 5, 6, 7], nD=[32, 32, 32, 1, 32, 1, 32, 0]),
    "U": dict(nL=[6]*8, sorder=[0, 2, 1, 3, 4, 5, 6, 7], nD=[21, 20, 20, 20, 21, 20, 20, 20]),
    "P": dict(nL=[0, 12, 0, 12, 0, 12, 0, 12], sorder=[0, 2, 1, 3, 4, 5, 6, 7], nD=[32, 9, 32, 8, 32, 9, 32, 8]),
    "Q": dict(nL=[0, 12, 0, 12, 0, 12, 0, 12], sorder=[0, 2, 1, 3, 4, 5, 6, 7], nD=[32, 9, 32, 8, 32, 9, 32, 8], n3=[13, 0, 13, 0, 0, 0, 0, 0]),
    "R": dict(nL=[0, 10, 0, 12, 0, 13, 0, 13], sorder=[0, 2, 1, 3, 4, 5, 6, 7], nD=[32, 10, 32, 8, 32, 8, 32, 8], n3=[14, 0, 12, 0, 0, 0, 0, 0]),
    "S": dict(nL=[0, 12, 0, 12, 0, 12, 0, 12], sorder=[0, 2, 1, 3, 4, 5, 6, 7], nD=[32, 9, 32, 8, 32, 9, 32, 8], n3=[9, 0, 9, 0, 4, 0, 4, 0]),
    "V": dict(nL=[2, 6, 2, 6, 8, 8, 8, 8], sorder=[0, 2, 1, 3, 4, 5, 6, 7], nD=[30, 20, 30, 20, 16, 15, 16, 15], n3=[7, 6, 7, 6, 0, 0, 0, 0]),
    "W": dict(nL=[0, 6, 0, 6, 8, 10, 8, 10], sorder=[0, 2, 1, 3, 4, 5, 6, 7], nD=[32, 20, 32, 20, 16, 13, 16, 13], n3=[8, 5, 8, 5, 0, 0, 0, 0]),
    "X": dict(nL=[2, 8, 2, 8, 4, 10, 4, 10], sorder=[0, 2, 1, 3, 4, 5, 6, 7], nD=[30, 14, 30, 14, 28, 9, 28, 9], n3=[6, 3, 6, 3, 4, 0, 4, 0]),
    "Y": dict(nL=[0, 12, 0, 12, 0, 12, 0, 12], sorder=[0, 2, 1, 3, 4, 5, 6, 7], nD=[23, 15, 23, 15, 28, 15, 28, 15], n3=[9, 0, 9, 0, 4, 0, 4, 0], skip3=True),
    "Z": dict(nL=[0, 12, 0, 12, 0, 12, 0, 12], sorder=[0, 2, 1, 3, 4, 5, 6, 7], nD=[32, 9, 32, 8, 32, 9, 32, 8], n3=[7, 6, 7, 6, 0, 0, 0, 0]),
    "D": dict(nL=[0, 10, 0, 10, 4, 12, 2, 10], sorder=[0, 2, 1, 3, 4, 5, 6, 7], nD=[32, 11, 32, 11, 28, 9, 30, 9], n3=[7, 6, 7, 6, 0, 0, 0, 0]),
    "F": dict(nL=[0, 8, 0, 8, 6, 12, 4, 10], sorder=[0, 2, 1, 3, 4, 5, 6, 7], nD=[32, 14, 32, 14, 26, 8, 28, 8], n3=[8, 5, 8, 5, 0, 0, 0, 0]),
    "G": dict(nL=[0, 12, 0, 12, 0, 12, 0, 12], sorder=[0, 2, 1, 3, 4, 5, 6, 7], nD=[32, 9, 32, 8, 32, 9, 32, 8], n3=[4, 4, 3, 3, 3, 3, 3, 3]),
    "H": dict(nL=[6]*8, sorder=[0, 2, 1, 3, 4, 5, 6, 7], nD=[21, 20, 20, 20, 21, 20, 20, 20], n3=[4, 4, 3, 3, 3, 3, 3, 3]),
    "I": dict(nL=[6]*8, sorder=[0, 2, 1, 3, 4, 5, 6, 7], nD=[24, 22, 24, 22, 18, 17, 18, 17], n3=[7, 6, 7, 6, 0, 0, 0, 0]),
    "J": dict(nL=[6]*8, sorder=[0, 2, 1, 3, 4, 5, 6, 7], nD=[22, 20, 22, 20, 20, 19, 20, 19], n3=[5, 4, 5, 4, 2, 2, 2, 2]),
    "a": dict(nL=[0, 12, 0, 12, 0, 12, 0, 12], sorder=[0, 2, 1, 3, 4, 5, 6, 7], nD=[19, 15, 19, 15, 32, 15, 32, 15], n3=[13, 0, 13, 0, 0, 0, 0, 0], skip3=True),
    "b": dict(nL=[0, 12, 0, 12, 0, 12, 0, 12], sorder=[0, 2, 1, 3, 4, 5, 6, 7], nD=[25, 15, 25, 15, 26, 15, 26, 15], n3=[7, 0, 7, 0, 6, 0, 6, 0], skip3=True),
    "c": dict(nL=[0, 12, 0, 12, 0, 12, 0, 12], sorder=[0, 2, 1, 3, 4, 5, 6, 7], nD=[23, 18, 23, 18, 22, 18, 22, 18], n3=[9, 0, 9, 0, 4, 0, 4, 0], skip3=True),
    "d": dict(nL=[0, 12, 0, 12, 0, 12, 0, 12], sorder=[0, 2, 1, 3, 4, 5, 6, 7], nD=[22, 17, 22, 17, 25, 17, 25, 17], n3=[10, 0, 10, 0, 3, 0, 3, 0], skip3=True),
    "e": dict(nL=[0, 11, 0, 11, 2, 12, 0, 12], sorder=[0, 2, 1, 3, 4, 5, 6, 7], nD=[22, 18, 22, 18, 24, 16, 26, 16], n3=[10, 0, 10, 0, 2, 0, 4, 0], skip3=True),
    "T": dict(nL=[0, 6, 0, 10, 4, 12, 4, 12], sorder=[0, 2, 1, 3, 4, 5, 6, 7], nD=[32, 16, 32, 10, 28, 8, 28, 8], n3=[13, 0, 13, 0, 0, 0, 0, 0]),
}
def tables(plan):
    p = PLANS[plan]
    nL, nD = p["nL"], p["nD"]
    n3 = p.get("n3", [0]*8)
    use3 = "n3" in p
    assert sum(nL) == 48 and sum(nD) == 162, (sum(nL), sum(nD))
    assert (not use3) or sum(n3) == 26
    Lbase = [sum(nL[:x]) for x in range(8)]
    nS = [32 - n for n in nL]
    Sbase = [0]*8
    K3base = [sum(n3[:x]) for x in range(8)]
    acc = 0
    for x in p["sorder"]:
        Sbase[x] = acc; acc += nS[x] - n3[x]
    assert acc == (182 if use3 else 208)
    Dbase = [sum(nD[:x]) for x in range(8)]
    skip3 = p.get("skip3", False)
    for x in range(8): assert nD[x] <= nS[x] - (n3[x] if skip3 else 0)
    return dict(skip3=skip3, nL=nL, Lbase=Lbase, Sbase=Sbase, nD=nD, Dbase=Dbase, n3=n3, K3base=K3base, use3=use3)
def roles(plan, lal=False):
    t = tables(plan)
    role, td = [], []
    for w in range(256):
        x, i = w & 7, w >> 3
        if i < t["nL"][x]:
            role.append((x + 8 * (i & 1) + 16 * (i >> 1)) if lal else t["Lbase"][x] + i); td.append(255)
        else:
            ih = i - t["nL"][x]
            if not t["use3"]:
                hs = t["Sbase"][x] + ih
            elif ih < t["n3"][x]:
                hs = (t["K3base"][x] + ih) * 8 + 3
            else:
                n = t["Sbase"][x] + ih - t["n3"][x]
                d = (n * 9363) >> 16
                r = n - 7 * d
                hs = 8 * d + r + (1 if r >= 3 else 0)
            role.append(48 + hs)
            idd = ih - (t["n3"][x] if t["skip3"] else 0)
            td.append(t["Dbase"][x] + idd if 0 <= idd < t["nD"][x] else 255)
    assert sorted(role) == list(range(256)), sorted(role)
    assert sorted(t_ for t_ in td if t_ != 255) == list(range(162))
    return role, td
def pack(bs):
    v = 0
    for i, b in enumerate(bs): v |= (b & 0xff) << (8 * i)
    return v & 0xffffffff, v >> 32
if __name__ == "__main__":
    for k in PLANS:
        r, t = roles(k); print(k, tables(k))
```
